```python
import torch

def _softmax(x, axis=-1):
    return torch.softmax(x, dim=axis)
def _gelu(x):
    return torch.nn.functional.gelu(x, approximate="tanh")
def _silu(x):
    return torch.nn.functional.silu(x)
def _sigmoid(x):
    return torch.sigmoid(x)
def _layernorm(x, axis=-1, eps=1e-5):
    m = x.mean(dim=axis, keepdim=True)
    v = x.var(dim=axis, keepdim=True, unbiased=False)
    return (x - m) / torch.sqrt(v + eps)
def _scatter_add(tgt, idx, src, axis=0):
    return tgt.clone().index_add_(axis, idx, src)
def _segment_sum(src, seg, n):
    out = torch.zeros((n,) + src.shape[1:], dtype=src.dtype)
    return out.index_add_(0, seg, src)
def _pad(x, pw):
    flat = tuple(v for pair in reversed(pw) for v in pair)
    return torch.nn.functional.pad(x, flat)

kernel_name = 'concat_heads__softmax_full_mha__ssm_conv_s4__prompt'

def setup_inputs():

    _w = (lambda a: (lambda t: t.to(torch.bfloat16) if t.is_floating_point() else t)(torch.as_tensor(a)))
    def _A_setup():
        B, S, D = 1, 2048, 512
        return {
            "x": _w((lambda *s: torch.randn(*s, dtype=torch.bfloat16) * 0.2)(B, S, D)),
            "wqkv": _w((lambda *s: torch.randn(*s, dtype=torch.bfloat16) * 0.2)(D, 3 * D)),
            "wo": _w((lambda *s: torch.randn(*s, dtype=torch.bfloat16) * 0.05)(D, D)),
        }
    _A_in = _A_setup()

    def _B_setup():
        B, L, D, N = 1, 2048, 512, 128
        A_re = -(lambda _x: torch.exp(torch.as_tensor(_x)))((lambda *s: torch.randn(*s, dtype=torch.bfloat16) * 6.4)(D, N))
        A_im = torch.pi * (lambda *s: torch.randn(*s, dtype=torch.bfloat16) * 0.1)(D, N)
        B_re = (lambda *s: torch.randn(*s, dtype=torch.bfloat16) * 0.2)(D, N)
        B_im = (lambda *s: torch.randn(*s, dtype=torch.bfloat16) * 0.2)(D, N)
        C_re = (lambda *s: torch.randn(*s, dtype=torch.bfloat16) * 0.2)(D, N)
        C_im = (lambda *s: torch.randn(*s, dtype=torch.bfloat16) * 0.2)(D, N)
        log_dt = (lambda *s: torch.randn(*s, dtype=torch.bfloat16) * 0.1)(D) * 0.5 - 4.0
        Dskip = (lambda *s: torch.randn(*s, dtype=torch.bfloat16) * 0.1)(D)
        return {
            "u": _w((lambda *s: torch.randn(*s, dtype=torch.bfloat16) * 0.05)(B, L, D)),
            "A_re": _w(A_re),
            "A_im": _w(A_im),
            "B_re": _w(B_re),
            "B_im": _w(B_im),
            "C_re": _w(C_re),
            "C_im": _w(C_im),
            "log_dt": _w(log_dt),
            "Dskip": _w(Dskip),
        }
    _B_in = _B_setup()

    return {
        "A_x": _A_in["x"],
        "A_wqkv": _A_in["wqkv"],
        "A_wo": _A_in["wo"],
        "B_u": _B_in["u"],
        "B_A_re": _B_in["A_re"],
        "B_A_im": _B_in["A_im"],
        "B_B_re": _B_in["B_re"],
        "B_B_im": _B_in["B_im"],
        "B_C_re": _B_in["C_re"],
        "B_C_im": _B_in["C_im"],
        "B_log_dt": _B_in["log_dt"],
        "B_Dskip": _B_in["Dskip"],
    }

def reference(A_x, A_wqkv, A_wo, B_u, B_A_re, B_A_im, B_B_re, B_B_im, B_C_re, B_C_im, B_log_dt, B_Dskip):
    def _A_ref(x, wqkv, wo):
        B, S, D = x.shape
        H = 32; Dh = D // H
        qkv = (lambda x, *d: x.permute(*d))((x @ wqkv).reshape(B, S, 3, H, Dh), 2, 0, 3, 1, 4)
        q, k, v = qkv[0], qkv[1], qkv[2]
        scale = Dh ** -0.5
        scores = torch.einsum("bhqd,bhkd->bhqk", q, k) * scale
        p = _softmax(scores, axis=-1)
        o = torch.einsum("bhqk,bhkd->bhqd", p, v)
        return (lambda x, *d: x.permute(*d))(o, 0, 2, 1, 3).reshape(B, S, D) @ wo

    def _B_ref(u, A_re, A_im, B_re, B_im, C_re, C_im, log_dt, Dskip):
        Bsz, L, D = u.shape
        dt = torch.exp(log_dt)[:, None]
        A = A_re + 1j * A_im
        Bc = B_re + 1j * B_im
        Cc = C_re + 1j * C_im
        logdA = dt * A
        dB = dt * Bc
        l = (lambda x, dt: x.to(dt))(torch.arange(L), A_re.dtype)
        P = torch.exp(logdA[:, :, None] * l[None, None, :])
        K = torch.einsum("dn,dnl,dn->dl", Cc, P, dB).real
        L2 = 2 * L
        Kp = _pad(K, ((0, 0), (0, L)))
        up = (lambda x, *d: x.permute(*d))(u, 0, 2, 1)
        up = _pad(up, ((0, 0), (0, 0), (0, L)))
        Kf = (lambda x, axes=(-2,-1): torch.fft.rfft2(x.float(), dim=axes))(Kp[:, None, :], axes=(-2, -1))
        Uf = (lambda x, axes=(-2,-1): torch.fft.rfft2(x.float(), dim=axes))(up[:, :, None, :], axes=(-2, -1))
        Yf = Uf * Kf[None, :, :, :]
        y = (lambda x, s, axes=(-2,-1): torch.fft.irfft2(x, s=s, dim=axes).to(torch.bfloat16))(Yf, (1, L2), axes=(-2, -1))[:, :, 0, :L]
        y = (lambda x, *d: x.permute(*d))(y, 0, 2, 1) + u * Dskip[None, None, :]
        return y

    a = _A_ref(A_x, A_wqkv, A_wo)
    b = _B_ref(B_u, B_A_re, B_A_im, B_B_re, B_B_im, B_C_re, B_C_im, B_log_dt, B_Dskip)
    return torch.concatenate([a, b], axis=-1)
```

```python
import sys, math, struct

NAME = "concat_heads__softmax_full_mha__ssm_conv_s4__prompt"

QF_OFF  = 0
KV_OFF  = 2 << 20
OF_OFF  = 6 << 20
WOF_OFF = 8 << 20
CH_OFF  = 9 << 20
CH_SZ   = 13312
CH_E    = 4160
CH_UT   = 8320
WS_USED = 16 << 20

def f2u(x): return struct.unpack('<I', struct.pack('<f', x))[0]
LOG2E = 1.4426950408889634

class A:
    def __init__(s): s.l = []
    def __call__(s, t):
        for x in t.split("\n"):
            x = x.strip()
            if x: s.l.append("    " + x)
    def lab(s, n): s.l.append(n + ":")
    def raw(s, t): s.l.append(t)
    def text(s): return "\n".join(s.l) + "\n"

def vr(a, n): return f"v[{a}:{a+n-1}]" if n > 1 else f"v{a}"
def sr(a, n): return f"s[{a}:{a+n-1}]" if n > 1 else f"s{a}"

def srd(o, d, b, size, add=0):
    if add:
        o(f"s_add_u32 s{d}, s{b}, {add:#x}")
        o(f"s_addc_u32 s{d+1}, s{b+1}, 0")
    else:
        o(f"s_mov_b32 s{d}, s{b}")
        o(f"s_mov_b32 s{d+1}, s{b+1}")
    o(f"s_mov_b32 s{d+2}, {size:#x}")
    o(f"s_mov_b32 s{d+3}, 0x00020000")

def kstart(o, name):
    o.raw(f".globl {name}\n.p2align 8\n.type {name},@function")
    o.lab(name)

def kdesc(name, nv, ns=96):
    return f""".p2align 6
.amdhsa_kernel {name}
  .amdhsa_next_free_vgpr {nv}
  .amdhsa_next_free_sgpr {ns}
  .amdhsa_accum_offset {(nv+3)//4*4}
  .amdhsa_group_segment_fixed_size 0
  .amdhsa_kernarg_size 120
  .amdhsa_user_sgpr_count 2
  .amdhsa_user_sgpr_kernarg_segment_ptr 1
  .amdhsa_system_sgpr_workgroup_id_x 1
.end_amdhsa_kernel
"""

K1_LDS = 57344
def k1(o):
    kstart(o, "k1_kernel")
    o(f"""
    s_cmp_ge_u32 s2, 384
    s_cbranch_scc1 K1_END
    s_load_dwordx8 s[4:11], s[0:1], 0
    s_load_dwordx2 s[28:29], s[0:1], 112
    s_load_dwordx16 s[32:47], s[0:1], 32
    v_lshrrev_b32 v1, 6, v0
    v_and_b32 v0, 63, v0
    s_nop 0
    v_readfirstlane_b32 s3, v1
    v_and_b32 v2, 15, v0
    v_lshrrev_b32 v3, 4, v0
    s_waitcnt lgkmcnt(0)
    """)
    srd(o, 20, 28, WS_USED)
    o("s_cmp_ge_u32 s2, 256")
    o("s_cbranch_scc1 K1_PREP")
    srd(o, 12, 4, 2048*1024)
    srd(o, 16, 6, 512*3072)
    o(f"""
    s_and_b32 s24, s2, 7
    s_lshr_b32 s25, s2, 3
    s_lshr_b32 s26, s24, 1
    s_lshl_b32 s26, s26, 1
    s_and_b32 s27, s25, 1
    s_add_u32 s26, s26, s27         ; qb
    s_and_b32 s27, s24, 1
    s_lshl_b32 s27, s27, 4
    s_lshr_b32 s25, s25, 1
    s_add_u32 s27, s27, s25         ; head
    v_lshrrev_b32 v4, 1, v0
    v_and_b32 v5, 0x13, v4
    v_and_b32 v6, 4, v4
    v_lshlrev_b32 v6, 1, v6
    v_or_b32 v5, v5, v6
    v_and_b32 v6, 8, v4
    v_lshrrev_b32 v6, 1, v6
    v_or_b32 v5, v5, v6
    v_mul_u32_u24 v5, 3072, v5
    v_and_b32 v6, 1, v0
    v_lshl_add_u32 v4, v6, 4, v5
    s_mul_i32 s30, s3, 98304
    s_lshl_b32 s31, s27, 5
    s_add_u32 s30, s30, s31         ; w*98304 + head*32
    s_lshl_b32 s31, s3, 10          ; w*1024
    """)
    for i in range(6):
        p, hi = i >> 1, i & 1
        o(f"s_add_u32 s48, s30, {hi*786432 + p*1024}")
        o(f"s_add_u32 m0, s31, {hi*8192 + p*16384}")
        o("s_nop 0")
        o("buffer_load_dwordx4 v4, s[16:19], s48 offen lds")
    o(f"""
    v_lshlrev_b32 v5, 10, v2
    v_lshl_add_u32 v5, v3, 4, v5    ; (lane&15)*1024 + g*16
    s_lshl_b32 s49, s26, 8
    s_lshl_b32 s48, s3, 5
    s_add_u32 s49, s49, s48
    s_lshl_b32 s49, s49, 10         ; tok0*1024
    s_add_u32 s50, s49, 16384
    """)
    XR = 56
    def xload(s):
        b = XR + (s % 8) * 8
        o(f"buffer_load_dwordx4 {vr(b,4)}, v5, s[12:15], s49 offen offset:{64*s}")
        o(f"buffer_load_dwordx4 {vr(b+4,4)}, v5, s[12:15], s50 offen offset:{64*s}")
    for s in range(8): xload(s)
    o(f"""
    v_lshrrev_b32 v6, 1, v3
    v_lshlrev_b32 v6, 4, v6
    v_and_b32 v7, 1, v3
    v_lshl_add_u32 v6, v7, 2, v6
    v_bfe_u32 v7, v0, 2, 2
    v_add_u32 v6, v6, v7
    v_lshlrev_b32 v6, 5, v6
    v_and_b32 v7, 3, v0
    v_lshl_add_u32 v6, v7, 3, v6
    """)
    ACC = 8
    for i in range(24): o(f"v_mov_b32 v{ACC+i}, 0")
    WR = 32
    def wread(s):
        b = WR + (s & 1) * 12
        for p in range(3):
            o(f"ds_read_b64_tr_b16 {vr(b+4*p,2)}, v6 offset:{p*16384 + s*1024}")
            o(f"ds_read_b64_tr_b16 {vr(b+4*p+2,2)}, v6 offset:{p*16384 + s*1024 + 256}")
    o("s_waitcnt vmcnt(16)")
    o("s_barrier")
    wread(0)
    for s in range(16):
        if s < 15: wread(s + 1)
        n = 14 if s <= 8 else 30 - 2 * s
        o(f"s_waitcnt vmcnt({n}) lgkmcnt({6 if s < 15 else 0})")
        wb = WR + (s & 1) * 12
        xb = XR + (s % 8) * 8
        for tt in range(2):
            x = vr(xb + 4 * tt, 4)
            o(f"v_mfma_f32_16x16x32_bf16 {vr(ACC+4*tt,4)}, {vr(wb,4)}, {x}, {vr(ACC+4*tt,4)}")
            o(f"v_mfma_f32_16x16x32_bf16 {vr(ACC+8+4*tt,4)}, {vr(wb+4,4)}, {x}, {vr(ACC+8+4*tt,4)}")
            o(f"v_mfma_f32_16x16x32_bf16 {vr(ACC+16+4*tt,4)}, {x}, {vr(wb+8,4)}, {vr(ACC+16+4*tt,4)}")
        if s < 8: xload(s + 8)
    o(f"""
    v_lshrrev_b32 v4, 1, v3
    v_lshlrev_b32 v4, 9, v4
    v_lshl_add_u32 v4, v2, 4, v4
    v_and_b32 v7, 1, v3
    v_lshl_add_u32 v4, v7, 3, v4
    s_lshl_b32 s48, s27, 6
    s_lshl_b32 s49, s26, 3
    s_add_u32 s48, s48, s49
    s_add_u32 s48, s48, s3
    s_lshl_b32 s49, s48, 10
    s_lshl_b32 s50, s48, 11
    s_add_u32 s50, s50, {KV_OFF:#x}
    s_mov_b32 s51, {f2u(0.25*LOG2E):#x}
    s_nop 4
    """)
    for i in range(8): o(f"v_mul_f32 v{ACC+i}, s51, v{ACC+i}")
    for a in range(6):
        b = ACC + 4 * a
        o(f"v_cvt_pk_bf16_f32 v{32+2*a}, v{b}, v{b+1}")
        o(f"v_cvt_pk_bf16_f32 v{33+2*a}, v{b+2}, v{b+3}")
    o(f"buffer_store_dwordx2 v[32:33], v4, s[20:23], s49 offen")
    o(f"buffer_store_dwordx2 v[34:35], v4, s[20:23], s49 offen offset:256")
    o(f"buffer_store_dwordx2 v[36:37], v4, s[20:23], s50 offen")
    o(f"buffer_store_dwordx2 v[38:39], v4, s[20:23], s50 offen offset:256")
    o(f"buffer_store_dwordx2 v[40:41], v4, s[20:23], s50 offen offset:1024")
    o(f"buffer_store_dwordx2 v[42:43], v4, s[20:23], s50 offen offset:1280")
    o("s_endpgm")

    SCR = 4352
    UTILE = 8 * SCR
    WOTILE = UTILE + 16384
    assert WOTILE + 4096 <= K1_LDS
    o.lab("K1_PREP")
    srd(o, 12, 10, 2048*1024)
    srd(o, 16, 8, 512*1024)
    o(f"""
    s_sub_u32 s24, s2, 256          ; pw
    s_lshr_b32 s25, s3, 1
    s_lshl_b32 s26, s24, 2
    s_add_u32 s26, s26, s25         ; ch
    s_and_b32 s27, s3, 1            ; n half
    s_lshl_b32 s30, s26, 8
    s_lshl_b32 s31, s27, 7
    s_add_u32 s30, s30, s31
    v_lshl_add_u32 v4, v0, 1, s30
    s_lshl_b32 s31, s26, 1
    v_mov_b32 v5, s31
    global_load_ushort v10, v4, s[32:33]
    global_load_ushort v11, v4, s[34:35]
    global_load_ushort v12, v4, s[36:37]
    global_load_ushort v13, v4, s[38:39]
    global_load_ushort v14, v4, s[40:41]
    global_load_ushort v15, v4, s[42:43]
    global_load_ushort v16, v5, s[44:45]
    v_lshrrev_b32 v6, 3, v0
    v_sub_u32 v6, 7, v6
    v_lshlrev_b32 v6, 10, v6
    v_and_b32 v7, 7, v0
    v_lshl_add_u32 v6, v7, 4, v6
    s_and_b32 s48, s24, 15          ; lb
    s_lshr_b32 s49, s24, 4          ; cb
    s_lshl_b32 s50, s48, 7
    s_add_u32 s50, s50, 120
    s_lshl_b32 s51, s3, 4
    s_sub_u32 s50, s50, s51         ; 128lb+120-16w
    s_lshl_b32 s50, s50, 10
    s_lshl_b32 s51, s49, 7
    s_add_u32 s50, s50, s51
    s_lshl_b32 s51, s3, 11
    s_add_u32 m0, s51, {UTILE}
    s_nop 0
    buffer_load_dwordx4 v6, s[12:15], s50 offen lds
    s_sub_u32 s50, s50, 8192
    s_add_u32 m0, s51, {UTILE+1024}
    s_nop 0
    buffer_load_dwordx4 v6, s[12:15], s50 offen lds
    s_cmp_ge_u32 s3, 4
    s_cbranch_scc1 K1_NOWO
    v_lshlrev_b32 v6, 10, v3
    v_lshl_add_u32 v6, v2, 4, v6
    s_lshr_b32 s50, s24, 2
    s_lshl_b32 s50, s50, 4
    s_lshl_b32 s51, s3, 2
    s_add_u32 s50, s50, s51
    s_lshl_b32 s50, s50, 10
    s_and_b32 s51, s24, 3
    s_lshl_b32 s51, s51, 8
    s_add_u32 s50, s50, s51
    s_lshl_b32 s51, s3, 10
    s_add_u32 m0, s51, {WOTILE}
    s_nop 0
    buffer_load_dwordx4 v6, s[16:19], s50 offen lds
    s_waitcnt vmcnt(3)
    s_branch K1_WO_DONE
    """)
    o.lab("K1_NOWO")
    o("s_waitcnt vmcnt(2)")
    o.lab("K1_WO_DONE")
    for r in range(10, 17): o(f"v_lshlrev_b32 v{r}, 16, v{r}")
    o(f"""
    v_mul_f32 v16, {f2u(LOG2E):#x}, v16
    v_exp_f32 v16, v16
    s_nop 0
    v_cvt_pk_bf16_f32 v16, v16, v16
    v_lshlrev_b32 v16, 16, v16
    v_mul_f32 v10, v16, v10
    v_mul_f32 v11, v16, v11
    v_mul_f32 v12, v16, v12
    v_mul_f32 v13, v16, v13
    v_mul_f32 v10, {f2u(LOG2E):#x}, v10
    v_mul_f32 v11, {f2u(1/(2*math.pi)):#x}, v11
    v_mul_f32 v20, v14, v12
    v_mul_f32 v21, v14, v13
    v_fma_f32 v20, -v15, v13, v20   ; c re
    v_fma_f32 v21, v15, v12, v21    ; c im
    """)
    def anchor(t, d):
        o(f"""
        v_mul_f32 v6, {f2u(float(t)):#x}, v10
        v_mul_f32 v7, {f2u(float(t)):#x}, v11
        v_exp_f32 v6, v6
        v_fract_f32 v7, v7
        v_cos_f32 v8, v7
        v_sin_f32 v9, v7
        s_nop 0
        v_mul_f32 v{d}, v6, v8
        v_mul_f32 v{d+1}, v6, v9
        """)
    Z1, Z8, Z128 = 22, 24, 26
    anchor(1, Z1); anchor(8, Z8); anchor(128, Z128)
    def cmul(d, x, w):
        assert d != x
        o(f"v_pk_mul_f32 {vr(d,2)}, {vr(x,2)}, {vr(w,2)} op_sel:[0,0] op_sel_hi:[1,0]")
        o(f"v_pk_fma_f32 {vr(d,2)}, {vr(x,2)}, {vr(w,2)}, {vr(d,2)} op_sel:[1,1,0] op_sel_hi:[0,1,1] neg_lo:[1,0,0]")
    o(f"""
    s_mul_i32 s52, s3, {SCR}
    v_lshl_add_u32 v17, v0, 2, s52
    v_mul_u32_u24 v18, 272, v2
    v_lshl_add_u32 v18, v3, 4, v18
    v_add_u32 v18, s52, v18
    """)
    tmpi = [0]
    def put(e, x, neg=False):
        t = 28 + (tmpi[0] & 3); tmpi[0] += 1
        o(f"v_cvt_pk_bf16_f32 v{t}, v{x}, {'-' if neg else ''}v{x+1}")
        o(f"ds_write_b32 v17, v{t} offset:{e*272}")
    X = [32 + 2 * i for i in range(8)]
    Y = [48 + 2 * i for i in range(8)]
    BF = 64
    AF = 80
    GA = 96
    for i in range(12): o(f"v_mov_b32 v{GA+i}, 0")
    o("v_mov_b32 v28, 0x3f80")
    o("ds_write_b32 v17, v28")
    tmpi[0] = 1
    put(1, Z8, True)
    cur = Z8
    for j in range(2, 16):
        d = X[j & 1]
        cmul(d, cur, Z8); put(j, d, True); cur = d
    def rfrag(base):
        for s in range(4): o(f"ds_read_b128 {vr(base+4*s,4)}, v18 offset:{64*s}")
    rfrag(BF)
    def mm(t):
        o("s_waitcnt lgkmcnt(0)")
        for s in range(4):
            o(f"v_mfma_f32_16x16x32_bf16 {vr(GA+4*t,4)}, {vr(AF+4*s,4)}, {vr(BF+4*s,4)}, {vr(GA+4*t,4)}")
    o(f"v_mov_b32 v{X[0]}, v20"); o(f"v_mov_b32 v{X[0]+1}, v21")
    put(0, X[0])
    for r in range(1, 8):
        cmul(X[r], X[r-1], Z1); put(r, X[r])
    for r in range(8):
        cmul(Y[r], X[r], Z128); put(8 + r, Y[r])
    rfrag(AF)
    for r in range(4): cmul(X[r], Y[2*r], Z128)
    for r in range(4): cmul(X[4+r], X[r], Z128)
    cmul(Y[0], X[4], Z128); cmul(Y[1], X[6], Z128)
    for k in range(1, 4):
        cmul(Y[2*k], Y[2*k-2], Z128); cmul(Y[2*k+1], Y[2*k-1], Z128)
    mm(0)
    for r in range(8): put(r, X[r])
    for r in range(8): put(8 + r, Y[r])
    rfrag(AF)
    cmul(X[0], Y[6], Z128)
    for r in range(1, 8): cmul(X[r], X[r-1], Z128)
    cmul(Y[0], X[7], Z128)
    mm(1)
    for r in range(8): put(r, X[r])
    put(8, Y[0])
    rfrag(AF)
    mm(2)
    o(f"""
    s_nop 7
    s_cmp_eq_u32 s27, 0
    s_cbranch_scc1 K1_EV1
    v_lshl_add_u32 v6, v0, 4, s52
    ds_write_b128 v6, {vr(GA,4)}
    ds_write_b128 v6, {vr(GA+4,4)} offset:1024
    ds_write_b128 v6, {vr(GA+8,4)} offset:2048
    """)
    o.lab("K1_EV1")
    o(f"""
    s_waitcnt vmcnt(0) lgkmcnt(0)
    s_barrier
    s_cmp_eq_u32 s27, 0
    s_cbranch_scc0 K1_ODD
    v_lshl_add_u32 v6, v0, 4, s52
    ds_read_b128 v[32:35], v6 offset:{SCR}
    ds_read_b128 v[36:39], v6 offset:{SCR+1024}
    ds_read_b128 v[40:43], v6 offset:{SCR+2048}
    v_lshrrev_b32 v7, 1, v3
    v_lshlrev_b32 v7, 8, v7
    v_lshl_add_u32 v7, v2, 4, v7
    v_and_b32 v8, 1, v3
    v_lshl_add_u32 v7, v8, 3, v7
    v_add_u32 v7, s52, v7
    v_cmp_gt_u32 s[54:55], 2, v3
    v_lshlrev_b32 v8, 2, v2
    v_lshlrev_b32 v9, 3, v2
    v_cndmask_b32 v8, v8, v9, s[54:55]
    v_lshl_add_u32 v8, v3, 7, v8
    v_add_u32 v8, s52, v8
    v_mov_b32 v9, 64
    v_cndmask_b32 v9, v9, 4, s[54:55]
    v_add_u32 v9, v8, v9
    v_lshlrev_b32 v10, 7, v3
    v_lshl_add_u32 v10, v2, 1, v10
    v_add_u32 v10, s52, v10
    s_waitcnt lgkmcnt(0)
    """)
    for i in range(12): o(f"v_add_f32 v{GA+i}, v{GA+i}, v{32+i}")
    for i in range(6): o(f"v_cvt_pk_bf16_f32 v{44+i}, v{GA+2*i}, v{GA+2*i+1}")
    o(f"""
    ds_write_b64 v7, v[44:45]
    ds_write_b32 v8, v46 offset:512
    ds_write_b32 v9, v47 offset:512
    ds_write_b16 v10, v48 offset:1024
    ds_write_b16_d16_hi v10, v48 offset:1056
    ds_write_b16 v10, v49 offset:1088
    ds_write_b16_d16_hi v10, v49 offset:1120
    v_lshl_add_u32 v6, v0, 3, s52
    v_lshl_add_u32 v7, v0, 2, s52
    v_mov_b32 v8, s52
    ds_read_b64 v[50:51], v6
    ds_read_b32 v52, v6 offset:8
    ds_read2_b32 v[54:55], v7 offset0:128 offset1:129
    ds_read2_b32 v[56:57], v7 offset0:192 offset1:193
    v_add_u32 v7, 1024, v7
    ds_read2_b32 v[58:59], v7 offset0:0 offset1:1
    ds_read_u16 v60, v8
    s_mul_i32 s53, s26, {CH_SZ}
    s_add_u32 s53, s53, {CH_OFF:#x}
    s_add_u32 s54, s53, {CH_E}
    s_mov_b32 s56, 0x01000100
    s_mov_b32 s57, 0x03020302
    v_lshlrev_b32 v6, 3, v0
    v_lshlrev_b32 v7, 4, v0
    v_lshlrev_b32 v8, 5, v0
    s_waitcnt lgkmcnt(0)
    ; range 0
    v_alignbit_b32 v62, v51, v50, 16
    v_alignbit_b32 v63, v52, v51, 16
    buffer_store_dwordx2 v[50:51], v6, s[20:23], s54 offen offset:32
    buffer_store_dwordx2 v[62:63], v6, s[20:23], s53 offen offset:32
    ; range 1: E (g0,g0),(g1,g2)  O (g0,g1),(g2,g2)
    v_perm_b32 v64, v54, v54, s56
    v_alignbit_b32 v65, v55, v54, 16
    v_mov_b32 v66, v54
    v_perm_b32 v67, v55, v55, s56
    buffer_store_dwordx2 v[64:65], v6, s[20:23], s54 offen offset:544
    buffer_store_dwordx2 v[66:67], v6, s[20:23], s53 offen offset:544
    ; range 2: E (h0,h0),(h0,h1),(h1,h1),(h2,h2)  O (h0,h0),(h1,h1),(h1,h2),(h2,h2)
    v_perm_b32 v68, v56, v56, s56
    v_mov_b32 v69, v56
    v_perm_b32 v70, v56, v56, s57
    v_perm_b32 v71, v57, v57, s56
    v_mov_b32 v72, v68
    v_mov_b32 v73, v70
    v_alignbit_b32 v74, v57, v56, 16
    v_mov_b32 v75, v71
    buffer_store_dwordx4 v[68:71], v7, s[20:23], s54 offen offset:1056
    buffer_store_dwordx4 v[72:75], v7, s[20:23], s53 offen offset:1056
    ; range 3
    v_perm_b32 v76, v58, v58, s56   ; w0w0
    v_mov_b32 v77, v76
    v_mov_b32 v78, v58              ; w0w1
    v_perm_b32 v79, v58, v58, s57   ; w1w1
    v_mov_b32 v80, v79
    v_mov_b32 v81, v79
    v_perm_b32 v82, v59, v59, s56   ; w2w2
    v_mov_b32 v83, v82
    v_mov_b32 v84, v76
    v_mov_b32 v85, v76
    v_mov_b32 v86, v79
    v_mov_b32 v87, v79
    v_mov_b32 v88, v79
    v_alignbit_b32 v89, v59, v58, 16
    v_mov_b32 v90, v82
    v_mov_b32 v91, v82
    buffer_store_dwordx4 v[76:79], v8, s[20:23], s54 offen offset:2080
    buffer_store_dwordx4 v[80:83], v8, s[20:23], s54 offen offset:2096
    buffer_store_dwordx4 v[84:87], v8, s[20:23], s53 offen offset:2080
    buffer_store_dwordx4 v[88:91], v8, s[20:23], s53 offen offset:2096
    v_mov_b32 v92, 0
    v_mov_b32 v93, 0
    s_add_u32 s55, s53, {CH_UT+4096}
    buffer_store_dwordx2 v[92:93], v6, s[20:23], s55 offen
    ; fronts
    v_lshlrev_b32 v60, 16, v60
    v_cmp_eq_u32 s[58:59], 7, v0
    v_lshrrev_b32 v9, 3, v0
    v_mul_u32_u24 v9, {CH_E}, v9
    v_cndmask_b32 v60, 0, v60, s[58:59]
    v_and_b32 v10, 7, v0
    v_lshl_add_u32 v9, v10, 2, v9
    s_mov_b64 exec, 0xffff
    buffer_store_dword v60, v9, s[20:23], s53 offen
    s_endpgm
    """)
    o.lab("K1_ODD")
    o(f"""
    v_bfe_u32 v6, v0, 2, 2
    v_lshl_add_u32 v6, v3, 3, v6
    v_lshlrev_b32 v6, 7, v6
    v_and_b32 v7, 3, v0
    v_lshl_add_u32 v6, v7, 3, v6
    s_lshl_b32 s50, s25, 5
    s_add_u32 s50, s50, {UTILE}
    v_add_u32 v6, s50, v6
    """)
    for it in range(4):
        o(f"ds_read_b64_tr_b16 {vr(32+4*it,2)}, v6 offset:{it*4096}")
        o(f"ds_read_b64_tr_b16 {vr(34+4*it,2)}, v6 offset:{it*4096+512}")
    o(f"""
    v_lshrrev_b32 v8, 5, v0
    v_bfe_u32 v9, v0, 2, 2
    v_lshl_add_u32 v8, v8, 2, v9
    v_lshlrev_b32 v8, 8, v8
    v_and_b32 v9, 1, v3
    v_lshl_add_u32 v8, v9, 5, v8
    v_lshl_add_u32 v8, v7, 3, v8
    s_lshl_b32 s50, s25, 6
    s_add_u32 s50, s50, {WOTILE}
    v_add_u32 v8, s50, v8
    ds_read_b64_tr_b16 v[48:49], v8
    ds_read_b64_tr_b16 v[50:51], v8 offset:2048
    s_mov_b32 s50, {CH_SZ}
    v_mul_lo_u32 v10, s50, v2
    v_lshl_add_u32 v10, v3, 4, v10
    s_lshl_b32 s50, s49, 6
    s_lshl_b32 s51, s25, 4
    s_add_u32 s50, s50, s51
    s_mul_i32 s50, s50, {CH_SZ}
    s_add_u32 s50, s50, {CH_OFF + CH_UT + 3840:#x}
    s_lshl_b32 s51, s48, 8
    s_sub_u32 s50, s50, s51
    v_lshlrev_b32 v11, 4, v0
    s_and_b32 s51, s24, 3
    s_lshl_b32 s51, s51, 2
    s_add_u32 s51, s51, s25         ; ntile
    s_lshl_b32 s51, s51, 5
    s_lshr_b32 s53, s24, 2
    s_add_u32 s51, s51, s53
    s_lshl_b32 s51, s51, 10
    s_add_u32 s51, s51, {WOF_OFF:#x}
    s_waitcnt lgkmcnt(0)
    """)
    for it in range(4):
        o(f"buffer_store_dwordx4 {vr(32+4*it,4)}, v10, s[20:23], s50 offen offset:{64*it}")
    o("buffer_store_dwordx4 v[48:51], v11, s[20:23], s51 offen")
    o.lab("K1_END")
    o("s_endpgm")

K2_LDS = 131072 + 28672
def k2(o):
    kstart(o, "k2_kernel")
    o(f"""
    s_cmp_ge_u32 s2, 256
    s_cbranch_scc1 K2_END
    s_load_dwordx2 s[28:29], s[0:1], 112
    s_load_dwordx2 s[4:5], s[0:1], 24
    s_load_dwordx4 s[8:11], s[0:1], 88
    v_lshrrev_b32 v1, 6, v0
    v_and_b32 v0, 63, v0
    s_nop 0
    v_readfirstlane_b32 s3, v1
    v_lshlrev_b32 v1, 4, v0
    s_and_b32 s24, s2, 7
    s_lshr_b32 s25, s2, 3
    s_waitcnt lgkmcnt(0)
    """)
    srd(o, 20, 28, WS_USED)
    o("s_cmp_ge_u32 s3, 8")
    o("s_cbranch_scc1 K2_CONV")
    Q, NM, O, SX, SY, KF, V0, V1a, V1b, IDX, AD = 4, 8, 24, 40, 56, 72, 76, 80, 84, 88, 2
    o(f"""
    s_lshl_b32 s26, s24, 2
    s_and_b32 s27, s25, 3
    s_add_u32 s26, s26, s27         ; head
    s_lshr_b32 s27, s25, 2          ; qb
    s_lshl_b32 s30, s26, 6
    s_lshl_b32 s31, s27, 3
    s_add_u32 s30, s30, s31
    s_add_u32 s30, s30, s3
    s_lshl_b32 s30, s30, 10
    buffer_load_dwordx4 {vr(Q,4)}, v1, s[20:23], s30 offen
    s_lshl_b32 s31, s3, 10
    s_lshl_b32 s30, s26, 17
    s_add_u32 s30, s30, {KV_OFF:#x}
    s_add_u32 s30, s30, s31
    s_mov_b32 m0, s31
    """)
    for i in range(16):
        o("s_nop 0")
        o("buffer_load_dwordx4 v1, s[20:23], s30 offen lds")
        if i < 15:
            o("s_add_u32 s30, s30, 8192")
            o("s_add_u32 m0, m0, 8192")
    for r in list(range(V0, V0 + 12)): o(f"v_mov_b32 v{r}, 0x3f803f80")
    o(f"v_mov_b32 v{IDX}, 0xdddd")
    o(f"""
    s_mov_b32 s40, 0xffff
    s_mov_b32 s41, 0xffff
    s_mov_b32 s34, 0
    s_waitcnt vmcnt(14)
    s_barrier
    ds_read_b128 {vr(KF,4)}, v1
    s_waitcnt lgkmcnt(0)
    v_mfma_f32_32x32x16_bf16 {vr(SX,16)}, {vr(KF,4)}, {vr(Q,4)}, 0
    s_nop 15
    """)
    def maxred(src, dst):
        o(f"v_max3_f32 v{dst}, v{src}, v{src+1}, v{src+2}")
        for i in range(3, 15, 2): o(f"v_max3_f32 v{dst}, v{dst}, v{src+i}, v{src+i+1}")
        o(f"v_max_f32 v{dst}, v{dst}, v{src+15}")
    maxred(SX, 3)
    o.lab("K2_PASS")
    o(f"""
    v_mov_b32 v{AD}, v3
    s_nop 1
    v_permlane32_swap_b32 v3, v{AD}
    s_nop 1
    v_max_f32 v3, v3, v{AD}
    v_mov_b32 v{AD}, v1
    ds_read_b128 {vr(KF,4)}, v1
    """)
    for i in range(16): o(f"v_sub_f32 v{NM+i}, 0, v3")
    for i in range(16): o(f"v_mov_b32 v{O+i}, 0")
    for i in range(8, 16): o(f"v_mov_b32 v{SY+i}, 0")
    o(f"""
    s_waitcnt lgkmcnt(0)
    v_mfma_f32_32x32x16_bf16 {vr(SX,16)}, {vr(KF,4)}, {vr(Q,4)}, {vr(NM,16)}
    ds_read_b128 {vr(KF,4)}, v1 offset:2048
    s_mov_b64 exec, s[40:41]
    ds_read_b128 {vr(V0,4)}, v1 offset:1024
    ds_read_b128 {vr(V1a,4)}, v1 offset:1280
    s_mov_b64 exec, -1
    s_mov_b32 s32, 0                ; iteration
    s_cmp_eq_u32 s34, 0
    s_cselect_b32 s33, 1, 16        ; limit
    s_nop 7
    """)
    o.raw(".p2align 6")
    o.lab("K2_LOOP")
    for u in range(4):
        X, Y = (SX, SY) if u % 2 == 0 else (SY, SX)
        Vcur, Vprev = (V1a, V1b) if u % 2 == 0 else (V1b, V1a)
        ex = lambda a, b: [o(f"v_exp_f32 v{X+i}, v{X+i}") for i in range(a, b)]
        ex(0, 3)
        o("s_waitcnt lgkmcnt(2)")
        o(f"v_smfmac_f32_32x32x32_bf16 {vr(O,16)}, {vr(Vprev,4)}, {vr(Y+8,8)}, v{IDX}")
        ex(3, 8)
        o(f"v_mfma_f32_32x32x16_bf16 {vr(Y,16)}, {vr(KF,4)}, {vr(Q,4)}, {vr(NM,16)}")
        o(f"ds_read_b128 {vr(KF,4)}, v{AD} offset:{(u+2)*2048}")
        ex(8, 13)
        o("s_waitcnt lgkmcnt(2)")
        o(f"v_smfmac_f32_32x32x32_bf16 {vr(O,16)}, {vr(V0,4)}, {vr(X,8)}, v{IDX}")
        o("s_mov_b64 exec, s[40:41]")
        o(f"ds_read_b128 {vr(V0,4)}, v{AD} offset:{(u+1)*2048+1024}")
        o(f"ds_read_b128 {vr(Vprev,4)}, v{AD} offset:{(u+1)*2048+1280}")
        o("s_mov_b64 exec, -1")
        if u == 3:
            o(f"v_add_u32 v{AD}, 8192, v{AD}")
            o("s_add_u32 s32, s32, 1")
            o("s_cmp_lt_u32 s32, s33")
        ex(13, 16)
    o(f"""
    s_cbranch_scc1 K2_LOOP
    s_cmp_ge_u32 s32, 16
    s_cbranch_scc1 K2_FIN
    s_cmp_eq_u32 s32, 1
    s_cbranch_scc0 K2_ST3
    s_waitcnt vmcnt(10)
    s_barrier
    s_mov_b32 s33, 5
    s_branch K2_LOOP
    """)
    o.lab("K2_ST3")
    o(f"""
    s_waitcnt vmcnt(0)
    s_barrier
    s_mov_b32 s33, 16
    s_branch K2_LOOP
    """)
    o.lab("K2_FIN")
    o(f"""
    s_waitcnt lgkmcnt(0)
    v_smfmac_f32_32x32x32_bf16 {vr(O,16)}, {vr(V1b,4)}, {vr(SY+8,8)}, v{IDX}
    s_nop 15
    v_mul_f32 v3, 0, v{O+8}
    """)
    for i in range(8): o(f"v_fma_f32 v3, v{O+i}, 0, v3")
    o(f"""
    s_cmp_lg_u32 s34, 0
    s_cbranch_scc1 K2_OUT
    v_cmp_u_f32 vcc, v3, v3
    s_nop 1
    s_cbranch_vccz K2_OUT
    s_mov_b32 s34, 1
    s_mov_b32 s32, 0
    v_mov_b32 v{AD}, v1
    v_mov_b32 v3, 0xff800000
    """)
    o.lab("K2_MAXL")
    o(f"""
    ds_read_b128 {vr(KF,4)}, v{AD}
    v_add_u32 v{AD}, 2048, v{AD}
    s_waitcnt lgkmcnt(0)
    v_mfma_f32_32x32x16_bf16 {vr(SX,16)}, {vr(KF,4)}, {vr(Q,4)}, 0
    s_nop 15
    """)
    for i in range(0, 16, 2): o(f"v_max3_f32 v3, v3, v{SX+i}, v{SX+i+1}")
    o(f"""
    s_add_u32 s32, s32, 1
    s_cmp_lt_u32 s32, 64
    s_cbranch_scc1 K2_MAXL
    """)
    for r in list(range(V0, V0 + 12)): o(f"v_mov_b32 v{r}, 0x3f803f80")
    o("s_branch K2_PASS")
    o.lab("K2_OUT")
    o(f"""
    v_rcp_f32 v3, v{O+8}
    s_lshl_b32 s30, s27, 3
    s_add_u32 s30, s30, s3
    s_lshl_b32 s30, s30, 5
    s_add_u32 s30, s30, s26
    s_lshl_b32 s30, s30, 10
    s_add_u32 s30, s30, {OF_OFF:#x}
    """)
    for i in range(8): o(f"v_mul_f32 v{O+i}, v{O+i}, v3")
    for i in range(4): o(f"v_cvt_pk_bf16_f32 v{SX+i}, v{O+2*i}, v{O+2*i+1}")
    o(f"buffer_store_dwordx4 {vr(SX,4)}, v1, s[20:23], s30 offen")
    o("s_endpgm")

    CHL = 131072
    o.lab("K2_CONV")
    srd(o, 12, 4, 2048*1024)
    srd(o, 16, 10, 2048*2048)
    o(f"""
    s_sub_u32 s3, s3, 8             ; w'
    s_lshl_b32 s26, s24, 5
    s_add_u32 s26, s26, s25
    s_mul_i32 s30, s26, {2*CH_SZ}
    s_add_u32 s30, s30, {CH_OFF:#x}
    s_lshl_b32 s31, s3, 10
    s_add_u32 s30, s30, s31
    s_add_u32 m0, s31, {CHL}
    """)
    for i in range(7):
        o("s_nop 0")
        o("buffer_load_dwordx4 v1, s[20:23], s30 offen lds")
        if i < 6:
            o("s_add_u32 s30, s30, 4096")
            o("s_add_u32 m0, m0, 4096")
    US = 8
    o(f"""
    v_and_b32 v2, 15, v0
    v_lshrrev_b32 v3, 4, v0
    s_sub_u32 s27, 7, s3            ; iH
    v_lshlrev_b32 v4, 2, v3
    v_lshl_add_u32 v4, v2, 4, v4    ; 16a+4g
    v_lshlrev_b32 v5, 10, v4        ; *1024 (u)
    v_lshlrev_b32 v4, 11, v4        ; *2048 (out)
    s_lshl_b32 s32, s26, 2
    s_lshl_b32 s33, s27, 18
    s_add_u32 s33, s33, s32         ; u soffset H
    s_lshl_b32 s34, s3, 18
    s_add_u32 s34, s34, s32         ; u soffset L
    """)
    for r in range(4): o(f"buffer_load_dword v{US+r}, v5, s[12:15], s33 offen offset:{1024*r}")
    for r in range(4): o(f"buffer_load_dword v{US+4+r}, v5, s[12:15], s34 offen offset:{1024*r}")
    o(f"""
    v_mov_b32 v6, s32
    global_load_dword v16, v6, s[8:9]
    ; A addresses
    v_and_b32 v6, 1, v2
    v_mul_u32_u24 v17, {CH_E}, v6
    v_add_u32 v7, v2, v6
    v_lshl_add_u32 v17, v7, 1, v17
    v_lshl_add_u32 v17, v3, 4, v17
    v_add_u32 v17, {CHL}, v17       ; A ch0
    v_add_u32 v18, {CH_SZ}, v17     ; A ch1
    v_lshlrev_b32 v6, 5, v2
    v_lshlrev_b32 v7, 4, v3
    v_sub_u32 v7, v7, v6
    v_add_u32 v7, {CHL + CH_UT + 4064}, v7
    s_lshl_b32 s35, s27, 9
    s_lshl_b32 s36, s3, 9
    v_subrev_u32 v19, s35, v7       ; B H
    v_subrev_u32 v20, s36, v7       ; B L
    """)
    CA = 24
    for i in range(16): o(f"v_mov_b32 v{CA+i}, 0")
    FB = 40
    def creads(st, both):
        b = FB + (st & 1) * 24
        k = st % 8 if st < 8 else 8
        return b
    def issue(buf, k, both):
        b = FB + buf * 24
        o(f"ds_read2_b32 {vr(b,2)}, v17 offset0:{16*k} offset1:{16*k+1}")
        o(f"ds_read2_b32 {vr(b+2,2)}, v17 offset0:{16*k+2} offset1:{16*k+3}")
        o(f"ds_read2_b32 {vr(b+4,2)}, v18 offset0:{16*k} offset1:{16*k+1}")
        o(f"ds_read2_b32 {vr(b+6,2)}, v18 offset0:{16*k+2} offset1:{16*k+3}")
        o(f"ds_read_b128 {vr(b+8,4)}, v19 offset:{64*k}")
        o(f"ds_read_b128 {vr(b+12,4)}, v19 offset:{64*k+CH_SZ}")
        if both:
            o(f"ds_read_b128 {vr(b+16,4)}, v20 offset:{64*k}")
            o(f"ds_read_b128 {vr(b+20,4)}, v20 offset:{64*k+CH_SZ}")
    def cloop(lab, both):
        o.lab(lab)
        for k in range(8):
            issue((k + 1) & 1, k + 1, both)
            o(f"s_waitcnt lgkmcnt({8 if both else 6})")
            b = FB + (k & 1) * 24
            o(f"v_mfma_f32_16x16x32_bf16 {vr(CA,4)}, {vr(b,4)}, {vr(b+8,4)}, {vr(CA,4)}")
            o(f"v_mfma_f32_16x16x32_bf16 {vr(CA+4,4)}, {vr(b+4,4)}, {vr(b+12,4)}, {vr(CA+4,4)}")
            if both:
                o(f"v_mfma_f32_16x16x32_bf16 {vr(CA+8,4)}, {vr(b,4)}, {vr(b+16,4)}, {vr(CA+8,4)}")
                o(f"v_mfma_f32_16x16x32_bf16 {vr(CA+12,4)}, {vr(b+4,4)}, {vr(b+20,4)}, {vr(CA+12,4)}")
        for r in (17, 18, 19, 20): o(f"v_add_u32 v{r}, 512, v{r}")
        o("s_add_u32 s37, s37, 1")
    o(f"""
    s_barrier
    s_barrier
    s_waitcnt vmcnt(0)
    s_barrier
    s_mov_b32 s37, 0
    """)
    issue(0, 0, True)
    cloop("K2_CA", True)
    o("s_cmp_le_u32 s37, s3")
    o("s_cbranch_scc1 K2_CA")
    cloop("K2_CB", False)
    o("s_cmp_le_u32 s37, s27")
    o("s_cbranch_scc1 K2_CB")
    o(f"""
    s_waitcnt lgkmcnt(0)
    v_lshlrev_b32 v6, 16, v16       ; D0
    v_and_b32 v7, 0xffff0000, v16   ; D1
    s_lshl_b32 s33, s27, 19
    s_add_u32 s33, s33, s32
    s_add_u32 s33, s33, 1024
    s_lshl_b32 s34, s3, 19
    s_add_u32 s34, s34, s32
    s_add_u32 s34, s34, 1024
    s_add_u32 s35, s33, 4096
    s_add_u32 s36, s34, 4096
    s_nop 7
    """)
    for blk in range(2):
        for r in range(4):
            u_ = US + 4 * blk + r
            y0, y1 = CA + 8 * blk + r, CA + 8 * blk + 4 + r
            o(f"v_lshlrev_b32 v21, 16, v{u_}")
            o(f"v_and_b32 v22, 0xffff0000, v{u_}")
            o(f"v_fma_f32 v{y0}, v21, v6, v{y0}")
            o(f"v_fma_f32 v{y1}, v22, v7, v{y1}")
            o(f"v_cvt_pk_bf16_f32 v{u_}, v{y0}, v{y1}")
            so = (33, 35)[r >> 1] + blk
            o(f"buffer_store_dword v{u_}, v4, s[16:19], s{so} offen offset:{2048*(r&1)}")
    o.lab("K2_END")
    o("s_endpgm")

K3_LDS = 49152
def k3(o):
    kstart(o, "k3_kernel")
    o(f"""
    s_cmp_ge_u32 s2, 256
    s_cbranch_scc1 K3_END
    s_load_dwordx2 s[28:29], s[0:1], 112
    s_load_dwordx2 s[10:11], s[0:1], 96
    v_lshrrev_b32 v1, 6, v0
    v_and_b32 v0, 63, v0
    s_nop 0
    v_readfirstlane_b32 s3, v1
    v_lshlrev_b32 v1, 4, v0
    s_and_b32 s24, s2, 7
    s_lshr_b32 s25, s2, 3
    s_lshl_b32 s26, s24, 2
    s_and_b32 s27, s25, 3
    s_add_u32 s26, s26, s27         ; tb
    s_lshr_b32 s27, s25, 2          ; nb
    s_and_b32 s30, s3, 1
    s_lshr_b32 s31, s3, 1
    s_lshl_b32 s32, s26, 1
    s_add_u32 s32, s32, s30
    s_xor_b32 s33, s32, 1
    s_lshl_b32 s34, s27, 1
    s_add_u32 s34, s34, s31
    s_xor_b32 s35, s34, 1
    s_lshl_b32 s36, s3, 13          ; w*8 heads*1024
    s_lshl_b32 s40, s34, 15
    s_lshl_b32 s41, s35, 15
    s_lshl_b32 s42, s32, 15
    s_lshl_b32 s43, s33, 15
    s_add_u32 s36, s36, {OF_OFF:#x}
    s_add_u32 s42, s42, s36
    s_add_u32 s43, s43, s36
    s_add_u32 s36, s36, {WOF_OFF-OF_OFF:#x}
    s_add_u32 s40, s40, s36
    s_add_u32 s41, s41, s36
    s_add_u32 s44, s40, 4096
    s_add_u32 s45, s41, 4096
    s_add_u32 s46, s42, 4096
    s_add_u32 s47, s43, 4096
    s_waitcnt lgkmcnt(0)
    """)
    srd(o, 20, 28, WS_USED)
    srd(o, 16, 10, 2048*2048)
    FR = 68
    for h in range(8):
        for k in range(4):
            o(f"buffer_load_dwordx4 {vr(FR+16*h+4*k,4)}, v1, s[20:23], s{40+k+(4 if h>=4 else 0)} offen offset:{1024*(h&3)}")
    AC = 4
    for h in range(8):
        o(f"s_waitcnt vmcnt({28-4*h})")
        b = FR + 16 * h
        for k in range(4):
            ka, kb = k >> 1, k & 1
            c = vr(AC + 16 * k, 16)
            o(f"v_mfma_f32_32x32x16_bf16 {c}, {vr(b+4*ka,4)}, {vr(b+8+4*kb,4)}, {c if h else 0}")
    o("s_nop 7")
    for k in range(1, 4):
        o(f"s_xor_b32 s36, s3, {k}")
        o(f"s_mul_i32 s36, s36, 12288")
        o(f"v_add_u32 v{2 + (k & 1)}, s36, v1")
        if k == 1: o("s_nop 7")
        for q in range(4):
            o(f"ds_write_b128 v{2 + (k & 1)}, {vr(AC+16*k+4*q,4)} offset:{(k-1)*4096 + q*1024}")
    o(f"""
    s_mul_i32 s36, s3, 12288
    v_add_u32 v2, s36, v1
    s_waitcnt lgkmcnt(0)
    s_barrier
    """)
    for k in range(3):
        for q in range(4):
            o(f"ds_read_b128 {vr(FR+16*k+4*q,4)}, v2 offset:{k*4096 + q*1024}")
    o(f"""
    v_and_b32 v2, 31, v0
    v_lshlrev_b32 v2, 11, v2
    v_lshrrev_b32 v3, 5, v0
    v_lshl_add_u32 v2, v3, 4, v2
    s_lshl_b32 s36, s32, 16
    s_lshl_b32 s37, s34, 6
    s_add_u32 s36, s36, s37
    """)
    for k in range(3):
        o(f"s_waitcnt lgkmcnt({8-4*k})")
        for i in range(16): o(f"v_add_f32 v{AC+i}, v{AC+i}, v{FR+16*k+i}")
    for i in range(8): o(f"v_cvt_pk_bf16_f32 v{24+i}, v{AC+2*i}, v{AC+2*i+1}")
    o(f"""
    s_nop 1
    v_permlane32_swap_b32 v24, v26
    v_permlane32_swap_b32 v25, v27
    v_permlane32_swap_b32 v28, v30
    v_permlane32_swap_b32 v29, v31
    s_nop 1
    buffer_store_dwordx4 v[24:27], v2, s[16:19], s36 offen
    buffer_store_dwordx4 v[28:31], v2, s[16:19], s36 offen offset:32
    """)
    o.lab("K3_END")
    o("s_endpgm")

def main(out):
    hdr = open(f"cdna_kernels/{NAME}.s.ref").read().split("; Override launch")[0]
    o = A()
    o.raw(hdr.rstrip())
    o.raw(f"; @launch kernel=k1_kernel grid=(384,1,1) block=(512,1,1) lds={K1_LDS}")
    o.raw(f"; @launch kernel=k2_kernel grid=(256,1,1) block=(768,1,1) lds={K2_LDS}")
    o.raw(f"; @launch kernel=k3_kernel grid=(256,1,1) block=(256,1,1) lds={K3_LDS}")
    o.raw('.amdgcn_target "amdgcn-amd-amdhsa--gfx950"\n.text')
    k1(o); k2(o); k3(o)
    o.raw('.section .rodata,"a"')
    o.raw(kdesc("k1_kernel", 120))
    o.raw(kdesc("k2_kernel", 96))
    o.raw(kdesc("k3_kernel", 196))
    open(out, "w").write(o.text())

if __name__ == "__main__":
    main(sys.argv[1] if len(sys.argv) > 1 else f"cdna_kernels/{NAME}.s")
```

```python
import sys, math, struct

NAME = "concat_heads__softmax_full_mha__ssm_conv_s4__prompt"

QF_OFF  = 0
KV_OFF  = 2 << 20
OF_OFF  = 6 << 20
WOF_OFF = 8 << 20
UT_OFF  = 9 << 20
GC_OFF  = 11 << 20
GC_SZ   = 1536
ST1 = ""
WS_USED = 32 << 20

def f2u(x): return struct.unpack('<I', struct.pack('<f', x))[0]
LOG2E = 1.4426950408889634

class A:
    def __init__(s): s.l = []
    def __call__(s, t):
        for x in t.split("\n"):
            x = x.strip()
            if x: s.l.append("    " + x)
    def lab(s, n): s.l.append(n + ":")
    def raw(s, t): s.l.append(t)
    def text(s): return "\n".join(s.l) + "\n"

def vr(a, n): return f"v[{a}:{a+n-1}]" if n > 1 else f"v{a}"
def sr(a, n): return f"s[{a}:{a+n-1}]" if n > 1 else f"s{a}"

def srd(o, d, b, size, add=0):
    if add:
        o(f"s_add_u32 s{d}, s{b}, {add:#x}")
        o(f"s_addc_u32 s{d+1}, s{b+1}, 0")
    else:
        o(f"s_mov_b32 s{d}, s{b}")
        o(f"s_mov_b32 s{d+1}, s{b+1}")
    o(f"s_mov_b32 s{d+2}, {size:#x}")
    o(f"s_mov_b32 s{d+3}, 0x00020000")

STAMP = False
FINE = False
ST_OFF = 16 << 20
def stamp(o, i):
    if STAMP: o(f"s_memtime s[{64+2*i}:{65+2*i}]")
def rstamp(o, i):
    if STAMP: o(f"s_memrealtime s[{64+2*i}:{65+2*i}]")
def stamp_out(o, kid, wave_sgpr="s3", wadd=0):
    if not STAMP: return
    o("s_memrealtime s[78:79]")
    o("s_waitcnt lgkmcnt(0)")
    o("s_mov_b64 exec, 1")
    o(f"s_lshl_b32 s80, s2, 4")
    o(f"s_add_u32 s80, s80, {wave_sgpr}")
    o(f"s_add_u32 s80, s80, {kid*8192 + wadd}")
    o(f"s_lshl_b32 s80, s80, 6")
    o(f"s_add_u32 s80, s80, {ST_OFF:#x}")
    o("s_waitcnt vmcnt(0)")
    o("s_memtime s[76:77]")
    o("s_waitcnt lgkmcnt(0)")
    for i in range(16): o(f"v_mov_b32 v{4+i}, s{64+i}")
    o("v_mov_b32 v2, 0")
    for q in range(4): o(f"buffer_store_dwordx4 v[{4+4*q}:{7+4*q}], v2, s[20:23], s80 offen offset:{16*q}")

def kstart(o, name):
    o.raw(f".globl {name}\n.p2align 8\n.type {name},@function")
    o.lab(name)

def kdesc(name, nv, ns=96):
    return f""".p2align 6
.amdhsa_kernel {name}
  .amdhsa_next_free_vgpr {nv}
  .amdhsa_next_free_sgpr {ns}
  .amdhsa_accum_offset {(nv+3)//4*4}
  .amdhsa_group_segment_fixed_size 0
  .amdhsa_kernarg_size 120
  .amdhsa_user_sgpr_count 2
  .amdhsa_user_sgpr_kernarg_segment_ptr 1
  .amdhsa_system_sgpr_workgroup_id_x 1
.end_amdhsa_kernel
"""

STG = 28672
K1_SCR = 4 * STG
K1_UT = K1_SCR + 4 * 4352
K1_WO = K1_UT + 8192
K1_LDS = K1_WO + 2048
def k1(o):
    kstart(o, "k1_kernel")
    rstamp(o, 0); stamp(o, 1)
    o(f"""
    s_cmp_ge_u32 s2, 256
    s_cbranch_scc1 K1_END0
    s_load_dwordx8 s[4:11], s[0:1], 0
    s_load_dwordx2 s[28:29], s[0:1], 112
    s_load_dwordx16 s[32:47], s[0:1], 32
    v_lshrrev_b32 v1, 6, v0
    v_and_b32 v0, 63, v0
    s_nop 0
    v_readfirstlane_b32 s3, v1
    v_and_b32 v2, 15, v0
    v_lshrrev_b32 v3, 4, v0
    s_and_b32 s24, s2, 7
    s_lshr_b32 s25, s2, 3
    s_lshr_b32 s26, s24, 1
    s_lshl_b32 s26, s26, 2
    s_and_b32 s27, s25, 3
    s_add_u32 s26, s26, s27         ; mt (0..15)
    s_and_b32 s27, s24, 1
    s_lshl_b32 s27, s27, 3
    s_lshr_b32 s30, s25, 2
    s_add_u32 s27, s27, s30         ; hp (0..15)
    s_and_b32 s31, s25, 3
    s_lshl_b32 s31, s31, 1
    s_add_u32 s31, s31, s30
    s_and_b32 s31, s31, 7
    """)
    o(f"""
    s_and_b32 s30, s3, 3            ; tg
    s_lshr_b32 s48, s3, 2           ; hh
    v_lshrrev_b32 v10, 1, v2
    v_xor_b32 v10, v10, v3
    v_lshlrev_b32 v10, 4, v10
    v_lshl_add_u32 v4, v2, 7, v10
    s_lshl_b32 s49, s30, 12
    v_add_u32 v4, s49, v4
    v_xor_b32 v5, 64, v4
    v_add_u32 v6, {2*STG}, v4
    v_add_u32 v7, {2*STG}, v5
    v_bfe_u32 v10, v0, 2, 2
    v_lshl_add_u32 v10, v3, 3, v10
    v_lshlrev_b32 v10, 6, v10
    v_and_b32 v11, 1, v3
    v_xor_b32 v11, s48, v11
    v_lshl_add_u32 v10, v11, 5, v10
    v_and_b32 v11, 3, v0
    v_lshl_add_u32 v8, v11, 3, v10
    v_add_u32 v8, 16384, v8
    v_add_u32 v9, {2*STG}, v8
    s_waitcnt lgkmcnt(0)
    """)
    srd(o, 20, 28, WS_USED)
    o("v_mov_b32 v76, 0")
    o("v_mov_b32 v77, 0")
    ACC = 12
    FR = 36
    for i in range(24): o(f"v_mov_b32 v{ACC+i}, 0")
    o("s_cmp_ge_u32 s3, 4")
    o("s_cbranch_scc1 K1_B")

    def dma(n):
        o(f"s_add_u32 s54, s31, {n}")
        o("s_and_b32 s54, s54, 7")
        o("s_mul_i32 s54, s54, s52")
        o("s_add_u32 s54, s54, s50")
        o(f"s_add_u32 m0, s53, {(n & 3) * STG}")
        for q in range(4):
            if q:
                o("s_add_u32 s54, s54, s51")
                o("s_add_u32 m0, m0, 1024")
            o("s_nop 0")
            o(f"buffer_load_dwordx4 v{76 + (q & 1)}, s[12:15], s54 offen lds")
    def gemm(path, fill, skipdma=None):
        for n in range(8):
            N = [12, 8, 8, 8, 8, 8, 4, 0][n]
            if path == "B" and n == 1:
                o("s_cmp_lg_u32 s3, 7")
                o("s_cbranch_scc1 K1_B_W1")
                o("s_waitcnt vmcnt(0)")
                o.lab("K1_B_W1")
            o(f"s_waitcnt vmcnt({N}) lgkmcnt(0)")
            o("s_barrier")
            if n == 0: stamp(o, 2)
            xa = (4, 5) if (n & 3) < 2 else (6, 7)
            wa = 8 if (n & 3) < 2 else 9
            so = (n & 1) * STG
            for ks in range(2):
                b = FR + 20 * ks
                o(f"ds_read_b128 {vr(b,4)}, v{xa[ks]} offset:{so}")
                o(f"ds_read_b64_tr_b16 {vr(b+8,2)}, v{wa} offset:{so + ks*2048}")
                o(f"ds_read_b64_tr_b16 {vr(b+10,2)}, v{wa} offset:{so + ks*2048 + 256}")
                o(f"ds_read_b128 {vr(b+4,4)}, v{xa[ks]} offset:{so + 2048}")
                for p in (1, 2):
                    o(f"ds_read_b64_tr_b16 {vr(b+8+4*p,2)}, v{wa} offset:{so + p*4096 + ks*2048}")
                    o(f"ds_read_b64_tr_b16 {vr(b+10+4*p,2)}, v{wa} offset:{so + p*4096 + ks*2048 + 256}")
                if ks == 0 and 1 <= n <= 4:
                    if path == "B":
                        o("s_cmp_eq_u32 s3, 7")
                        o(f"s_cbranch_scc1 K1_B_ND{n}")
                    dma(n + 3)
                    if path == "B": o.lab(f"K1_B_ND{n}")
            for ks in range(2):
                b = FR + 20 * ks
                o(f"s_waitcnt lgkmcnt({8 if ks == 0 else 0})")
                for tt in range(2):
                    x = vr(b + 4 * tt, 4)
                    o(f"v_mfma_f32_16x16x32_bf16 {vr(ACC+4*tt,4)}, {vr(b+8,4)}, {x}, {vr(ACC+4*tt,4)}")
                for tt in range(2):
                    x = vr(b + 4 * tt, 4)
                    o(f"v_mfma_f32_16x16x32_bf16 {vr(ACC+8+4*tt,4)}, {vr(b+12,4)}, {x}, {vr(ACC+8+4*tt,4)}")
                for tt in range(2):
                    x = vr(b + 4 * tt, 4)
                    o(f"v_mfma_f32_16x16x32_bf16 {vr(ACC+16+4*tt,4)}, {x}, {vr(b+16,4)}, {vr(ACC+16+4*tt,4)}")
            if n in fill: fill[n]()

    P = 80
    srd(o, 12, 4, 2048*1024)
    o(f"""
    s_lshr_b32 s55, s3, 1
    s_lshl_b32 s56, s2, 1
    s_add_u32 s56, s56, s55         ; ch
    s_and_b32 s57, s3, 1            ; n half
    s_lshl_b32 s58, s56, 8
    s_lshl_b32 s59, s57, 7
    s_add_u32 s58, s58, s59
    v_lshl_add_u32 v10, v0, 1, s58
    s_lshl_b32 s59, s56, 1
    v_mov_b32 v11, s59
    global_load_ushort v{P+6}, v11, s[44:45]
    global_load_ushort v{P}, v10, s[32:33]
    global_load_ushort v{P+1}, v10, s[34:35]
    global_load_ushort v{P+2}, v10, s[36:37]
    global_load_ushort v{P+3}, v10, s[38:39]
    global_load_ushort v{P+4}, v10, s[40:41]
    global_load_ushort v{P+5}, v10, s[42:43]
    v_lshrrev_b32 v10, 3, v0
    v_lshrrev_b32 v11, 4, v0
    v_and_b32 v76, 7, v0
    v_xor_b32 v76, v76, v11
    v_lshlrev_b32 v76, 4, v76
    v_lshl_add_u32 v76, v10, 10, v76
    v_xor_b32 v77, 64, v76
    s_lshl_b32 s50, s26, 7
    s_lshl_b32 s51, s3, 5
    s_add_u32 s50, s50, s51
    s_lshl_b32 s50, s50, 10
    s_mov_b32 s51, 8192
    s_mov_b32 s52, 128
    s_lshl_b32 s53, s3, 12
    """)
    for n in range(4): dma(n)
    T = 88
    C = 92
    Z1, Z8, Z128 = 94, 96, 98
    PT = 100
    X = [104 + 2 * i for i in range(8)]
    Y = [120 + 2 * i for i in range(8)]
    BF, AF, GA = 136, 152, 168
    WA, RA = 78, 79
    def anchor(t, d):
        o(f"""
        v_mul_f32 v{T}, {f2u(float(t)):#x}, v{P}
        v_mul_f32 v{T+1}, {f2u(float(t)):#x}, v{P+1}
        v_exp_f32 v{T}, v{T}
        v_fract_f32 v{T+1}, v{T+1}
        v_cos_f32 v{T+2}, v{T+1}
        v_sin_f32 v{T+3}, v{T+1}
        s_nop 0
        v_mul_f32 v{d}, v{T}, v{T+2}
        v_mul_f32 v{d+1}, v{T}, v{T+3}
        """)
    def cmul(d, x, w):
        assert d != x
        o(f"v_pk_mul_f32 {vr(d,2)}, {vr(x,2)}, {vr(w,2)} op_sel:[0,0] op_sel_hi:[1,0]")
        o(f"v_pk_fma_f32 {vr(d,2)}, {vr(x,2)}, {vr(w,2)}, {vr(d,2)} op_sel:[1,1,0] op_sel_hi:[0,1,1] neg_lo:[1,0,0]")
    tmpi = [0]
    def put(e, x, neg=False):
        t = PT + (tmpi[0] & 3); tmpi[0] += 1
        o(f"v_cvt_pk_bf16_f32 v{t}, v{x}, {'-' if neg else ''}v{x+1}")
        o(f"ds_write_b32 v{WA}, v{t} offset:{e*272}")
    def rfrag(base):
        for s in range(4): o(f"ds_read_b128 {vr(base+4*s,4)}, v{RA} offset:{64*s}")
    def mm(t):
        for s in range(4):
            o(f"v_mfma_f32_16x16x32_bf16 {vr(GA+4*t,4)}, {vr(AF+4*s,4)}, {vr(BF+4*s,4)}, {vr(GA+4*t,4)}")
    o(f"""
    s_mul_i32 s58, s3, 4352
    s_add_u32 s58, s58, {K1_SCR}
    v_lshl_add_u32 v{WA}, v0, 2, s58
    v_mul_u32_u24 v{RA}, 272, v2
    v_lshl_add_u32 v{RA}, v3, 4, v{RA}
    v_add_u32 v{RA}, s58, v{RA}
    """)
    for i in range(12): o(f"v_mov_b32 v{GA+i}, 0")
    o("s_waitcnt vmcnt(16)")
    for r in range(P, P + 7): o(f"v_lshlrev_b32 v{r}, 16, v{r}")
    o(f"""
    v_mul_f32 v{P+6}, {f2u(LOG2E):#x}, v{P+6}
    v_exp_f32 v{P+6}, v{P+6}
    s_nop 0
    v_cvt_pk_bf16_f32 v{P+6}, v{P+6}, v{P+6}
    v_lshlrev_b32 v{P+6}, 16, v{P+6}
    v_mul_f32 v{P}, v{P+6}, v{P}
    v_mul_f32 v{P+1}, v{P+6}, v{P+1}
    v_mul_f32 v{P+2}, v{P+6}, v{P+2}
    v_mul_f32 v{P+3}, v{P+6}, v{P+3}
    v_mul_f32 v{P}, {f2u(LOG2E):#x}, v{P}
    v_mul_f32 v{P+1}, {f2u(1/(2*math.pi)):#x}, v{P+1}
    v_mul_f32 v{C}, v{P+4}, v{P+2}
    v_mul_f32 v{C+1}, v{P+4}, v{P+3}
    v_fma_f32 v{C}, -v{P+5}, v{P+3}, v{C}
    v_fma_f32 v{C+1}, v{P+5}, v{P+2}, v{C+1}
    """)
    anchor(8, Z8)
    def f0():
        o(f"v_mov_b32 v{PT}, 0x3f80")
        o(f"ds_write_b32 v{WA}, v{PT}")
        tmpi[0] = 1
        put(1, Z8, True)
        cur = Z8
        for j in range(2, 16):
            d = X[j & 1]
            cmul(d, cur, Z8); put(j, d, True); cur = d
        rfrag(BF)
        anchor(1, Z1); anchor(128, Z128)
    def f1():
        put(0, C)
        cmul(X[1], C, Z1); put(1, X[1])
        for r in range(2, 8):
            cmul(X[r], X[r-1], Z1); put(r, X[r])
        cmul(Y[0], C, Z128); put(8, Y[0])
        for r in range(1, 8):
            cmul(Y[r], X[r], Z128); put(8 + r, Y[r])
        rfrag(AF)
    def f2():
        mm(0)
        for r in range(4): cmul(X[r], Y[2*r], Z128); put(r, X[r])
        for r in range(4): cmul(X[4+r], X[r], Z128); put(4 + r, X[4+r])
        cmul(Y[0], X[4], Z128); put(8, Y[0]); cmul(Y[1], X[6], Z128); put(9, Y[1])
        for k in range(1, 4):
            cmul(Y[2*k], Y[2*k-2], Z128); put(8 + 2*k, Y[2*k])
            cmul(Y[2*k+1], Y[2*k-1], Z128); put(9 + 2*k, Y[2*k+1])
        rfrag(AF)
    def f3():
        mm(1)
        cmul(X[0], Y[6], Z128); put(0, X[0])
        for r in range(1, 8): cmul(X[r], X[r-1], Z128); put(r, X[r])
        cmul(Y[0], X[7], Z128); put(8, Y[0])
        rfrag(AF)
    def f4():
        mm(2)
        o(f"""
        v_lshl_add_u32 v{T}, v0, 4, s58
        s_cmp_eq_u32 s57, 0
        s_cbranch_scc1 K1_A_F4
        s_nop 7
        ds_write_b128 v{T}, {vr(GA,4)}
        ds_write_b128 v{T}, {vr(GA+4,4)} offset:1024
        ds_write_b128 v{T}, {vr(GA+8,4)} offset:2048
        """)
        o.lab("K1_A_F4")
    def f5():
        o(f"""
        s_cmp_lg_u32 s57, 0
        s_cbranch_scc1 K1_A_F5
        ds_read_b128 {vr(X[0],4)}, v{T} offset:4352
        ds_read_b128 {vr(X[0]+4,4)}, v{T} offset:{4352+1024}
        ds_read_b128 {vr(X[0]+8,4)}, v{T} offset:{4352+2048}
        v_lshrrev_b32 v{Y[0]}, 1, v3
        v_lshlrev_b32 v{Y[0]}, 8, v{Y[0]}
        v_lshl_add_u32 v{Y[0]}, v2, 4, v{Y[0]}
        v_and_b32 v{Y[0]+1}, 1, v3
        v_lshl_add_u32 v{Y[0]}, v{Y[0]+1}, 3, v{Y[0]}
        v_cmp_gt_u32 s[60:61], 2, v3
        v_lshlrev_b32 v{Y[1]}, 2, v2
        v_lshlrev_b32 v{Y[1]+1}, 3, v2
        v_cndmask_b32 v{Y[1]}, v{Y[1]}, v{Y[1]+1}, s[60:61]
        v_lshl_add_u32 v{Y[1]}, v3, 7, v{Y[1]}
        v_mov_b32 v{Y[1]+1}, 64
        v_cndmask_b32 v{Y[1]+1}, v{Y[1]+1}, 4, s[60:61]
        v_add_u32 v{Y[1]+1}, v{Y[1]}, v{Y[1]+1}
        v_lshlrev_b32 v{Y[2]}, 7, v3
        v_lshl_add_u32 v{Y[2]}, v2, 1, v{Y[2]}
        s_mul_i32 s59, s56, {GC_SZ}
        s_add_u32 s59, s59, {GC_OFF:#x}
        s_waitcnt lgkmcnt(0)
        """)
        for i in range(12): o(f"v_add_f32 v{GA+i}, v{GA+i}, v{X[0]+i}")
        g = Y[4]
        for i in range(6): o(f"v_cvt_pk_bf16_f32 v{g+i}, v{GA+2*i}, v{GA+2*i+1}")
        o.lab("K1_A_F5")
    def f7():
        g = Y[4]
        o(f"""
        s_cmp_lg_u32 s57, 0
        s_cbranch_scc1 K1_A_F7
        buffer_store_dwordx2 {vr(g,2)}, v{Y[0]}, s[20:23], s59 offen
        buffer_store_dword v{g+2}, v{Y[1]}, s[20:23], s59 offen offset:512
        buffer_store_dword v{g+3}, v{Y[1]+1}, s[20:23], s59 offen offset:512
        buffer_store_short v{g+4}, v{Y[2]}, s[20:23], s59 offen offset:1024
        buffer_store_short_d16_hi v{g+4}, v{Y[2]}, s[20:23], s59 offen offset:1056
        buffer_store_short v{g+5}, v{Y[2]}, s[20:23], s59 offen offset:1088
        buffer_store_short_d16_hi v{g+5}, v{Y[2]}, s[20:23], s59 offen offset:1120
        """)
        o.lab("K1_A_F7")
    gemm("A", {0: f0, 1: f1, 2: f2, 3: f3, 4: f4, 5: f5, 7: f7})
    o("s_branch K1_EPI")

    o.lab("K1_B")
    srd(o, 12, 6, 512*3072)
    o(f"""
    s_sub_u32 s55, s3, 4            ; w-4
    s_and_b32 s56, s2, 31           ; lb
    s_lshr_b32 s57, s2, 5           ; cb
    s_cmp_eq_u32 s3, 7
    s_cbranch_scc1 K1_B7
    v_lshrrev_b32 v10, 2, v0
    v_mul_u32_u24 v10, 3072, v10
    v_lshrrev_b32 v11, 5, v0
    v_lshlrev_b32 v11, 1, v11
    v_and_b32 v76, 3, v0
    v_xor_b32 v76, v76, v11
    v_lshl_add_u32 v76, v76, 4, v10
    v_mov_b32 v77, v76
    s_lshl_b32 s50, s55, 10
    s_lshl_b32 s51, s27, 6
    s_add_u32 s50, s50, s51
    s_mov_b32 s51, {16*3072}
    s_mov_b32 s52, {64*3072}
    s_lshl_b32 s53, s55, 12
    s_add_u32 s53, s53, 16384
    """)
    for n in range(4): dma(n)
    o("s_branch K1_BG")
    o.lab("K1_B7")
    srd(o, 16, 10, 2048*1024)
    o(f"""
    v_lshrrev_b32 v10, 3, v0
    v_sub_u32 v10, 7, v10
    v_lshlrev_b32 v10, 10, v10
    v_and_b32 v11, 7, v0
    v_lshl_add_u32 v10, v11, 4, v10
    s_lshl_b32 s50, s56, 6
    s_add_u32 s50, s50, 56
    s_lshl_b32 s50, s50, 10
    s_lshl_b32 s51, s57, 7
    s_add_u32 s50, s50, s51
    s_mov_b32 m0, {K1_UT}
    """)
    for i in range(8):
        o("s_nop 0")
        o("buffer_load_dwordx4 v10, s[16:19], s50 offen lds")
        o("s_sub_u32 s50, s50, 8192")
        o("s_add_u32 m0, m0, 1024")
    srd(o, 16, 8, 512*1024)
    o(f"""
    v_lshrrev_b32 v10, 3, v0
    v_lshlrev_b32 v10, 10, v10
    v_lshl_add_u32 v10, v11, 4, v10
    s_lshr_b32 s50, s2, 3
    s_lshl_b32 s50, s50, 14
    s_and_b32 s51, s2, 7
    s_lshl_b32 s51, s51, 7
    s_add_u32 s50, s50, s51
    buffer_load_dwordx4 v10, s[16:19], s50 offen lds
    s_add_u32 s50, s50, 8192
    s_add_u32 m0, m0, 1024
    s_nop 0
    buffer_load_dwordx4 v10, s[16:19], s50 offen lds
    """)
    o.lab("K1_BG")
    def g1():
        o(f"""
        v_bfe_u32 v80, v0, 2, 2
        v_lshl_add_u32 v81, v3, 3, v80
        v_lshlrev_b32 v81, 7, v81
        v_and_b32 v82, 3, v0
        v_lshl_add_u32 v81, v82, 3, v81
        s_lshl_b32 s58, s55, 5
        s_add_u32 s58, s58, {K1_UT}
        v_add_u32 v81, s58, v81
        ds_read_b64_tr_b16 v[88:89], v81
        ds_read_b64_tr_b16 v[90:91], v81 offset:512
        ds_read_b64_tr_b16 v[92:93], v81 offset:4096
        ds_read_b64_tr_b16 v[94:95], v81 offset:4608
        v_lshrrev_b32 v83, 5, v0
        v_lshl_add_u32 v83, v83, 2, v80
        v_lshlrev_b32 v83, 7, v83
        v_and_b32 v84, 1, v3
        v_lshl_add_u32 v83, v84, 5, v83
        v_lshl_add_u32 v83, v82, 3, v83
        s_and_b32 s58, s55, 1
        s_lshl_b32 s59, s58, 6
        s_add_u32 s59, s59, {K1_WO}
        v_add_u32 v83, s59, v83
        ds_read_b64_tr_b16 v[96:97], v83
        ds_read_b64_tr_b16 v[98:99], v83 offset:1024
        v_lshlrev_b32 v85, 12, v2
        v_lshl_add_u32 v85, v3, 4, v85
        s_lshl_b32 s59, s57, 6
        s_lshl_b32 s60, s55, 4
        s_add_u32 s59, s59, s60
        s_lshl_b32 s59, s59, 12
        s_add_u32 s59, s59, {UT_OFF + 3968:#x}
        s_lshl_b32 s60, s56, 7
        s_sub_u32 s59, s59, s60
        v_lshlrev_b32 v86, 4, v0
        s_and_b32 s60, s2, 7
        s_lshl_b32 s60, s60, 1
        s_add_u32 s60, s60, s58
        s_lshl_b32 s60, s60, 5
        s_lshr_b32 s61, s2, 3
        s_add_u32 s60, s60, s61
        s_lshl_b32 s60, s60, 10
        s_add_u32 s60, s60, {WOF_OFF:#x}
        """)
    def g7():
        o(f"""
        buffer_store_dwordx4 v[88:91], v85, s[20:23], s59 offen
        buffer_store_dwordx4 v[92:95], v85, s[20:23], s59 offen offset:64
        s_cmp_ge_u32 s55, 2
        s_cbranch_scc1 K1_B_G1
        buffer_store_dwordx4 v[96:99], v86, s[20:23], s60 offen
        """)
        o.lab("K1_B_G1")
    gemm("B", {1: g1, 7: g7})

    o.lab("K1_EPI")
    stamp(o, 3)
    o(f"""
    v_lshrrev_b32 v4, 1, v3
    v_lshlrev_b32 v4, 9, v4
    v_lshl_add_u32 v4, v2, 4, v4
    v_and_b32 v7, 1, v3
    v_lshl_add_u32 v4, v7, 3, v4
    s_lshl_b32 s49, s27, 1
    s_add_u32 s49, s49, s48         ; head
    s_lshl_b32 s49, s49, 6
    s_lshl_b32 s50, s26, 2
    s_add_u32 s49, s49, s50
    s_add_u32 s49, s49, s30
    s_lshl_b32 s50, s49, 11
    s_lshl_b32 s49, s49, 10
    s_add_u32 s50, s50, {KV_OFF:#x}
    s_mov_b32 s51, {f2u(0.25*LOG2E):#x}
    s_nop 1
    """)
    for i in range(8): o(f"v_mul_f32 v{ACC+i}, s51, v{ACC+i}")
    for a in range(6):
        b = ACC + 4 * a
        o(f"v_cvt_pk_bf16_f32 v{FR+2*a}, v{b}, v{b+1}")
        o(f"v_cvt_pk_bf16_f32 v{FR+1+2*a}, v{b+2}, v{b+3}")
    for a, (so, off) in enumerate(((49, 0), (49, 256), (50, 0), (50, 256), (50, 1024), (50, 1280))):
        o(f"buffer_store_dwordx2 {vr(FR+2*a,2)}, v4, s[20:23], s{so} offen offset:{off}{ST1}")
    stamp_out(o, 0)
    o.lab("K1_END0")
    o("s_endpgm")

K2_LDS = 131072 + 26624
K2_EARLY = 6
def k2(o):
    kstart(o, "k2_kernel")
    rstamp(o, 0); stamp(o, 1)
    o(f"""
    s_cmp_ge_u32 s2, 256
    s_cbranch_scc1 K2_END0
    s_load_dwordx2 s[28:29], s[0:1], 112
    s_load_dwordx2 s[4:5], s[0:1], 24
    s_load_dwordx4 s[8:11], s[0:1], 88
    v_lshrrev_b32 v1, 6, v0
    v_and_b32 v0, 63, v0
    s_nop 0
    v_readfirstlane_b32 s3, v1
    v_lshlrev_b32 v1, 4, v0
    s_and_b32 s24, s2, 7
    s_lshr_b32 s25, s2, 3
    s_waitcnt lgkmcnt(0)
    """)
    if FINE: stamp(o, 3)
    srd(o, 20, 28, WS_USED)
    o("s_cmp_ge_u32 s3, 8")
    o("s_cbranch_scc1 K2_CONV")
    Q, NM, O, SX, SY, KF, V0, V1a, V1b, IDX, AD = 4, 8, 24, 40, 56, 72, 76, 80, 84, 88, 2
    o(f"""
    s_lshl_b32 s26, s24, 2
    s_and_b32 s27, s25, 3
    s_add_u32 s26, s26, s27         ; head
    s_lshr_b32 s27, s25, 2          ; qb
    s_lshl_b32 s30, s26, 6
    s_lshl_b32 s31, s27, 3
    s_add_u32 s30, s30, s31
    s_add_u32 s30, s30, s3
    s_lshl_b32 s30, s30, 10
    buffer_load_dwordx4 {vr(Q,4)}, v1, s[20:23], s30 offen
    s_lshl_b32 s31, s3, 10
    s_lshl_b32 s30, s26, 17
    s_add_u32 s30, s30, {KV_OFF:#x}
    s_add_u32 s30, s30, s31
    s_mov_b32 m0, s31
    """)
    for i in range(2):
        o("s_nop 0")
        o("buffer_load_dwordx4 v1, s[20:23], s30 offen lds")
        if i < 1:
            o("s_add_u32 s30, s30, 8192")
            o("s_add_u32 m0, m0, 8192")
    if FINE: stamp(o, 4)
    for r in list(range(V0, V0 + 12)): o(f"v_mov_b32 v{r}, 0x3f803f80")
    o(f"v_mov_b32 v{IDX}, 0xdddd")
    o(f"""
    s_mov_b32 s40, 0xffff
    s_mov_b32 s41, 0xffff
    s_mov_b32 s34, 0
    s_waitcnt vmcnt(0)
    """)
    if FINE: stamp(o, 5)
    o("""
    s_barrier
    """)
    stamp(o, 2)
    o(f"""
    ds_read_b128 {vr(KF,4)}, v1
    s_waitcnt lgkmcnt(0)
    v_mfma_f32_32x32x16_bf16 {vr(SX,16)}, {vr(KF,4)}, {vr(Q,4)}, 0
    s_nop 15
    """)
    def maxred(src, dst):
        o(f"v_max3_f32 v{dst}, v{src}, v{src+1}, v{src+2}")
        for i in range(3, 15, 2): o(f"v_max3_f32 v{dst}, v{dst}, v{src+i}, v{src+i+1}")
        o(f"v_max_f32 v{dst}, v{dst}, v{src+15}")
    maxred(SX, 3)
    o.lab("K2_PASS")
    o(f"""
    v_mov_b32 v{AD}, v3
    s_nop 1
    v_permlane32_swap_b32 v3, v{AD}
    s_nop 1
    v_max_f32 v3, v3, v{AD}
    v_mov_b32 v{AD}, v1
    ds_read_b128 {vr(KF,4)}, v1
    """)
    for i in range(16): o(f"v_sub_f32 v{NM+i}, 0, v3")
    for i in range(16): o(f"v_mov_b32 v{O+i}, 0")
    for i in range(8, 16): o(f"v_mov_b32 v{SY+i}, 0")
    o(f"""
    s_waitcnt lgkmcnt(0)
    v_mfma_f32_32x32x16_bf16 {vr(SX,16)}, {vr(KF,4)}, {vr(Q,4)}, {vr(NM,16)}
    ds_read_b128 {vr(KF,4)}, v1 offset:2048
    s_mov_b64 exec, s[40:41]
    ds_read_b128 {vr(V0,4)}, v1 offset:1024
    ds_read_b128 {vr(V1a,4)}, v1 offset:1280
    s_mov_b64 exec, -1
    s_mov_b32 s32, 0                ; iteration
    s_cmp_eq_u32 s34, 0
    s_cselect_b32 s33, 1, 16        ; limit
    s_nop 7
    """)
    o.raw(".p2align 6")
    o.lab("K2_LOOP")
    for u in range(4):
        X, Y = (SX, SY) if u % 2 == 0 else (SY, SX)
        Vcur, Vprev = (V1a, V1b) if u % 2 == 0 else (V1b, V1a)
        ex = lambda a, b: [o(f"v_exp_f32 v{X+i}, v{X+i}") for i in range(a, b)]
        ex(0, 3)
        o("s_waitcnt lgkmcnt(2)")
        o(f"v_smfmac_f32_32x32x32_bf16 {vr(O,16)}, {vr(Vprev,4)}, {vr(Y+8,8)}, v{IDX}")
        ex(3, 8)
        o(f"v_mfma_f32_32x32x16_bf16 {vr(Y,16)}, {vr(KF,4)}, {vr(Q,4)}, {vr(NM,16)}")
        o(f"ds_read_b128 {vr(KF,4)}, v{AD} offset:{(u+2)*2048}")
        ex(8, 13)
        o("s_waitcnt lgkmcnt(2)")
        o(f"v_smfmac_f32_32x32x32_bf16 {vr(O,16)}, {vr(V0,4)}, {vr(X,8)}, v{IDX}")
        o("s_mov_b64 exec, s[40:41]")
        o(f"ds_read_b128 {vr(V0,4)}, v{AD} offset:{(u+1)*2048+1024}")
        o(f"ds_read_b128 {vr(Vprev,4)}, v{AD} offset:{(u+1)*2048+1280}")
        o("s_mov_b64 exec, -1")
        if u == 3:
            o(f"v_add_u32 v{AD}, 8192, v{AD}")
            o("s_add_u32 s32, s32, 1")
            o("s_cmp_lt_u32 s32, s33")
        ex(13, 16)
    o(f"""
    s_cbranch_scc1 K2_LOOP
    s_cmp_ge_u32 s32, 16
    s_cbranch_scc1 K2_FIN
    s_cmp_eq_u32 s32, 1
    s_cbranch_scc0 K2_ST3
    s_barrier
    """)
    if not FINE: stamp(o, 3)
    o(f"""
    s_mov_b32 s33, 5
    s_branch K2_LOOP
    """)
    o.lab("K2_ST3")
    o(f"""
    s_barrier
    """)
    if not FINE: stamp(o, 4)
    o(f"""
    s_mov_b32 s33, 16
    s_branch K2_LOOP
    """)
    o.lab("K2_FIN")
    if not FINE: stamp(o, 5)
    o(f"""
    s_waitcnt lgkmcnt(0)
    v_smfmac_f32_32x32x32_bf16 {vr(O,16)}, {vr(V1b,4)}, {vr(SY+8,8)}, v{IDX}
    s_nop 15
    v_mul_f32 v3, 0, v{O+8}
    """)
    for i in range(8): o(f"v_fma_f32 v3, v{O+i}, 0, v3")
    o(f"""
    s_cmp_lg_u32 s34, 0
    s_cbranch_scc1 K2_OUT
    v_cmp_u_f32 vcc, v3, v3
    s_nop 1
    s_cbranch_vccz K2_OUT
    s_mov_b32 s34, 1
    s_mov_b32 s32, 0
    v_mov_b32 v{AD}, v1
    v_mov_b32 v3, 0xff800000
    """)
    o.lab("K2_MAXL")
    o(f"""
    ds_read_b128 {vr(KF,4)}, v{AD}
    v_add_u32 v{AD}, 2048, v{AD}
    s_waitcnt lgkmcnt(0)
    v_mfma_f32_32x32x16_bf16 {vr(SX,16)}, {vr(KF,4)}, {vr(Q,4)}, 0
    s_nop 15
    """)
    for i in range(0, 16, 2): o(f"v_max3_f32 v3, v3, v{SX+i}, v{SX+i+1}")
    o(f"""
    s_add_u32 s32, s32, 1
    s_cmp_lt_u32 s32, 64
    s_cbranch_scc1 K2_MAXL
    """)
    for r in list(range(V0, V0 + 12)): o(f"v_mov_b32 v{r}, 0x3f803f80")
    o("s_branch K2_PASS")
    o.lab("K2_OUT")
    o(f"""
    v_rcp_f32 v3, v{O+8}
    s_lshl_b32 s30, s27, 3
    s_add_u32 s30, s30, s3
    s_lshl_b32 s30, s30, 5
    s_add_u32 s30, s30, s26
    s_lshl_b32 s30, s30, 10
    s_add_u32 s30, s30, {OF_OFF:#x}
    """)
    for i in range(8): o(f"v_mul_f32 v{O+i}, v{O+i}, v3")
    for i in range(4): o(f"v_cvt_pk_bf16_f32 v{SX+i}, v{O+2*i}, v{O+2*i+1}")
    o(f"buffer_store_dwordx4 {vr(SX,4)}, v1, s[20:23], s30 offen")
    stamp_out(o, 1)
    o("s_endpgm")

    CHL = 131072
    L_E, L_C1, L_UT, L_U1 = 4160, 8320, 16640, 4608
    o.lab("K2_CONV")
    srd(o, 16, 10, 2048*2048)
    o(f"""
    s_sub_u32 s3, s3, 8             ; w'
    s_lshl_b32 s26, s24, 2
    s_and_b32 s27, s25, 3
    s_add_u32 s26, s26, s27         ; head
    s_lshl_b32 s31, s3, 10
    s_lshl_b32 s30, s26, 17
    s_add_u32 s30, s30, {KV_OFF + 16384:#x}
    s_add_u32 s30, s30, s31
    s_add_u32 m0, s31, 16384
    """)
    def kvdma(n):
        for i in range(n):
            o("s_nop 0")
            o("buffer_load_dwordx4 v1, s[20:23], s30 offen lds")
            o("s_add_u32 s30, s30, 4096")
            o("s_add_u32 m0, m0, 4096")
    kvdma(8)
    o(f"""
    s_lshl_b32 s26, s24, 5
    s_add_u32 s26, s26, s25
    s_lshl_b32 s32, s26, 2
    s_lshr_b32 s33, s3, 1           ; ch'
    s_and_b32 s34, s3, 1
    s_lshl_b32 s35, s26, 1
    s_add_u32 s35, s35, s33
    s_mul_i32 s35, s35, {GC_SZ}
    s_add_u32 s35, s35, {GC_OFF:#x}
    v_lshlrev_b32 v5, 3, v0
    v_lshlrev_b32 v6, 2, v0
    v_mov_b32 v7, 0
    v_mov_b32 v8, s32
    s_barrier
    buffer_load_dwordx2 v[50:51], v5, s[20:23], s35 offen
    buffer_load_dword v52, v5, s[20:23], s35 offen offset:8
    buffer_load_dwordx2 v[54:55], v6, s[20:23], s35 offen offset:512
    buffer_load_dwordx2 v[56:57], v6, s[20:23], s35 offen offset:768
    buffer_load_dwordx2 v[58:59], v6, s[20:23], s35 offen offset:1024
    buffer_load_ushort v60, v7, s[20:23], s35 offen
    global_load_dword v16, v8, s[8:9]
    """)
    kvdma(K2_EARLY)
    o(f"""
    s_waitcnt vmcnt({7 + K2_EARLY})
    s_barrier
    s_mov_b32 s38, m0
    s_lshl_b32 s36, s26, 13
    s_add_u32 s36, s36, {UT_OFF:#x}
    s_add_u32 s36, s36, s31
    s_add_u32 m0, s31, {CHL + L_UT}
    s_nop 0
    buffer_load_dwordx4 v1, s[20:23], s36 offen lds
    s_add_u32 s36, s36, 4096
    s_add_u32 m0, m0, {L_U1}
    s_nop 0
    buffer_load_dwordx4 v1, s[20:23], s36 offen lds
    s_mov_b32 m0, s38
    """)
    kvdma(20 - K2_EARLY)
    o(f"""
    v_and_b32 v2, 15, v0
    v_lshrrev_b32 v3, 4, v0
    s_sub_u32 s27, 7, s3            ; iH
    v_lshlrev_b32 v4, 2, v3
    v_lshl_add_u32 v4, v2, 4, v4    ; 16a+4g
    v_lshlrev_b32 v9, 1, v4
    v_sub_u32 v9, {CHL + L_UT + 4088}, v9
    v_lshlrev_b32 v4, 11, v4        ; *2048 (out)
    ; A addresses
    v_and_b32 v10, 1, v2
    v_mul_u32_u24 v17, {L_E}, v10
    v_add_u32 v11, v2, v10
    v_lshl_add_u32 v17, v11, 1, v17
    v_lshl_add_u32 v17, v3, 4, v17
    v_add_u32 v17, {CHL}, v17       ; A ch0
    v_add_u32 v18, {L_C1}, v17      ; A ch1
    v_lshlrev_b32 v10, 5, v2
    v_lshlrev_b32 v11, 4, v3
    v_sub_u32 v11, v11, v10
    v_add_u32 v11, {CHL + L_UT + 4064}, v11
    s_lshl_b32 s35, s27, 9
    s_lshl_b32 s36, s3, 9
    v_subrev_u32 v19, s35, v11      ; B H
    v_subrev_u32 v20, s36, v11      ; B L
    v_subrev_u32 v21, s35, v9       ; skip H
    v_subrev_u32 v22, s36, v9       ; skip L
    s_mul_i32 s38, s33, {L_C1}
    s_xor_b32 s39, s34, 1
    s_mul_i32 s39, s39, {L_E}
    s_add_u32 s38, s38, s39
    s_add_u32 s38, s38, {CHL}
    v_add_u32 v5, s38, v5           ; +8t
    v_lshl_add_u32 v6, v0, 4, s38   ; +16t
    v_lshl_add_u32 v7, v0, 5, s38   ; +32t
    v_lshl_add_u32 v8, v0, 2, s38   ; +4t
    s_mul_i32 s39, s33, {L_U1}
    s_add_u32 s39, s39, {CHL + L_UT + 4096}
    v_lshl_add_u32 v10, v0, 3, s39
    s_mov_b32 s40, 0x01000100
    s_mov_b32 s41, 0x03020302
    v_mov_b32 v92, 0
    v_mov_b32 v93, 0
    v_cmp_eq_u32 s[42:43], 7, v0
    s_waitcnt vmcnt({22 - K2_EARLY + K2_EARLY})
    s_cmp_eq_u32 s34, 0
    s_cbranch_scc0 K2_XO
    v_perm_b32 v64, v54, v54, s40
    v_alignbit_b32 v65, v55, v54, 16
    v_perm_b32 v68, v56, v56, s40
    v_mov_b32 v69, v56
    v_perm_b32 v70, v56, v56, s41
    v_perm_b32 v71, v57, v57, s40
    v_perm_b32 v76, v58, v58, s40
    v_mov_b32 v77, v76
    v_mov_b32 v78, v58
    v_perm_b32 v79, v58, v58, s41
    v_mov_b32 v80, v79
    v_mov_b32 v81, v79
    v_perm_b32 v82, v59, v59, s40
    v_mov_b32 v83, v82
    v_mov_b32 v60, 0
    ds_write_b64 v10, v[92:93]
    s_branch K2_XW
    """)
    o.lab("K2_XO")
    o(f"""
    v_alignbit_b32 v50, v51, v50, 16
    v_alignbit_b32 v51, v52, v51, 16
    v_mov_b32 v64, v54
    v_perm_b32 v65, v55, v55, s40
    v_perm_b32 v68, v56, v56, s40
    v_perm_b32 v69, v56, v56, s41
    v_alignbit_b32 v70, v57, v56, 16
    v_perm_b32 v71, v57, v57, s40
    v_perm_b32 v76, v58, v58, s40
    v_mov_b32 v77, v76
    v_perm_b32 v78, v58, v58, s41
    v_mov_b32 v79, v78
    v_mov_b32 v80, v78
    v_alignbit_b32 v81, v59, v58, 16
    v_perm_b32 v82, v59, v59, s40
    v_mov_b32 v83, v82
    v_lshlrev_b32 v60, 16, v60
    v_cndmask_b32 v60, 0, v60, s[42:43]
    """)
    o.lab("K2_XW")
    o(f"""
    ds_write_b64 v5, v[50:51] offset:32
    ds_write_b64 v5, v[64:65] offset:544
    ds_write_b128 v6, v[68:71] offset:1056
    ds_write_b128 v7, v[76:79] offset:2080
    ds_write_b128 v7, v[80:83] offset:2096
    s_mov_b64 exec, 0xff
    ds_write_b32 v8, v60
    s_mov_b64 exec, -1
    """)
    CA = 24
    for i in range(16): o(f"v_mov_b32 v{CA+i}, 0")
    FB = 40
    def creads(st, both):
        b = FB + (st & 1) * 24
        k = st % 8 if st < 8 else 8
        return b
    def issue(buf, k, both):
        b = FB + buf * 24
        o(f"ds_read2_b32 {vr(b,2)}, v17 offset0:{16*k} offset1:{16*k+1}")
        o(f"ds_read2_b32 {vr(b+2,2)}, v17 offset0:{16*k+2} offset1:{16*k+3}")
        o(f"ds_read2_b32 {vr(b+4,2)}, v18 offset0:{16*k} offset1:{16*k+1}")
        o(f"ds_read2_b32 {vr(b+6,2)}, v18 offset0:{16*k+2} offset1:{16*k+3}")
        o(f"ds_read_b128 {vr(b+8,4)}, v19 offset:{64*k}")
        o(f"ds_read_b128 {vr(b+12,4)}, v19 offset:{64*k+L_U1}")
        if both:
            o(f"ds_read_b128 {vr(b+16,4)}, v20 offset:{64*k}")
            o(f"ds_read_b128 {vr(b+20,4)}, v20 offset:{64*k+L_U1}")
    def cloop(lab, both):
        o.lab(lab)
        for k in range(8):
            issue((k + 1) & 1, k + 1, both)
            o(f"s_waitcnt lgkmcnt({8 if both else 6})")
            b = FB + (k & 1) * 24
            o(f"v_mfma_f32_16x16x32_bf16 {vr(CA,4)}, {vr(b,4)}, {vr(b+8,4)}, {vr(CA,4)}")
            o(f"v_mfma_f32_16x16x32_bf16 {vr(CA+4,4)}, {vr(b+4,4)}, {vr(b+12,4)}, {vr(CA+4,4)}")
            if both:
                o(f"v_mfma_f32_16x16x32_bf16 {vr(CA+8,4)}, {vr(b,4)}, {vr(b+16,4)}, {vr(CA+8,4)}")
                o(f"v_mfma_f32_16x16x32_bf16 {vr(CA+12,4)}, {vr(b+4,4)}, {vr(b+20,4)}, {vr(CA+12,4)}")
        for r in (17, 18, 19, 20): o(f"v_add_u32 v{r}, 512, v{r}")
        o("s_add_u32 s37, s37, 1")
    o(f"""
    s_waitcnt vmcnt(0) lgkmcnt(0)
    s_barrier
    s_mov_b32 s37, 0
    """)
    stamp(o, 2)
    issue(0, 0, True)
    cloop("K2_CA", True)
    o("s_cmp_le_u32 s37, s3")
    o("s_cbranch_scc1 K2_CA")
    cloop("K2_CB", False)
    o("s_cmp_le_u32 s37, s27")
    o("s_cbranch_scc1 K2_CB")
    stamp(o, 3)
    o(f"""
    ds_read_b64 v[8:9], v21
    ds_read_b64 v[10:11], v21 offset:{L_U1}
    ds_read_b64 v[12:13], v22
    ds_read_b64 v[14:15], v22 offset:{L_U1}
    v_lshlrev_b32 v6, 16, v16       ; D0
    v_and_b32 v7, 0xffff0000, v16   ; D1
    s_lshl_b32 s33, s27, 19
    s_add_u32 s33, s33, s32
    s_add_u32 s33, s33, 1024
    s_lshl_b32 s34, s3, 19
    s_add_u32 s34, s34, s32
    s_add_u32 s34, s34, 1024
    s_add_u32 s35, s33, 4096
    s_add_u32 s36, s34, 4096
    s_waitcnt lgkmcnt(0)
    """)
    for blk in range(2):
        for r in range(4):
            y0, y1 = CA + 8 * blk + r, CA + 8 * blk + 4 + r
            for c, y, dd in ((0, y0, 6), (1, y1, 7)):
                src = 8 + 4 * blk + 2 * c + (1 - (r >> 1))
                if r & 1: o(f"v_lshlrev_b32 v{40+c}, 16, v{src}")
                else:     o(f"v_and_b32 v{40+c}, 0xffff0000, v{src}")
                o(f"v_fma_f32 v{y}, v{40+c}, v{dd}, v{y}")
            o(f"v_cvt_pk_bf16_f32 v{44+4*blk+r}, v{y0}, v{y1}")
            so = (33, 35)[r >> 1] + blk
            o(f"buffer_store_dword v{44+4*blk+r}, v4, s[16:19], s{so} offen offset:{2048*(r&1)}")
    stamp_out(o, 1, wadd=8)
    o.lab("K2_END0")
    o("s_endpgm")

K3_LDS = 49152
def k3(o):
    kstart(o, "k3_kernel")
    rstamp(o, 0); stamp(o, 1)
    o(f"""
    s_cmp_ge_u32 s2, 256
    s_cbranch_scc1 K3_END0
    s_load_dwordx2 s[28:29], s[0:1], 112
    s_load_dwordx2 s[10:11], s[0:1], 96
    v_lshrrev_b32 v1, 6, v0
    v_and_b32 v0, 63, v0
    s_nop 0
    v_readfirstlane_b32 s3, v1
    v_lshlrev_b32 v1, 4, v0
    s_and_b32 s24, s2, 7
    s_lshr_b32 s25, s2, 3
    s_lshl_b32 s26, s24, 2
    s_and_b32 s27, s25, 3
    s_add_u32 s26, s26, s27         ; tb
    s_lshr_b32 s27, s25, 2          ; nb
    s_and_b32 s30, s3, 1
    s_lshr_b32 s31, s3, 1
    s_lshl_b32 s32, s26, 1
    s_add_u32 s32, s32, s30
    s_xor_b32 s33, s32, 1
    s_lshl_b32 s34, s27, 1
    s_add_u32 s34, s34, s31
    s_xor_b32 s35, s34, 1
    s_lshl_b32 s36, s3, 13          ; w*8 heads*1024
    s_lshl_b32 s40, s34, 15
    s_lshl_b32 s41, s35, 15
    s_lshl_b32 s42, s32, 15
    s_lshl_b32 s43, s33, 15
    s_add_u32 s36, s36, {OF_OFF:#x}
    s_add_u32 s42, s42, s36
    s_add_u32 s43, s43, s36
    s_add_u32 s36, s36, {WOF_OFF-OF_OFF:#x}
    s_add_u32 s40, s40, s36
    s_add_u32 s41, s41, s36
    s_add_u32 s44, s40, 4096
    s_add_u32 s45, s41, 4096
    s_add_u32 s46, s42, 4096
    s_add_u32 s47, s43, 4096
    s_waitcnt lgkmcnt(0)
    """)
    srd(o, 20, 28, WS_USED)
    srd(o, 16, 10, 2048*2048)
    FR = 68
    for h in range(8):
        for k in range(4):
            o(f"buffer_load_dwordx4 {vr(FR+16*h+4*k,4)}, v1, s[20:23], s{40+k+(4 if h>=4 else 0)} offen offset:{1024*(h&3)}")
    AC = 4
    for h in range(8):
        o(f"s_waitcnt vmcnt({28-4*h})")
        if h == 0: stamp(o, 2)
        b = FR + 16 * h
        for k in range(4):
            ka, kb = k >> 1, k & 1
            c = vr(AC + 16 * k, 16)
            o(f"v_mfma_f32_32x32x16_bf16 {c}, {vr(b+4*ka,4)}, {vr(b+8+4*kb,4)}, {c if h else 0}")
    stamp(o, 3)
    o("s_nop 7")
    for k in range(1, 4):
        o(f"s_xor_b32 s36, s3, {k}")
        o(f"s_mul_i32 s36, s36, 12288")
        o(f"v_add_u32 v{2 + (k & 1)}, s36, v1")
        if k == 1: o("s_nop 7")
        for q in range(4):
            o(f"ds_write_b128 v{2 + (k & 1)}, {vr(AC+16*k+4*q,4)} offset:{(k-1)*4096 + q*1024}")
    o(f"""
    s_mul_i32 s36, s3, 12288
    v_add_u32 v2, s36, v1
    s_waitcnt lgkmcnt(0)
    s_barrier
    """)
    for k in range(3):
        for q in range(4):
            o(f"ds_read_b128 {vr(FR+16*k+4*q,4)}, v2 offset:{k*4096 + q*1024}")
    o(f"""
    v_and_b32 v2, 31, v0
    v_lshlrev_b32 v2, 11, v2
    v_lshrrev_b32 v3, 5, v0
    v_lshl_add_u32 v2, v3, 4, v2
    s_lshl_b32 s36, s32, 16
    s_lshl_b32 s37, s34, 6
    s_add_u32 s36, s36, s37
    """)
    for k in range(3):
        o(f"s_waitcnt lgkmcnt({8-4*k})")
        for i in range(16): o(f"v_add_f32 v{AC+i}, v{AC+i}, v{FR+16*k+i}")
    for i in range(8): o(f"v_cvt_pk_bf16_f32 v{24+i}, v{AC+2*i}, v{AC+2*i+1}")
    o(f"""
    s_nop 1
    v_permlane32_swap_b32 v24, v26
    v_permlane32_swap_b32 v25, v27
    v_permlane32_swap_b32 v28, v30
    v_permlane32_swap_b32 v29, v31
    s_nop 1
    buffer_store_dwordx4 v[24:27], v2, s[16:19], s36 offen
    buffer_store_dwordx4 v[28:31], v2, s[16:19], s36 offen offset:32
    """)
    stamp_out(o, 2)
    o.lab("K3_END0")
    o("s_endpgm")

def main(out):
    hdr = open(f"cdna_kernels/{NAME}.s.ref").read().split("; Override launch")[0]
    o = A()
    o.raw(hdr.rstrip())
    o.raw(f"; @launch kernel=k1_kernel grid=(256,1,1) block=(512,1,1) lds={K1_LDS}")
    o.raw(f"; @launch kernel=k2_kernel grid=(256,1,1) block=(768,1,1) lds={K2_LDS}")
    o.raw(f"; @launch kernel=k3_kernel grid=(256,1,1) block=(256,1,1) lds={K3_LDS}")
    o.raw('.amdgcn_target "amdgcn-amd-amdhsa--gfx950"\n.text')
    k1(o); k2(o); k3(o)
    o.raw('.section .rodata,"a"')
    o.raw(kdesc("k1_kernel", 180))
    o.raw(kdesc("k2_kernel", 96))
    o.raw(kdesc("k3_kernel", 196))
    open(out, "w").write(o.text())

if __name__ == "__main__":
    if "--stamp" in sys.argv:
        STAMP = True; sys.argv.remove("--stamp")
    if "--fine" in sys.argv:
        FINE = True; sys.argv.remove("--fine")
    main(sys.argv[1] if len(sys.argv) > 1 else f"cdna_kernels/{NAME}.s")
```

```python
import sys, math, struct

NAME = "concat_heads__softmax_full_mha__ssm_conv_s4__prompt"

QF_OFF  = 0
KV_OFF  = 2 << 20
OF_OFF  = 6 << 20
WOF_OFF = 8 << 20
UT_OFF  = 9 << 20
GC_OFF  = 11 << 20
GC_SZ   = 1536
ST1 = ""
WS_USED = 32 << 20

def f2u(x): return struct.unpack('<I', struct.pack('<f', x))[0]
LOG2E = 1.4426950408889634

class A:
    def __init__(s): s.l = []
    def __call__(s, t):
        for x in t.split("\n"):
            x = x.strip()
            if x: s.l.append("    " + x)
    def lab(s, n): s.l.append(n + ":")
    def raw(s, t): s.l.append(t)
    def text(s): return "\n".join(s.l) + "\n"

def vr(a, n): return f"v[{a}:{a+n-1}]" if n > 1 else f"v{a}"
def sr(a, n): return f"s[{a}:{a+n-1}]" if n > 1 else f"s{a}"

def srd(o, d, b, size, add=0):
    if add:
        o(f"s_add_u32 s{d}, s{b}, {add:#x}")
        o(f"s_addc_u32 s{d+1}, s{b+1}, 0")
    else:
        o(f"s_mov_b32 s{d}, s{b}")
        o(f"s_mov_b32 s{d+1}, s{b+1}")
    o(f"s_mov_b32 s{d+2}, {size:#x}")
    o(f"s_mov_b32 s{d+3}, 0x00020000")

STAMP = False
FINE = False
FINE2 = False
OPT = {}
STFLAG = 'sc1'
ST_OFF = 16 << 20
def stamp(o, i):
    if STAMP: o(f"s_memtime s[{64+2*i}:{65+2*i}]")
def rstamp(o, i):
    if STAMP: o(f"s_memrealtime s[{64+2*i}:{65+2*i}]")
def stamp_out(o, kid, wave_sgpr="s3", wadd=0):
    if not STAMP: return
    o("s_memrealtime s[78:79]")
    o("s_waitcnt lgkmcnt(0)")
    o("s_mov_b64 exec, 1")
    o(f"s_lshl_b32 s80, s2, 4")
    o(f"s_add_u32 s80, s80, {wave_sgpr}")
    o(f"s_add_u32 s80, s80, {kid*8192 + wadd}")
    o(f"s_lshl_b32 s80, s80, 6")
    o(f"s_add_u32 s80, s80, {ST_OFF:#x}")
    o("s_waitcnt vmcnt(0)")
    o("s_memtime s[76:77]")
    o("s_waitcnt lgkmcnt(0)")
    for i in range(16): o(f"v_mov_b32 v{4+i}, s{64+i}")
    o("v_mov_b32 v2, 0")
    for q in range(4): o(f"buffer_store_dwordx4 v[{4+4*q}:{7+4*q}], v2, s[20:23], s80 offen offset:{16*q}")

def kstart(o, name):
    o.raw(f".globl {name}\n.p2align 8\n.type {name},@function")
    o.lab(name)

def kdesc(name, nv, ns=96):
    return f""".p2align 6
.amdhsa_kernel {name}
  .amdhsa_next_free_vgpr {nv}
  .amdhsa_next_free_sgpr {ns}
  .amdhsa_accum_offset {(nv+3)//4*4}
  .amdhsa_group_segment_fixed_size 0
  .amdhsa_kernarg_size 120
  .amdhsa_user_sgpr_count 2
  .amdhsa_user_sgpr_kernarg_segment_ptr 1
  .amdhsa_system_sgpr_workgroup_id_x 1
.end_amdhsa_kernel
"""

STG = 28672
K1_SCR = 4 * STG
K1_UT = K1_SCR + 4 * 4352
K1_WO = K1_UT + 8192
K1_LDS = K1_WO + 2048
def k1(o):
    kstart(o, "k1_kernel")
    rstamp(o, 0); stamp(o, 1)
    o(f"""
    s_cmp_ge_u32 s2, 256
    s_cbranch_scc1 K1_END0
    s_load_dwordx8 s[4:11], s[0:1], 0
    s_load_dwordx2 s[28:29], s[0:1], 112
    s_load_dwordx16 s[32:47], s[0:1], 32
    v_lshrrev_b32 v1, 6, v0
    v_and_b32 v0, 63, v0
    s_nop 0
    v_readfirstlane_b32 s3, v1
    v_and_b32 v2, 15, v0
    v_lshrrev_b32 v3, 4, v0
    s_and_b32 s24, s2, 7
    s_lshr_b32 s25, s2, 3
    s_lshr_b32 s26, s24, 1
    s_lshl_b32 s26, s26, 2
    s_and_b32 s27, s25, 3
    s_add_u32 s26, s26, s27         ; mt (0..15)
    s_and_b32 s27, s24, 1
    s_lshl_b32 s27, s27, 3
    s_lshr_b32 s30, s25, 2
    s_add_u32 s27, s27, s30         ; hp (0..15)
    s_and_b32 s31, s25, 3
    s_lshl_b32 s31, s31, 1
    s_add_u32 s31, s31, s30
    s_and_b32 s31, s31, 7
    """)
    o(f"""
    s_and_b32 s30, s3, 3            ; tg
    s_lshr_b32 s48, s3, 2           ; hh
    v_lshrrev_b32 v10, 1, v2
    v_xor_b32 v10, v10, v3
    v_lshlrev_b32 v10, 4, v10
    v_lshl_add_u32 v4, v2, 7, v10
    s_lshl_b32 s49, s30, 12
    v_add_u32 v4, s49, v4
    v_xor_b32 v5, 64, v4
    v_add_u32 v6, {2*STG}, v4
    v_add_u32 v7, {2*STG}, v5
    v_bfe_u32 v10, v0, 2, 2
    v_lshl_add_u32 v10, v3, 3, v10
    v_lshlrev_b32 v10, 6, v10
    v_and_b32 v11, 1, v3
    v_xor_b32 v11, s48, v11
    v_lshl_add_u32 v10, v11, 5, v10
    v_and_b32 v11, 3, v0
    v_lshl_add_u32 v8, v11, 3, v10
    v_add_u32 v8, 16384, v8
    v_add_u32 v9, {2*STG}, v8
    s_waitcnt lgkmcnt(0)
    """)
    srd(o, 20, 28, WS_USED)
    if OPT.get("K1EXIT"):
        stamp_out(o, 0)
        o("s_endpgm")
    o("v_mov_b32 v76, 0")
    o("v_mov_b32 v77, 0")
    ACC = 12
    FR = 36
    for i in range(24): o(f"v_mov_b32 v{ACC+i}, 0")
    o("s_cmp_ge_u32 s3, 4")
    o("s_cbranch_scc1 K1_B")

    def dma(n):
        o(f"s_add_u32 s54, s31, {n}")
        o("s_and_b32 s54, s54, 7")
        o("s_mul_i32 s54, s54, s52")
        o("s_add_u32 s54, s54, s50")
        o(f"s_add_u32 m0, s53, {(n & 3) * STG}")
        for q in range(4):
            if q:
                o("s_add_u32 s54, s54, s51")
                o("s_add_u32 m0, m0, 1024")
            o("s_nop 0")
            o(f"buffer_load_dwordx4 v{76 + (q & 1)}, s[12:15], s54 offen lds")
    def gemm(path, fill, skipdma=None):
        for n in range(8):
            N = [12, 8, 8, 8, 8, 8, 4, 0][n]
            if path == "B" and n == 1:
                o("s_cmp_lg_u32 s3, 7")
                o("s_cbranch_scc1 K1_B_W1")
                o("s_waitcnt vmcnt(0)")
                o.lab("K1_B_W1")
            if FINE and path == "B" and n == 0: stamp(o, 4)
            o(f"s_waitcnt vmcnt({N}) lgkmcnt(0)")
            if FINE and path == "B" and n == 0: stamp(o, 5)
            o("s_barrier")
            if n == 0: stamp(o, 2)
            if FINE2 and n in (2, 4): stamp(o, 3 + n // 2)
            xa = (4, 5) if (n & 3) < 2 else (6, 7)
            wa = 8 if (n & 3) < 2 else 9
            so = (n & 1) * STG
            for ks in range(2):
                b = FR + 20 * ks
                o(f"ds_read_b128 {vr(b,4)}, v{xa[ks]} offset:{so}")
                o(f"ds_read_b64_tr_b16 {vr(b+8,2)}, v{wa} offset:{so + ks*2048}")
                o(f"ds_read_b64_tr_b16 {vr(b+10,2)}, v{wa} offset:{so + ks*2048 + 256}")
                o(f"ds_read_b128 {vr(b+4,4)}, v{xa[ks]} offset:{so + 2048}")
                for p in (1, 2):
                    o(f"ds_read_b64_tr_b16 {vr(b+8+4*p,2)}, v{wa} offset:{so + p*4096 + ks*2048}")
                    o(f"ds_read_b64_tr_b16 {vr(b+10+4*p,2)}, v{wa} offset:{so + p*4096 + ks*2048 + 256}")
                if ks == 0 and 1 <= n <= 4:
                    if path == "B":
                        o("s_cmp_eq_u32 s3, 7")
                        o(f"s_cbranch_scc1 K1_B_ND{n}")
                    dma(n + 3)
                    if path == "B": o.lab(f"K1_B_ND{n}")
            for ks in range(2):
                b = FR + 20 * ks
                o(f"s_waitcnt lgkmcnt({8 if ks == 0 else 0})")
                for tt in range(2):
                    x = vr(b + 4 * tt, 4)
                    o(f"v_mfma_f32_16x16x32_bf16 {vr(ACC+4*tt,4)}, {vr(b+8,4)}, {x}, {vr(ACC+4*tt,4)}")
                for tt in range(2):
                    x = vr(b + 4 * tt, 4)
                    o(f"v_mfma_f32_16x16x32_bf16 {vr(ACC+8+4*tt,4)}, {vr(b+12,4)}, {x}, {vr(ACC+8+4*tt,4)}")
                for tt in range(2):
                    x = vr(b + 4 * tt, 4)
                    o(f"v_mfma_f32_16x16x32_bf16 {vr(ACC+16+4*tt,4)}, {x}, {vr(b+16,4)}, {vr(ACC+16+4*tt,4)}")
            if n in fill: fill[n]()

    P = 80
    srd(o, 12, 4, 2048*1024)
    o(f"""
    s_lshr_b32 s55, s3, 1
    s_lshl_b32 s56, s2, 1
    s_add_u32 s56, s56, s55         ; ch
    s_and_b32 s57, s3, 1            ; n half
    s_lshl_b32 s58, s56, 8
    s_lshl_b32 s59, s57, 7
    s_add_u32 s58, s58, s59
    v_lshl_add_u32 v10, v0, 1, s58
    s_lshl_b32 s59, s56, 1
    v_mov_b32 v11, s59
    global_load_ushort v{P+6}, v11, s[44:45]
    global_load_ushort v{P}, v10, s[32:33]
    global_load_ushort v{P+1}, v10, s[34:35]
    global_load_ushort v{P+2}, v10, s[36:37]
    global_load_ushort v{P+3}, v10, s[38:39]
    global_load_ushort v{P+4}, v10, s[40:41]
    global_load_ushort v{P+5}, v10, s[42:43]
    v_lshrrev_b32 v10, 3, v0
    v_lshrrev_b32 v11, 4, v0
    v_and_b32 v76, 7, v0
    v_xor_b32 v76, v76, v11
    v_lshlrev_b32 v76, 4, v76
    v_lshl_add_u32 v76, v10, 10, v76
    v_xor_b32 v77, 64, v76
    s_lshl_b32 s50, s26, 7
    s_lshl_b32 s51, s3, 5
    s_add_u32 s50, s50, s51
    s_lshl_b32 s50, s50, 10
    s_mov_b32 s51, 8192
    s_mov_b32 s52, 128
    s_lshl_b32 s53, s3, 12
    """)
    for n in range(4): dma(n)
    T = 88
    C = 92
    Z1, Z8, Z128 = 94, 96, 98
    PT = 100
    X = [104 + 2 * i for i in range(8)]
    Y = [120 + 2 * i for i in range(8)]
    BF, AF, GA = 136, 152, 168
    WA, RA = 78, 79
    def anchor(t, d):
        o(f"""
        v_mul_f32 v{T}, {f2u(float(t)):#x}, v{P}
        v_mul_f32 v{T+1}, {f2u(float(t)):#x}, v{P+1}
        v_exp_f32 v{T}, v{T}
        v_fract_f32 v{T+1}, v{T+1}
        v_cos_f32 v{T+2}, v{T+1}
        v_sin_f32 v{T+3}, v{T+1}
        s_nop 0
        v_mul_f32 v{d}, v{T}, v{T+2}
        v_mul_f32 v{d+1}, v{T}, v{T+3}
        """)
    def cmul(d, x, w):
        assert d != x
        o(f"v_pk_mul_f32 {vr(d,2)}, {vr(x,2)}, {vr(w,2)} op_sel:[0,0] op_sel_hi:[1,0]")
        o(f"v_pk_fma_f32 {vr(d,2)}, {vr(x,2)}, {vr(w,2)}, {vr(d,2)} op_sel:[1,1,0] op_sel_hi:[0,1,1] neg_lo:[1,0,0]")
    tmpi = [0]
    def put(e, x, neg=False):
        t = PT + (tmpi[0] & 3); tmpi[0] += 1
        o(f"v_cvt_pk_bf16_f32 v{t}, v{x}, {'-' if neg else ''}v{x+1}")
        o(f"ds_write_b32 v{WA}, v{t} offset:{e*272}")
    def rfrag(base):
        for s in range(4): o(f"ds_read_b128 {vr(base+4*s,4)}, v{RA} offset:{64*s}")
    def mm(t):
        for s in range(4):
            o(f"v_mfma_f32_16x16x32_bf16 {vr(GA+4*t,4)}, {vr(AF+4*s,4)}, {vr(BF+4*s,4)}, {vr(GA+4*t,4)}")
    o(f"""
    s_mul_i32 s58, s3, 4352
    s_add_u32 s58, s58, {K1_SCR}
    v_lshl_add_u32 v{WA}, v0, 2, s58
    v_mul_u32_u24 v{RA}, 272, v2
    v_lshl_add_u32 v{RA}, v3, 4, v{RA}
    v_add_u32 v{RA}, s58, v{RA}
    """)
    for i in range(12): o(f"v_mov_b32 v{GA+i}, 0")
    if FINE: stamp(o, 4)
    o("s_waitcnt vmcnt(16)")
    if FINE: stamp(o, 5)
    for r in range(P, P + 7): o(f"v_lshlrev_b32 v{r}, 16, v{r}")
    o(f"""
    v_mul_f32 v{P+6}, {f2u(LOG2E):#x}, v{P+6}
    v_exp_f32 v{P+6}, v{P+6}
    s_nop 0
    v_cvt_pk_bf16_f32 v{P+6}, v{P+6}, v{P+6}
    v_lshlrev_b32 v{P+6}, 16, v{P+6}
    v_mul_f32 v{P}, v{P+6}, v{P}
    v_mul_f32 v{P+1}, v{P+6}, v{P+1}
    v_mul_f32 v{P+2}, v{P+6}, v{P+2}
    v_mul_f32 v{P+3}, v{P+6}, v{P+3}
    v_mul_f32 v{P}, {f2u(LOG2E):#x}, v{P}
    v_mul_f32 v{P+1}, {f2u(1/(2*math.pi)):#x}, v{P+1}
    v_mul_f32 v{C}, v{P+4}, v{P+2}
    v_mul_f32 v{C+1}, v{P+4}, v{P+3}
    v_fma_f32 v{C}, -v{P+5}, v{P+3}, v{C}
    v_fma_f32 v{C+1}, v{P+5}, v{P+2}, v{C+1}
    """)
    anchor(8, Z8)
    def f0():
        o(f"v_mov_b32 v{PT}, 0x3f80")
        o(f"ds_write_b32 v{WA}, v{PT}")
        tmpi[0] = 1
        put(1, Z8, True)
        cur = Z8
        for j in range(2, 16):
            d = X[j & 1]
            cmul(d, cur, Z8); put(j, d, True); cur = d
        rfrag(BF)
        anchor(1, Z1); anchor(128, Z128)
    def f1():
        put(0, C)
        cmul(X[1], C, Z1); put(1, X[1])
        for r in range(2, 8):
            cmul(X[r], X[r-1], Z1); put(r, X[r])
        cmul(Y[0], C, Z128); put(8, Y[0])
        for r in range(1, 8):
            cmul(Y[r], X[r], Z128); put(8 + r, Y[r])
        rfrag(AF)
    def f2():
        mm(0)
        for r in range(4): cmul(X[r], Y[2*r], Z128); put(r, X[r])
        for r in range(4): cmul(X[4+r], X[r], Z128); put(4 + r, X[4+r])
        cmul(Y[0], X[4], Z128); put(8, Y[0]); cmul(Y[1], X[6], Z128); put(9, Y[1])
        for k in range(1, 4):
            cmul(Y[2*k], Y[2*k-2], Z128); put(8 + 2*k, Y[2*k])
            cmul(Y[2*k+1], Y[2*k-1], Z128); put(9 + 2*k, Y[2*k+1])
        rfrag(AF)
    def f3():
        mm(1)
        cmul(X[0], Y[6], Z128); put(0, X[0])
        for r in range(1, 8): cmul(X[r], X[r-1], Z128); put(r, X[r])
        cmul(Y[0], X[7], Z128); put(8, Y[0])
        rfrag(AF)
    def f4():
        mm(2)
        o(f"""
        v_lshl_add_u32 v{T}, v0, 4, s58
        s_cmp_eq_u32 s57, 0
        s_cbranch_scc1 K1_A_F4
        s_nop 7
        ds_write_b128 v{T}, {vr(GA,4)}
        ds_write_b128 v{T}, {vr(GA+4,4)} offset:1024
        ds_write_b128 v{T}, {vr(GA+8,4)} offset:2048
        """)
        o.lab("K1_A_F4")
    def f5():
        o(f"""
        s_cmp_lg_u32 s57, 0
        s_cbranch_scc1 K1_A_F5
        ds_read_b128 {vr(X[0],4)}, v{T} offset:4352
        ds_read_b128 {vr(X[0]+4,4)}, v{T} offset:{4352+1024}
        ds_read_b128 {vr(X[0]+8,4)}, v{T} offset:{4352+2048}
        v_lshrrev_b32 v{Y[0]}, 1, v3
        v_lshlrev_b32 v{Y[0]}, 8, v{Y[0]}
        v_lshl_add_u32 v{Y[0]}, v2, 4, v{Y[0]}
        v_and_b32 v{Y[0]+1}, 1, v3
        v_lshl_add_u32 v{Y[0]}, v{Y[0]+1}, 3, v{Y[0]}
        v_cmp_gt_u32 s[60:61], 2, v3
        v_lshlrev_b32 v{Y[1]}, 2, v2
        v_lshlrev_b32 v{Y[1]+1}, 3, v2
        v_cndmask_b32 v{Y[1]}, v{Y[1]}, v{Y[1]+1}, s[60:61]
        v_lshl_add_u32 v{Y[1]}, v3, 7, v{Y[1]}
        v_mov_b32 v{Y[1]+1}, 64
        v_cndmask_b32 v{Y[1]+1}, v{Y[1]+1}, 4, s[60:61]
        v_add_u32 v{Y[1]+1}, v{Y[1]}, v{Y[1]+1}
        v_lshlrev_b32 v{Y[2]}, 7, v3
        v_lshl_add_u32 v{Y[2]}, v2, 1, v{Y[2]}
        s_mul_i32 s59, s56, {GC_SZ}
        s_add_u32 s59, s59, {GC_OFF:#x}
        s_waitcnt lgkmcnt(0)
        """)
        for i in range(12): o(f"v_add_f32 v{GA+i}, v{GA+i}, v{X[0]+i}")
        g = Y[4]
        for i in range(6): o(f"v_cvt_pk_bf16_f32 v{g+i}, v{GA+2*i}, v{GA+2*i+1}")
        o.lab("K1_A_F5")
    def f7():
        g = Y[4]
        o(f"""
        s_cmp_lg_u32 s57, 0
        s_cbranch_scc1 K1_A_F7
        buffer_store_dwordx2 {vr(g,2)}, v{Y[0]}, s[20:23], s59 offen
        buffer_store_dword v{g+2}, v{Y[1]}, s[20:23], s59 offen offset:512
        buffer_store_dword v{g+3}, v{Y[1]+1}, s[20:23], s59 offen offset:512
        buffer_store_short v{g+4}, v{Y[2]}, s[20:23], s59 offen offset:1024
        buffer_store_short_d16_hi v{g+4}, v{Y[2]}, s[20:23], s59 offen offset:1056
        buffer_store_short v{g+5}, v{Y[2]}, s[20:23], s59 offen offset:1088
        buffer_store_short_d16_hi v{g+5}, v{Y[2]}, s[20:23], s59 offen offset:1120
        """)
        o.lab("K1_A_F7")
    gemm("A", {0: f0, 1: f1, 2: f2, 3: f3, 4: f4, 5: f5, 7: f7})
    o("s_branch K1_EPI")

    o.lab("K1_B")
    srd(o, 12, 6, 512*3072)
    o(f"""
    s_sub_u32 s55, s3, 4            ; w-4
    s_and_b32 s56, s2, 31           ; lb
    s_lshr_b32 s57, s2, 5           ; cb
    s_cmp_eq_u32 s3, 7
    s_cbranch_scc1 K1_B7
    v_lshrrev_b32 v10, 2, v0
    v_mul_u32_u24 v10, 3072, v10
    v_lshrrev_b32 v11, 5, v0
    v_lshlrev_b32 v11, 1, v11
    v_and_b32 v76, 3, v0
    v_xor_b32 v76, v76, v11
    v_lshl_add_u32 v76, v76, 4, v10
    v_mov_b32 v77, v76
    s_lshl_b32 s50, s55, 10
    s_lshl_b32 s51, s27, 6
    s_add_u32 s50, s50, s51
    s_mov_b32 s51, {16*3072}
    s_mov_b32 s52, {64*3072}
    s_lshl_b32 s53, s55, 12
    s_add_u32 s53, s53, 16384
    """)
    for n in range(4): dma(n)
    o("s_branch K1_BG")
    o.lab("K1_B7")
    srd(o, 16, 10, 2048*1024)
    o(f"""
    v_lshrrev_b32 v10, 3, v0
    v_sub_u32 v10, 7, v10
    v_lshlrev_b32 v10, 10, v10
    v_and_b32 v11, 7, v0
    v_lshl_add_u32 v10, v11, 4, v10
    s_lshl_b32 s50, s56, 6
    s_add_u32 s50, s50, 56
    s_lshl_b32 s50, s50, 10
    s_lshl_b32 s51, s57, 7
    s_add_u32 s50, s50, s51
    s_mov_b32 m0, {K1_UT}
    """)
    for i in range(8):
        o("s_nop 0")
        o("buffer_load_dwordx4 v10, s[16:19], s50 offen lds")
        o("s_sub_u32 s50, s50, 8192")
        o("s_add_u32 m0, m0, 1024")
    srd(o, 16, 8, 512*1024)
    o(f"""
    v_lshrrev_b32 v10, 3, v0
    v_lshlrev_b32 v10, 10, v10
    v_lshl_add_u32 v10, v11, 4, v10
    s_lshr_b32 s50, s2, 3
    s_lshl_b32 s50, s50, 14
    s_and_b32 s51, s2, 7
    s_lshl_b32 s51, s51, 7
    s_add_u32 s50, s50, s51
    buffer_load_dwordx4 v10, s[16:19], s50 offen lds
    s_add_u32 s50, s50, 8192
    s_add_u32 m0, m0, 1024
    s_nop 0
    buffer_load_dwordx4 v10, s[16:19], s50 offen lds
    """)
    o.lab("K1_BG")
    def g1():
        o(f"""
        v_bfe_u32 v80, v0, 2, 2
        v_lshl_add_u32 v81, v3, 3, v80
        v_lshlrev_b32 v81, 7, v81
        v_and_b32 v82, 3, v0
        v_lshl_add_u32 v81, v82, 3, v81
        s_lshl_b32 s58, s55, 5
        s_add_u32 s58, s58, {K1_UT}
        v_add_u32 v81, s58, v81
        ds_read_b64_tr_b16 v[88:89], v81
        ds_read_b64_tr_b16 v[90:91], v81 offset:512
        ds_read_b64_tr_b16 v[92:93], v81 offset:4096
        ds_read_b64_tr_b16 v[94:95], v81 offset:4608
        v_lshrrev_b32 v83, 5, v0
        v_lshl_add_u32 v83, v83, 2, v80
        v_lshlrev_b32 v83, 7, v83
        v_and_b32 v84, 1, v3
        v_lshl_add_u32 v83, v84, 5, v83
        v_lshl_add_u32 v83, v82, 3, v83
        s_and_b32 s58, s55, 1
        s_lshl_b32 s59, s58, 6
        s_add_u32 s59, s59, {K1_WO}
        v_add_u32 v83, s59, v83
        ds_read_b64_tr_b16 v[96:97], v83
        ds_read_b64_tr_b16 v[98:99], v83 offset:1024
        v_lshlrev_b32 v85, 12, v2
        v_lshl_add_u32 v85, v3, 4, v85
        s_lshl_b32 s59, s57, 6
        s_lshl_b32 s60, s55, 4
        s_add_u32 s59, s59, s60
        s_lshl_b32 s59, s59, 12
        s_add_u32 s59, s59, {UT_OFF + 3968:#x}
        s_lshl_b32 s60, s56, 7
        s_sub_u32 s59, s59, s60
        v_lshlrev_b32 v86, 4, v0
        s_and_b32 s60, s2, 7
        s_lshl_b32 s60, s60, 1
        s_add_u32 s60, s60, s58
        s_lshl_b32 s60, s60, 5
        s_lshr_b32 s61, s2, 3
        s_add_u32 s60, s60, s61
        s_lshl_b32 s60, s60, 10
        s_add_u32 s60, s60, {WOF_OFF:#x}
        """)
    def g7():
        o(f"""
        buffer_store_dwordx4 v[88:91], v85, s[20:23], s59 offen
        buffer_store_dwordx4 v[92:95], v85, s[20:23], s59 offen offset:64
        s_cmp_ge_u32 s55, 2
        s_cbranch_scc1 K1_B_G1
        buffer_store_dwordx4 v[96:99], v86, s[20:23], s60 offen
        """)
        o.lab("K1_B_G1")
    gemm("B", {1: g1, 7: g7})

    o.lab("K1_EPI")
    stamp(o, 3)
    o(f"""
    v_lshrrev_b32 v4, 1, v3
    v_lshlrev_b32 v4, 9, v4
    v_lshl_add_u32 v4, v2, 4, v4
    v_and_b32 v7, 1, v3
    v_lshl_add_u32 v4, v7, 3, v4
    s_lshl_b32 s49, s27, 1
    s_add_u32 s49, s49, s48         ; head
    s_lshl_b32 s49, s49, 6
    s_lshl_b32 s50, s26, 2
    s_add_u32 s49, s49, s50
    s_add_u32 s49, s49, s30
    s_lshl_b32 s50, s49, 11
    s_lshl_b32 s49, s49, 10
    s_add_u32 s50, s50, {KV_OFF:#x}
    s_mov_b32 s51, {f2u(0.25*LOG2E):#x}
    s_nop 1
    """)
    for i in range(8): o(f"v_mul_f32 v{ACC+i}, s51, v{ACC+i}")
    for a in range(6):
        b = ACC + 4 * a
        o(f"v_cvt_pk_bf16_f32 v{FR+2*a}, v{b}, v{b+1}")
        o(f"v_cvt_pk_bf16_f32 v{FR+1+2*a}, v{b+2}, v{b+3}")
    for a, (so, off) in enumerate(((49, 0), (49, 256), (50, 0), (50, 256), (50, 1024), (50, 1280))):
        o(f"buffer_store_dwordx2 {vr(FR+2*a,2)}, v4, s[20:23], s{so} offen offset:{off}{ST1}")
    stamp_out(o, 0)
    o.lab("K1_END0")
    o("s_endpgm")

K2_LDS = 131072 + 26624
K2_EARLY = 6
def k2(o):
    kstart(o, "k2_kernel")
    rstamp(o, 0); stamp(o, 1)
    o(f"""
    s_cmp_ge_u32 s2, 256
    s_cbranch_scc1 K2_END0
    s_load_dwordx2 s[28:29], s[0:1], 112
    s_load_dwordx2 s[4:5], s[0:1], 24
    s_load_dwordx4 s[8:11], s[0:1], 88
    v_lshrrev_b32 v1, 6, v0
    v_and_b32 v0, 63, v0
    s_nop 0
    v_readfirstlane_b32 s3, v1
    v_lshlrev_b32 v1, 4, v0
    s_and_b32 s24, s2, 7
    s_lshr_b32 s25, s2, 3
    s_waitcnt lgkmcnt(0)
    """)
    if FINE: stamp(o, 3)
    srd(o, 20, 28, WS_USED)
    if OPT.get("K2EXIT"):
        stamp_out(o, 1)
        o("s_endpgm")
    o("s_cmp_ge_u32 s3, 8")
    o("s_cbranch_scc1 K2_CONV")
    Q, NM, O, SX, SY, KF, V0, V1a, V1b, IDX, AD = 4, 8, 24, 40, 56, 72, 76, 80, 84, 88, 2
    o(f"""
    s_lshl_b32 s26, s24, 2
    s_and_b32 s27, s25, 3
    s_add_u32 s26, s26, s27         ; head
    s_lshr_b32 s27, s25, 2          ; qb
    s_lshl_b32 s30, s26, 6
    s_lshl_b32 s31, s27, 3
    s_add_u32 s30, s30, s31
    s_add_u32 s30, s30, s3
    s_lshl_b32 s30, s30, 10
    buffer_load_dwordx4 {vr(Q,4)}, v1, s[20:23], s30 offen
    s_lshl_b32 s31, s3, 10
    s_lshl_b32 s30, s26, 17
    s_add_u32 s30, s30, {KV_OFF:#x}
    s_add_u32 s30, s30, s31
    s_mov_b32 m0, s31
    """)
    for i in range(2):
        o("s_nop 0")
        o("buffer_load_dwordx4 v1, s[20:23], s30 offen lds")
        if i < 1:
            o("s_add_u32 s30, s30, 8192")
            o("s_add_u32 m0, m0, 8192")
    if FINE: stamp(o, 4)
    for r in list(range(V0, V0 + 12)): o(f"v_mov_b32 v{r}, 0x3f803f80")
    o(f"v_mov_b32 v{IDX}, 0xdddd")
    if OPT.get("APRIO"): o(f"s_setprio {OPT['APRIO']}")
    if OPT.get("YPRIO"):
        o("s_cmp_lt_u32 s3, 4")
        o("s_cbranch_scc1 K2_NP")
        o(f"s_setprio {OPT['YPRIO']}")
        o.lab("K2_NP")
    if OPT.get("ZROW"):
        o("s_mov_b32 s42, 0xffee0000")
        o("s_mov_b32 s43, 0xffee0000")
        o("s_mov_b64 exec, s[42:43]")
        for r in list(range(V0, V0 + 12)): o(f"v_mov_b32 v{r}, 0")
        o("s_mov_b64 exec, -1")
    o(f"""
    s_mov_b32 s40, 0xffff
    s_mov_b32 s41, 0xffff
    s_mov_b32 s34, 0
    s_waitcnt vmcnt(0)
    """)
    if FINE: stamp(o, 5)
    o("""
    s_barrier
    """)
    stamp(o, 2)
    o(f"""
    ds_read_b128 {vr(KF,4)}, v1
    s_waitcnt lgkmcnt(0)
    v_mfma_f32_32x32x16_bf16 {vr(SX,16)}, {vr(KF,4)}, {vr(Q,4)}, 0
    s_nop 15
    """)
    def maxred(src, dst):
        o(f"v_max3_f32 v{dst}, v{src}, v{src+1}, v{src+2}")
        for i in range(3, 15, 2): o(f"v_max3_f32 v{dst}, v{dst}, v{src+i}, v{src+i+1}")
        o(f"v_max_f32 v{dst}, v{dst}, v{src+15}")
    maxred(SX, 3)
    o.lab("K2_PASS")
    o(f"""
    v_mov_b32 v{AD}, v3
    s_nop 1
    v_permlane32_swap_b32 v3, v{AD}
    s_nop 1
    v_max_f32 v3, v3, v{AD}
    v_mov_b32 v{AD}, v1
    ds_read_b128 {vr(KF,4)}, v1
    """)
    for i in range(16): o(f"v_sub_f32 v{NM+i}, 0, v3")
    for i in range(16): o(f"v_mov_b32 v{O+i}, 0")
    for i in range(8, 16): o(f"v_mov_b32 v{SY+i}, 0")
    o(f"""
    s_waitcnt lgkmcnt(0)
    v_mfma_f32_32x32x16_bf16 {vr(SX,16)}, {vr(KF,4)}, {vr(Q,4)}, {vr(NM,16)}
    ds_read_b128 {vr(KF,4)}, v1 offset:2048
    s_mov_b64 exec, s[40:41]
    ds_read_b128 {vr(V0,4)}, v1 offset:1024
    ds_read_b128 {vr(V1a,4)}, v1 offset:1280
    s_mov_b64 exec, -1
    s_mov_b32 s32, 0                ; iteration
    s_cmp_eq_u32 s34, 0
    s_cselect_b32 s33, 1, 16        ; limit
    s_nop 7
    """)
    o.raw(".p2align 6")
    o.lab("K2_LOOP")
    for u in range(4):
        X, Y = (SX, SY) if u % 2 == 0 else (SY, SX)
        Vcur, Vprev = (V1a, V1b) if u % 2 == 0 else (V1b, V1a)
        ex = lambda a, b: [o(f"v_exp_f32 v{X+i}, v{X+i}") for i in range(a, b)]
        ex(0, 3)
        o("s_waitcnt lgkmcnt(2)")
        o(f"v_smfmac_f32_32x32x32_bf16 {vr(O,16)}, {vr(Vprev,4)}, {vr(Y+8,8)}, v{IDX}")
        ex(3, 8)
        o(f"v_mfma_f32_32x32x16_bf16 {vr(Y,16)}, {vr(KF,4)}, {vr(Q,4)}, {vr(NM,16)}")
        o(f"ds_read_b128 {vr(KF,4)}, v{AD} offset:{(u+2)*2048}")
        ex(8, 13)
        o("s_waitcnt lgkmcnt(2)")
        o(f"v_smfmac_f32_32x32x32_bf16 {vr(O,16)}, {vr(V0,4)}, {vr(X,8)}, v{IDX}")
        o("s_mov_b64 exec, s[40:41]")
        o(f"ds_read_b128 {vr(V0,4)}, v{AD} offset:{(u+1)*2048+1024}")
        o(f"ds_read_b128 {vr(Vprev,4)}, v{AD} offset:{(u+1)*2048+1280}")
        o("s_mov_b64 exec, -1")
        if u == 3:
            o(f"v_add_u32 v{AD}, 8192, v{AD}")
            o("s_add_u32 s32, s32, 1")
            o("s_cmp_lt_u32 s32, s33")
        ex(13, 16)
    o(f"""
    s_cbranch_scc1 K2_LOOP
    s_cmp_ge_u32 s32, 16
    s_cbranch_scc1 K2_FIN
    s_cmp_eq_u32 s32, 1
    s_cbranch_scc0 K2_ST3
    s_barrier
    """)
    if not FINE: stamp(o, 3)
    o(f"""
    s_mov_b32 s33, 5
    s_branch K2_LOOP
    """)
    o.lab("K2_ST3")
    o(f"""
    s_barrier
    """)
    if not FINE: stamp(o, 4)
    o(f"""
    s_mov_b32 s33, 16
    s_branch K2_LOOP
    """)
    o.lab("K2_FIN")
    if not FINE: stamp(o, 5)
    o(f"""
    s_waitcnt lgkmcnt(0)
    v_smfmac_f32_32x32x32_bf16 {vr(O,16)}, {vr(V1b,4)}, {vr(SY+8,8)}, v{IDX}
    s_nop 15
    v_mul_f32 v3, 0, v{O+8}
    """)
    for i in range(8): o(f"v_fma_f32 v3, v{O+i}, 0, v3")
    o(f"""
    s_cmp_lg_u32 s34, 0
    s_cbranch_scc1 K2_OUT
    v_cmp_u_f32 vcc, v3, v3
    s_nop 1
    s_cbranch_vccz K2_OUT
    s_mov_b32 s34, 1
    s_mov_b32 s32, 0
    v_mov_b32 v{AD}, v1
    v_mov_b32 v3, 0xff800000
    """)
    o.lab("K2_MAXL")
    o(f"""
    ds_read_b128 {vr(KF,4)}, v{AD}
    v_add_u32 v{AD}, 2048, v{AD}
    s_waitcnt lgkmcnt(0)
    v_mfma_f32_32x32x16_bf16 {vr(SX,16)}, {vr(KF,4)}, {vr(Q,4)}, 0
    s_nop 15
    """)
    for i in range(0, 16, 2): o(f"v_max3_f32 v3, v3, v{SX+i}, v{SX+i+1}")
    o(f"""
    s_add_u32 s32, s32, 1
    s_cmp_lt_u32 s32, 64
    s_cbranch_scc1 K2_MAXL
    """)
    for r in list(range(V0, V0 + 12)): o(f"v_mov_b32 v{r}, 0x3f803f80")
    o("s_branch K2_PASS")
    o.lab("K2_OUT")
    o(f"""
    v_rcp_f32 v3, v{O+8}
    s_lshl_b32 s30, s27, 3
    s_add_u32 s30, s30, s3
    s_lshl_b32 s30, s30, 5
    s_add_u32 s30, s30, s26
    s_lshl_b32 s30, s30, 10
    s_add_u32 s30, s30, {OF_OFF:#x}
    """)
    for i in range(8): o(f"v_mul_f32 v{O+i}, v{O+i}, v3")
    for i in range(4): o(f"v_cvt_pk_bf16_f32 v{SX+i}, v{O+2*i}, v{O+2*i+1}")
    o(f"buffer_store_dwordx4 {vr(SX,4)}, v1, s[20:23], s30 offen")
    stamp_out(o, 1)
    o("s_endpgm")

    CHL = 131072
    L_E, L_C1, L_UT, L_U1 = 4160, 8320, 16640, 4608
    o.lab("K2_CONV")
    srd(o, 16, 10, 2048*2048)
    o(f"""
    s_sub_u32 s3, s3, 8             ; w'
    s_lshl_b32 s26, s24, 2
    s_and_b32 s27, s25, 3
    s_add_u32 s26, s26, s27         ; head
    s_lshl_b32 s31, s3, 10
    s_lshl_b32 s30, s26, 17
    s_add_u32 s30, s30, {KV_OFF + 16384:#x}
    s_add_u32 s30, s30, s31
    s_add_u32 m0, s31, 16384
    """)
    def kvdma(n):
        for i in range(n):
            o("s_nop 0")
            o("buffer_load_dwordx4 v1, s[20:23], s30 offen lds")
            o("s_add_u32 s30, s30, 4096")
            o("s_add_u32 m0, m0, 4096")
    kvdma(8)
    o(f"""
    s_lshl_b32 s26, s24, 5
    s_add_u32 s26, s26, s25
    s_lshl_b32 s32, s26, 2
    s_lshr_b32 s33, s3, 1           ; ch'
    s_and_b32 s34, s3, 1
    s_lshl_b32 s35, s26, 1
    s_add_u32 s35, s35, s33
    s_mul_i32 s35, s35, {GC_SZ}
    s_add_u32 s35, s35, {GC_OFF:#x}
    v_lshlrev_b32 v5, 3, v0
    v_lshlrev_b32 v6, 2, v0
    v_mov_b32 v7, 0
    v_mov_b32 v8, s32
    s_barrier
    buffer_load_dwordx2 v[50:51], v5, s[20:23], s35 offen
    buffer_load_dword v52, v5, s[20:23], s35 offen offset:8
    buffer_load_dwordx2 v[54:55], v6, s[20:23], s35 offen offset:512
    buffer_load_dwordx2 v[56:57], v6, s[20:23], s35 offen offset:768
    buffer_load_dwordx2 v[58:59], v6, s[20:23], s35 offen offset:1024
    buffer_load_ushort v60, v7, s[20:23], s35 offen
    global_load_dword v16, v8, s[8:9]
    """)
    kvdma(K2_EARLY)
    o(f"""
    s_waitcnt vmcnt({7 + K2_EARLY})
    s_barrier
    s_mov_b32 s38, m0
    s_lshl_b32 s36, s26, 13
    s_add_u32 s36, s36, {UT_OFF:#x}
    s_add_u32 s36, s36, s31
    s_add_u32 m0, s31, {CHL + L_UT}
    s_nop 0
    buffer_load_dwordx4 v1, s[20:23], s36 offen lds
    s_add_u32 s36, s36, 4096
    s_add_u32 m0, m0, {L_U1}
    s_nop 0
    buffer_load_dwordx4 v1, s[20:23], s36 offen lds
    s_mov_b32 m0, s38
    """)
    kvdma(20 - K2_EARLY)
    o(f"""
    v_and_b32 v2, 15, v0
    v_lshrrev_b32 v3, 4, v0
    s_sub_u32 s27, 7, s3            ; iH
    v_lshlrev_b32 v4, 2, v3
    v_lshl_add_u32 v4, v2, 4, v4    ; 16a+4g
    v_lshlrev_b32 v9, 1, v4
    v_sub_u32 v9, {CHL + L_UT + 4088}, v9
    v_lshlrev_b32 v4, 11, v4        ; *2048 (out)
    ; A addresses
    v_and_b32 v10, 1, v2
    v_mul_u32_u24 v17, {L_E}, v10
    v_add_u32 v11, v2, v10
    v_lshl_add_u32 v17, v11, 1, v17
    v_lshl_add_u32 v17, v3, 4, v17
    v_add_u32 v17, {CHL}, v17       ; A ch0
    v_add_u32 v18, {L_C1}, v17      ; A ch1
    v_lshlrev_b32 v10, 5, v2
    v_lshlrev_b32 v11, 4, v3
    v_sub_u32 v11, v11, v10
    v_add_u32 v11, {CHL + L_UT + 4064}, v11
    s_lshl_b32 s35, s27, 9
    s_lshl_b32 s36, s3, 9
    v_subrev_u32 v19, s35, v11      ; B H
    v_subrev_u32 v20, s36, v11      ; B L
    v_subrev_u32 v21, s35, v9       ; skip H
    v_subrev_u32 v22, s36, v9       ; skip L
    s_mul_i32 s38, s33, {L_C1}
    s_xor_b32 s39, s34, 1
    s_mul_i32 s39, s39, {L_E}
    s_add_u32 s38, s38, s39
    s_add_u32 s38, s38, {CHL}
    v_add_u32 v5, s38, v5           ; +8t
    v_lshl_add_u32 v6, v0, 4, s38   ; +16t
    v_lshl_add_u32 v7, v0, 5, s38   ; +32t
    v_lshl_add_u32 v8, v0, 2, s38   ; +4t
    s_mul_i32 s39, s33, {L_U1}
    s_add_u32 s39, s39, {CHL + L_UT + 4096}
    v_lshl_add_u32 v10, v0, 3, s39
    s_mov_b32 s40, 0x01000100
    s_mov_b32 s41, 0x03020302
    v_mov_b32 v92, 0
    v_mov_b32 v93, 0
    v_cmp_eq_u32 s[42:43], 7, v0
    s_waitcnt vmcnt({22 - K2_EARLY + K2_EARLY})
    s_cmp_eq_u32 s34, 0
    s_cbranch_scc0 K2_XO
    v_perm_b32 v64, v54, v54, s40
    v_alignbit_b32 v65, v55, v54, 16
    v_perm_b32 v68, v56, v56, s40
    v_mov_b32 v69, v56
    v_perm_b32 v70, v56, v56, s41
    v_perm_b32 v71, v57, v57, s40
    v_perm_b32 v76, v58, v58, s40
    v_mov_b32 v77, v76
    v_mov_b32 v78, v58
    v_perm_b32 v79, v58, v58, s41
    v_mov_b32 v80, v79
    v_mov_b32 v81, v79
    v_perm_b32 v82, v59, v59, s40
    v_mov_b32 v83, v82
    v_mov_b32 v60, 0
    ds_write_b64 v10, v[92:93]
    s_branch K2_XW
    """)
    o.lab("K2_XO")
    o(f"""
    v_alignbit_b32 v50, v51, v50, 16
    v_alignbit_b32 v51, v52, v51, 16
    v_mov_b32 v64, v54
    v_perm_b32 v65, v55, v55, s40
    v_perm_b32 v68, v56, v56, s40
    v_perm_b32 v69, v56, v56, s41
    v_alignbit_b32 v70, v57, v56, 16
    v_perm_b32 v71, v57, v57, s40
    v_perm_b32 v76, v58, v58, s40
    v_mov_b32 v77, v76
    v_perm_b32 v78, v58, v58, s41
    v_mov_b32 v79, v78
    v_mov_b32 v80, v78
    v_alignbit_b32 v81, v59, v58, 16
    v_perm_b32 v82, v59, v59, s40
    v_mov_b32 v83, v82
    v_lshlrev_b32 v60, 16, v60
    v_cndmask_b32 v60, 0, v60, s[42:43]
    """)
    o.lab("K2_XW")
    o(f"""
    ds_write_b64 v5, v[50:51] offset:32
    ds_write_b64 v5, v[64:65] offset:544
    ds_write_b128 v6, v[68:71] offset:1056
    ds_write_b128 v7, v[76:79] offset:2080
    ds_write_b128 v7, v[80:83] offset:2096
    s_mov_b64 exec, 0xff
    ds_write_b32 v8, v60
    s_mov_b64 exec, -1
    """)
    CA = 24
    for i in range(16): o(f"v_mov_b32 v{CA+i}, 0")
    FB = 40
    def creads(st, both):
        b = FB + (st & 1) * 24
        k = st % 8 if st < 8 else 8
        return b
    def issue(buf, k, both):
        b = FB + buf * 24
        o(f"ds_read2_b32 {vr(b,2)}, v17 offset0:{16*k} offset1:{16*k+1}")
        o(f"ds_read2_b32 {vr(b+2,2)}, v17 offset0:{16*k+2} offset1:{16*k+3}")
        o(f"ds_read2_b32 {vr(b+4,2)}, v18 offset0:{16*k} offset1:{16*k+1}")
        o(f"ds_read2_b32 {vr(b+6,2)}, v18 offset0:{16*k+2} offset1:{16*k+3}")
        o(f"ds_read_b128 {vr(b+8,4)}, v19 offset:{64*k}")
        o(f"ds_read_b128 {vr(b+12,4)}, v19 offset:{64*k+L_U1}")
        if both:
            o(f"ds_read_b128 {vr(b+16,4)}, v20 offset:{64*k}")
            o(f"ds_read_b128 {vr(b+20,4)}, v20 offset:{64*k+L_U1}")
    def cloop(lab, both):
        o.lab(lab)
        for k in range(8):
            issue((k + 1) & 1, k + 1, both)
            o(f"s_waitcnt lgkmcnt({8 if both else 6})")
            b = FB + (k & 1) * 24
            o(f"v_mfma_f32_16x16x32_bf16 {vr(CA,4)}, {vr(b,4)}, {vr(b+8,4)}, {vr(CA,4)}")
            o(f"v_mfma_f32_16x16x32_bf16 {vr(CA+4,4)}, {vr(b+4,4)}, {vr(b+12,4)}, {vr(CA+4,4)}")
            if both:
                o(f"v_mfma_f32_16x16x32_bf16 {vr(CA+8,4)}, {vr(b,4)}, {vr(b+16,4)}, {vr(CA+8,4)}")
                o(f"v_mfma_f32_16x16x32_bf16 {vr(CA+12,4)}, {vr(b+4,4)}, {vr(b+20,4)}, {vr(CA+12,4)}")
        for r in (17, 18, 19, 20): o(f"v_add_u32 v{r}, 512, v{r}")
        o("s_add_u32 s37, s37, 1")
    o(f"""
    s_waitcnt vmcnt(0) lgkmcnt(0)
    s_barrier
    s_mov_b32 s37, 0
    """)
    stamp(o, 2)
    if OPT.get("NOCONV"): o("s_endpgm")
    if OPT.get("CPRIO"): o(f"s_setprio {OPT['CPRIO']}")
    issue(0, 0, True)
    cloop("K2_CA", True)
    o("s_cmp_le_u32 s37, s3")
    o("s_cbranch_scc1 K2_CA")
    cloop("K2_CB", False)
    o("s_cmp_le_u32 s37, s27")
    o("s_cbranch_scc1 K2_CB")
    stamp(o, 3)
    o(f"""
    ds_read_b64 v[8:9], v21
    ds_read_b64 v[10:11], v21 offset:{L_U1}
    ds_read_b64 v[12:13], v22
    ds_read_b64 v[14:15], v22 offset:{L_U1}
    v_lshlrev_b32 v6, 16, v16       ; D0
    v_and_b32 v7, 0xffff0000, v16   ; D1
    s_lshl_b32 s33, s27, 19
    s_add_u32 s33, s33, s32
    s_add_u32 s33, s33, 1024
    s_lshl_b32 s34, s3, 19
    s_add_u32 s34, s34, s32
    s_add_u32 s34, s34, 1024
    s_add_u32 s35, s33, 4096
    s_add_u32 s36, s34, 4096
    s_waitcnt lgkmcnt(0)
    """)
    for blk in range(2):
        for r in range(4):
            y0, y1 = CA + 8 * blk + r, CA + 8 * blk + 4 + r
            for c, y, dd in ((0, y0, 6), (1, y1, 7)):
                src = 8 + 4 * blk + 2 * c + (1 - (r >> 1))
                if r & 1: o(f"v_lshlrev_b32 v{40+c}, 16, v{src}")
                else:     o(f"v_and_b32 v{40+c}, 0xffff0000, v{src}")
                o(f"v_fma_f32 v{y}, v{40+c}, v{dd}, v{y}")
            o(f"v_cvt_pk_bf16_f32 v{44+4*blk+r}, v{y0}, v{y1}")
            so = (33, 35)[r >> 1] + blk
            o(f"buffer_store_dword v{44+4*blk+r}, v4, s[16:19], s{so} offen offset:{2048*(r&1)}")
    stamp_out(o, 1, wadd=8)
    o.lab("K2_END0")
    o("s_endpgm")

K3_LDS = 49152
def k3(o):
    kstart(o, "k3_kernel")
    rstamp(o, 0); stamp(o, 1)
    o(f"""
    s_cmp_ge_u32 s2, 256
    s_cbranch_scc1 K3_END0
    s_load_dwordx2 s[28:29], s[0:1], 112
    s_load_dwordx2 s[10:11], s[0:1], 96
    v_lshrrev_b32 v1, 6, v0
    v_and_b32 v0, 63, v0
    s_nop 0
    v_readfirstlane_b32 s3, v1
    v_lshlrev_b32 v1, 4, v0
    s_and_b32 s24, s2, 7
    s_lshr_b32 s25, s2, 3
    s_lshl_b32 s26, s24, 2
    s_and_b32 s27, s25, 3
    s_add_u32 s26, s26, s27         ; tb
    s_lshr_b32 s27, s25, 2          ; nb
    s_and_b32 s30, s3, 1
    s_lshr_b32 s31, s3, 1
    s_lshl_b32 s32, s26, 1
    s_add_u32 s32, s32, s30
    s_xor_b32 s33, s32, 1
    s_lshl_b32 s34, s27, 1
    s_add_u32 s34, s34, s31
    s_xor_b32 s35, s34, 1
    s_lshl_b32 s36, s3, 13          ; w*8 heads*1024
    s_lshl_b32 s40, s34, 15
    s_lshl_b32 s41, s35, 15
    s_lshl_b32 s42, s32, 15
    s_lshl_b32 s43, s33, 15
    s_add_u32 s36, s36, {OF_OFF:#x}
    s_add_u32 s42, s42, s36
    s_add_u32 s43, s43, s36
    s_add_u32 s36, s36, {WOF_OFF-OF_OFF:#x}
    s_add_u32 s40, s40, s36
    s_add_u32 s41, s41, s36
    s_add_u32 s44, s40, 4096
    s_add_u32 s45, s41, 4096
    s_add_u32 s46, s42, 4096
    s_add_u32 s47, s43, 4096
    s_waitcnt lgkmcnt(0)
    """)
    srd(o, 20, 28, WS_USED)
    srd(o, 16, 10, 2048*2048)
    FR = 68
    for h in range(8):
        for k in range(4):
            o(f"buffer_load_dwordx4 {vr(FR+16*h+4*k,4)}, v1, s[20:23], s{40+k+(4 if h>=4 else 0)} offen offset:{1024*(h&3)}")
    AC = 4
    for h in range(8):
        o(f"s_waitcnt vmcnt({28-4*h})")
        if h == 0: stamp(o, 2)
        b = FR + 16 * h
        for k in range(4):
            ka, kb = k >> 1, k & 1
            c = vr(AC + 16 * k, 16)
            o(f"v_mfma_f32_32x32x16_bf16 {c}, {vr(b+4*ka,4)}, {vr(b+8+4*kb,4)}, {c if h else 0}")
    stamp(o, 3)
    o("s_nop 7")
    for k in range(1, 4):
        o(f"s_xor_b32 s36, s3, {k}")
        o(f"s_mul_i32 s36, s36, 12288")
        o(f"v_add_u32 v{2 + (k & 1)}, s36, v1")
        if k == 1: o("s_nop 7")
        for q in range(4):
            o(f"ds_write_b128 v{2 + (k & 1)}, {vr(AC+16*k+4*q,4)} offset:{(k-1)*4096 + q*1024}")
    o(f"""
    s_mul_i32 s36, s3, 12288
    v_add_u32 v2, s36, v1
    s_waitcnt lgkmcnt(0)
    s_barrier
    """)
    for k in range(3):
        for q in range(4):
            o(f"ds_read_b128 {vr(FR+16*k+4*q,4)}, v2 offset:{k*4096 + q*1024}")
    o(f"""
    v_and_b32 v2, 31, v0
    v_lshlrev_b32 v2, 11, v2
    v_lshrrev_b32 v3, 5, v0
    v_lshl_add_u32 v2, v3, 4, v2
    s_lshl_b32 s36, s32, 16
    s_lshl_b32 s37, s34, 6
    s_add_u32 s36, s36, s37
    """)
    for k in range(3):
        o(f"s_waitcnt lgkmcnt({8-4*k})")
        for i in range(16): o(f"v_add_f32 v{AC+i}, v{AC+i}, v{FR+16*k+i}")
    for i in range(8): o(f"v_cvt_pk_bf16_f32 v{24+i}, v{AC+2*i}, v{AC+2*i+1}")
    o(f"""
    s_nop 1
    v_permlane32_swap_b32 v24, v26
    v_permlane32_swap_b32 v25, v27
    v_permlane32_swap_b32 v28, v30
    v_permlane32_swap_b32 v29, v31
    s_nop 1
    buffer_store_dwordx4 v[24:27], v2, s[16:19], s36 offen
    buffer_store_dwordx4 v[28:31], v2, s[16:19], s36 offen offset:32
    """)
    stamp_out(o, 2)
    o.lab("K3_END0")
    o("s_endpgm")

def main(out):
    hdr = open(f"cdna_kernels/{NAME}.s.ref").read().split("; Override launch")[0]
    o = A()
    o.raw(hdr.rstrip())
    for _ in range(OPT.get("PRE", 0)): o.raw("; @launch kernel=k0_kernel grid=(1,1,1) block=(64,1,1) lds=0")
    o.raw(f"; @launch kernel=k1_kernel grid=(256,1,1) block=(512,1,1) lds={K1_LDS}")
    o.raw(f"; @launch kernel=k2_kernel grid=(256,1,1) block=(768,1,1) lds={K2_LDS}")
    o.raw(f"; @launch kernel=k3_kernel grid=(256,1,1) block=(256,1,1) lds={K3_LDS}")
    for _ in range(OPT.get("POST", 0)): o.raw("; @launch kernel=k0_kernel grid=(1,1,1) block=(64,1,1) lds=0")
    o.raw('.amdgcn_target "amdgcn-amd-amdhsa--gfx950"\n.text')
    if OPT.get("PRE") or OPT.get("POST"):
        kstart(o, "k0_kernel"); o("s_endpgm")
    k1(o); k2(o); k3(o)
    o.raw('.section .rodata,"a"')
    if OPT.get("PRE") or OPT.get("POST"): o.raw(kdesc("k0_kernel", 8))
    o.raw(kdesc("k1_kernel", 180))
    o.raw(kdesc("k2_kernel", 96))
    o.raw(kdesc("k3_kernel", 196))
    txt = o.text()
    if STFLAG:
        import re
        txt = "\n".join((l + " " + STFLAG) if l.strip().startswith("buffer_store") and "s80" not in l and "s[16:19]" not in l else l for l in txt.split("\n"))
    open(out, "w").write(txt)

if __name__ == "__main__":
    if "--stamp" in sys.argv:
        STAMP = True; sys.argv.remove("--stamp")
    for a_ in list(sys.argv):
        if a_.startswith("-D"):
            kk, _, vv = a_[2:].partition("="); OPT[kk] = int(vv or 1); sys.argv.remove(a_)
    for a_ in list(sys.argv):
        if a_.startswith("--st="):
            STFLAG = a_[5:].replace(",", " "); sys.argv.remove(a_)
    if "--fine2" in sys.argv:
        FINE2 = True; sys.argv.remove("--fine2")
    if "--fine" in sys.argv:
        FINE = True; sys.argv.remove("--fine")
    main(sys.argv[1] if len(sys.argv) > 1 else f"cdna_kernels/{NAME}.s")
```

```python
import sys, math, struct

NAME = "concat_heads__softmax_full_mha__ssm_conv_s4__prompt"

QF_OFF  = 0
KV_OFF  = 2 << 20
OF_OFF  = 6 << 20
WOF_OFF = 8 << 20
UT_OFF  = 9 << 20
GC_OFF  = 11 << 20
GC_SZ   = 1536
ST1 = ""
WS_USED = 32 << 20

def f2u(x): return struct.unpack('<I', struct.pack('<f', x))[0]
LOG2E = 1.4426950408889634

class A:
    def __init__(s): s.l = []
    def __call__(s, t):
        for x in t.split("\n"):
            x = x.strip()
            if x: s.l.append("    " + x)
    def lab(s, n): s.l.append(n + ":")
    def raw(s, t): s.l.append(t)
    def text(s): return "\n".join(s.l) + "\n"

def vr(a, n): return f"v[{a}:{a+n-1}]" if n > 1 else f"v{a}"
def sr(a, n): return f"s[{a}:{a+n-1}]" if n > 1 else f"s{a}"

def srd(o, d, b, size, add=0):
    if add:
        o(f"s_add_u32 s{d}, s{b}, {add:#x}")
        o(f"s_addc_u32 s{d+1}, s{b+1}, 0")
    else:
        o(f"s_mov_b32 s{d}, s{b}")
        o(f"s_mov_b32 s{d+1}, s{b+1}")
    o(f"s_mov_b32 s{d+2}, {size:#x}")
    o(f"s_mov_b32 s{d+3}, 0x00020000")

class Sched:
    def __init__(s): s.ops = []
    def add(s, text, defs, uses, lat=8, cost=4, trans=False):
        s.ops.append(dict(t=text, d=set(defs), u=set(uses), lat=lat, cost=cost, tr=trans))
    def emit(s, o):
        ops = s.ops; n = len(ops)
        pred = [[] for _ in ops]
        lastw, readers = {}, {}
        for i, op in enumerate(ops):
            for r in op['u']:
                if r in lastw: pred[i].append((lastw[r], ops[lastw[r]]['lat']))
            for r in op['d']:
                if r in lastw: pred[i].append((lastw[r], 4))
                for j in readers.get(r, []):
                    if j != i: pred[i].append((j, 8))
            for r in op['u']: readers.setdefault(r, []).append(i)
            for r in op['d']: lastw[r] = i; readers[r] = []
        succ = [[] for _ in ops]
        for i in range(n):
            for j, l in pred[i]: succ[j].append((i, l))
        cp = [0] * n
        for i in reversed(range(n)):
            cp[i] = ops[i]['cost'] + max([l + cp[k] for k, l in succ[i]], default=0)
        done, when, t, last = set(), {}, 0, None
        while len(done) < n:
            cand = [i for i in range(n) if i not in done and all(j in done for j, _ in pred[i])]
            rdy = {i: max([when[j] + l for j, l in pred[i]], default=0) for i in cand}
            now = [i for i in cand if rdy[i] <= t]
            i = max(now, key=lambda k: cp[k]) if now else min(cand, key=lambda k: (rdy[k], -cp[k]))
            if last is not None and ops[last]['tr'] and not ops[i]['tr'] and (ops[last]['d'] & ops[i]['u']): o("s_nop 0")
            t = max(t, rdy[i]); when[i] = t; t += ops[i]['cost']; done.add(i); last = i
            o(ops[i]['t'])
        return t

STAMP = False
FINE = False
FINE2 = False
OPT = {}
STFLAG = 'sc1'
ST_OFF = 16 << 20
def stamp(o, i):
    if STAMP: o(f"s_memtime s[{64+2*i}:{65+2*i}]")
def rstamp(o, i):
    if STAMP: o(f"s_memrealtime s[{64+2*i}:{65+2*i}]")
def stamp_out(o, kid, wave_sgpr="s3", wadd=0):
    if not STAMP: return
    o("s_memrealtime s[78:79]")
    o("s_waitcnt lgkmcnt(0)")
    o("s_mov_b64 exec, 1")
    o(f"s_lshl_b32 s80, s2, 4")
    o(f"s_add_u32 s80, s80, {wave_sgpr}")
    o(f"s_add_u32 s80, s80, {kid*8192 + wadd}")
    o(f"s_lshl_b32 s80, s80, 6")
    o(f"s_add_u32 s80, s80, {ST_OFF:#x}")
    o("s_waitcnt vmcnt(0)")
    o("s_memtime s[76:77]")
    o("s_waitcnt lgkmcnt(0)")
    for i in range(16): o(f"v_mov_b32 v{4+i}, s{64+i}")
    o("v_mov_b32 v2, 0")
    for q in range(4): o(f"buffer_store_dwordx4 v[{4+4*q}:{7+4*q}], v2, s[20:23], s80 offen offset:{16*q}")

def kstart(o, name):
    o.raw(f".globl {name}\n.p2align 8\n.type {name},@function")
    o.lab(name)

def kdesc(name, nv, ns=96):
    return f""".p2align 6
.amdhsa_kernel {name}
  .amdhsa_next_free_vgpr {nv}
  .amdhsa_next_free_sgpr {ns}
  .amdhsa_accum_offset {(nv+3)//4*4}
  .amdhsa_group_segment_fixed_size 0
  .amdhsa_kernarg_size 120
  .amdhsa_user_sgpr_count 2
  .amdhsa_user_sgpr_kernarg_segment_ptr 1
  .amdhsa_system_sgpr_workgroup_id_x 1
.end_amdhsa_kernel
"""

STG = 32768
K1_SCR = 4 * STG
K1_UT = K1_SCR + 4 * 4352
K1_WO = K1_UT + 8192
K1_LDS = K1_WO + 2048
def k1(o):
    kstart(o, "k1_kernel")
    rstamp(o, 0); stamp(o, 1)
    o(f"""
    s_cmp_ge_u32 s2, 256
    s_cbranch_scc1 K1_END0
    s_load_dwordx8 s[4:11], s[0:1], 0
    s_load_dwordx2 s[28:29], s[0:1], 112
    s_load_dwordx16 s[32:47], s[0:1], 32
    v_lshrrev_b32 v1, 6, v0
    v_and_b32 v0, 63, v0
    s_nop 0
    v_readfirstlane_b32 s3, v1
    v_and_b32 v2, 15, v0
    v_lshrrev_b32 v3, 4, v0
    s_and_b32 s24, s2, 7
    s_lshr_b32 s25, s2, 3
    s_lshr_b32 s26, s24, 1
    s_lshl_b32 s26, s26, 3
    s_and_b32 s31, s25, 7
    s_add_u32 s26, s26, s31         ; mt (0..31)
    s_and_b32 s27, s24, 1
    s_lshl_b32 s27, s27, 2
    s_lshr_b32 s30, s25, 3
    s_add_u32 s27, s27, s30         ; hg (0..7)
    s_lshl_b32 s30, s30, 1
    s_add_u32 s31, s31, s30
    s_and_b32 s31, s31, {OPT.get("ROTMASK", 7)}
    s_and_b32 s30, s3, 1            ; tg
    s_lshr_b32 s48, s3, 1           ; hq
    s_lshl_b32 s53, s3, 12
    v_lshrrev_b32 v10, 3, v0
    v_and_b32 v11, 7, v0
    """)
    o(f"""
    s_cmp_ge_u32 s3, 2
    s_cbranch_scc1 K1_SW
    v_xor_b32 v76, v11, v3
    v_lshlrev_b32 v76, 4, v76
    v_lshl_add_u32 v76, v10, 10, v76
    s_lshl_b32 s50, s26, 6
    s_lshl_b32 s51, s3, 5
    s_add_u32 s50, s50, s51
    s_lshl_b32 s50, s50, 10
    s_mov_b32 s51, 8192
    s_mov_b32 s52, 128
    s_waitcnt lgkmcnt(0)
    """)
    srd(o, 12, 4, 2048*1024)
    o("s_branch K1_SD")
    o.lab("K1_SW")
    o(f"""
    v_and_b32 v76, 1, v3
    v_lshlrev_b32 v76, 1, v76
    v_xor_b32 v76, v76, v11
    v_lshlrev_b32 v76, 4, v76
    v_mul_u32_u24 v77, 3072, v10
    v_add_u32 v76, v76, v77
    s_sub_u32 s50, s3, 2
    s_lshr_b32 s51, s50, 1
    s_lshl_b32 s51, s51, 10
    s_and_b32 s50, s50, 1
    s_mul_i32 s50, s50, {32*3072}
    s_add_u32 s50, s50, s51
    s_lshl_b32 s51, s27, 7
    s_add_u32 s50, s50, s51
    s_mov_b32 s51, {8*3072}
    s_mov_b32 s52, {64*3072}
    s_waitcnt lgkmcnt(0)
    """)
    srd(o, 12, 6, 512*3072)
    o.lab("K1_SD")
    o("v_xor_b32 v77, 64, v76")
    srd(o, 20, 28, WS_USED)
    if OPT.get("K1EXIT"):
        stamp_out(o, 0)
        o("s_endpgm")
    ACC = 12
    FR = 36
    FR1 = 180
    def dma(n):
        o(f"s_add_u32 s54, s31, {n}")
        o("s_and_b32 s54, s54, 7")
        o("s_mul_i32 s54, s54, s52")
        o("s_add_u32 s54, s54, s50")
        o(f"s_add_u32 m0, s53, {(n & 3) * STG}")
        for q in range(4):
            if q:
                o("s_add_u32 s54, s54, s51")
                o("s_add_u32 m0, m0, 1024")
            o("s_nop 0")
            o(f"buffer_load_dwordx4 v{76 + (q & 1)}, s[12:15], s54 offen lds")
    def addrs():
        o(f"""
        v_lshrrev_b32 v10, 1, v2
        v_xor_b32 v10, v10, v3
        v_lshlrev_b32 v10, 4, v10
        v_lshl_add_u32 v4, v2, 7, v10
        s_lshl_b32 s49, s30, 12
        v_add_u32 v4, s49, v4
        v_xor_b32 v5, 64, v4
        v_add_u32 v6, {2*STG}, v4
        v_add_u32 v7, {2*STG}, v5
        v_bfe_u32 v10, v0, 2, 2
        v_lshl_add_u32 v10, v3, 3, v10
        v_lshlrev_b32 v10, 7, v10
        v_bfe_u32 v11, v0, 3, 2
        v_xor_b32 v11, s48, v11
        v_lshl_add_u32 v10, v11, 5, v10
        v_and_b32 v11, 3, v0
        v_lshl_add_u32 v8, v11, 3, v10
        v_add_u32 v8, 8192, v8
        v_add_u32 v9, {2*STG}, v8
        """)
        for i in range(24): o(f"v_mov_b32 v{ACC+i}, 0")
    def reads(n):
        xa = (4, 5) if (n & 3) < 2 else (6, 7)
        wa = 8 if (n & 3) < 2 else 9
        so = (n & 1) * STG
        for ks in range(2):
            b = (FR1 if n & 1 else FR) + 20 * ks
            o(f"ds_read_b128 {vr(b,4)}, v{xa[ks]} offset:{so}")
            o(f"ds_read_b128 {vr(b+4,4)}, v{xa[ks]} offset:{so + 2048}")
            for p in range(3):
                o(f"ds_read_b64_tr_b16 {vr(b+8+4*p,2)}, v{wa} offset:{so + p*8192 + ks*4096}")
                o(f"ds_read_b64_tr_b16 {vr(b+10+4*p,2)}, v{wa} offset:{so + p*8192 + ks*4096 + 512}")
    def gemm(path, fill):
        if OPT.get("NOCOMP"):
            for n in range(2, 8):
                dma(n)
                if n == 3: stamp(o, 4)
            stamp(o, 5)
            o("s_waitcnt vmcnt(0)")
            stamp(o, 2)
            return
        if FINE: stamp(o, 4)
        o(f"s_waitcnt vmcnt({6 if (path == 'B' and OPT.get('AUXLATE')) else 4}) lgkmcnt(0)")
        if FINE: stamp(o, 5)
        o("s_barrier")
        stamp(o, 2)
        reads(0)
        dma(2)
        dma(3)
        for n in range(8):
            if n < 7:
                N = [8,8,8,8,8,4,0][n]
                if path == "B" and n in ((2, 3, 4) if OPT.get("AUXLATE") else (1, 2, 3)): N += 2
                if path == "A" and n in (2, 3, 4): N += 1
                o(f"s_waitcnt vmcnt({N}) lgkmcnt(0)")
                o("s_barrier")
                if FINE2 and n in (2, 4): stamp(o, 3 + n // 2)
                reads(n + 1)
            else:
                o("s_waitcnt lgkmcnt(0)")
            for ks in range(2):
                b = (FR1 if n & 1 else FR) + 20 * ks
                for tt in range(2):
                    x = vr(b + 4 * tt, 4)
                    o(f"v_mfma_f32_16x16x32_bf16 {vr(ACC+4*tt,4)}, {vr(b+8,4)}, {x}, {vr(ACC+4*tt,4)}")
                for tt in range(2):
                    x = vr(b + 4 * tt, 4)
                    o(f"v_mfma_f32_16x16x32_bf16 {vr(ACC+8+4*tt,4)}, {vr(b+12,4)}, {x}, {vr(ACC+8+4*tt,4)}")
                for tt in range(2):
                    x = vr(b + 4 * tt, 4)
                    o(f"v_mfma_f32_16x16x32_bf16 {vr(ACC+16+4*tt,4)}, {x}, {vr(b+16,4)}, {vr(ACC+16+4*tt,4)}")
            if n + 4 <= 7: dma(n + 4)
            if n in fill: fill[n]()
    o("s_cmp_ge_u32 s3, 4")
    o("s_cbranch_scc1 K1_B")

    P = 80
    o(f"""
    s_lshr_b32 s55, s3, 1
    s_lshl_b32 s56, s2, 1
    s_add_u32 s56, s56, s55         ; ch
    s_and_b32 s57, s3, 1            ; n half
    s_lshl_b32 s58, s56, 8
    s_lshl_b32 s59, s57, 7
    s_add_u32 s58, s58, s59
    v_lshl_add_u32 v10, v0, 1, s58
    s_lshl_b32 s59, s56, 1
    v_mov_b32 v11, s59
    global_load_ushort v{P+6}, v11, s[44:45]
    global_load_ushort v{P}, v10, s[32:33]
    global_load_ushort v{P+1}, v10, s[34:35]
    global_load_ushort v{P+2}, v10, s[36:37]
    global_load_ushort v{P+3}, v10, s[38:39]
    global_load_ushort v{P+4}, v10, s[40:41]
    global_load_ushort v{P+5}, v10, s[42:43]
    """)
    for n in range(2): dma(n)
    addrs()
    T = 88
    GA = 168
    WA, RA = 78, 79
    XCH = K1_SCR + 5120
    o(f"""
    s_mul_i32 s58, s3, 17408
    s_add_u32 s58, s58, {2*STG}
    v_lshl_add_u32 v{WA}, v0, 2, s58
    v_mul_u32_u24 v{RA}, 272, v2
    v_lshl_add_u32 v{RA}, v3, 4, v{RA}
    v_add_u32 v{RA}, s58, v{RA}
    s_mul_i32 s58, s55, 3072
    s_add_u32 s58, s58, {XCH}
    v_lshl_add_u32 v{T}, v0, 4, s58
    """)
    for i in range(12): o(f"v_mov_b32 v{GA+i}, 0")
    sc = Sched()
    pairs = [r for r in range(36, 76, 2)] + [r for r in range(90, 168, 2)] + [r for r in range(180, 236, 2)]
    tpool = list(range(236, 256)); tix = [0]
    def newp(): return pairs.pop(0)
    def tmp():
        t = tpool[tix[0] % len(tpool)]; tix[0] += 1; return t
    def op(text, d, u, **k): sc.add(text, d, u, **k)
    for r in range(P, P + 7): op(f"v_lshlrev_b32 v{r}, 16, v{r}", [r], [r])
    D = P + 6
    op(f"v_mul_f32 v{D}, {f2u(LOG2E):#x}, v{D}", [D], [D])
    op(f"v_exp_f32 v{D}, v{D}", [D], [D], lat=16, cost=8, trans=True)
    op(f"v_cvt_pk_bf16_f32 v{D}, v{D}, v{D}", [D], [D])
    op(f"v_lshlrev_b32 v{D}, 16, v{D}", [D], [D])
    for k in range(4): op(f"v_mul_f32 v{P+k}, v{D}, v{P+k}", [P+k], [D, P+k])
    op(f"v_mul_f32 v{P}, {f2u(LOG2E):#x}, v{P}", [P], [P])
    op(f"v_mul_f32 v{P+1}, {f2u(1/(2*math.pi)):#x}, v{P+1}", [P+1], [P+1])
    C = newp()
    op(f"v_mul_f32 v{C}, v{P+4}, v{P+2}", [C], [P+4, P+2])
    op(f"v_mul_f32 v{C+1}, v{P+4}, v{P+3}", [C+1], [P+4, P+3])
    op(f"v_fma_f32 v{C}, -v{P+5}, v{P+3}, v{C}", [C], [P+5, P+3, C])
    op(f"v_fma_f32 v{C+1}, v{P+5}, v{P+2}, v{C+1}", [C+1], [P+5, P+2, C+1])
    def anchor(t):
        d = newp(); a_, b_, c_, e_ = tmp(), tmp(), tmp(), tmp()
        op(f"v_mul_f32 v{a_}, {f2u(float(t)):#x}, v{P}", [a_], [P])
        op(f"v_mul_f32 v{b_}, {f2u(float(t)):#x}, v{P+1}", [b_], [P+1])
        op(f"v_exp_f32 v{a_}, v{a_}", [a_], [a_], lat=16, cost=8, trans=True)
        op(f"v_fract_f32 v{b_}, v{b_}", [b_], [b_])
        op(f"v_cos_f32 v{c_}, v{b_}", [c_], [b_], lat=16, cost=8, trans=True)
        op(f"v_sin_f32 v{e_}, v{b_}", [e_], [b_], lat=16, cost=8, trans=True)
        op(f"v_mul_f32 v{d}, v{a_}, v{c_}", [d], [a_, c_])
        op(f"v_mul_f32 v{d+1}, v{a_}, v{e_}", [d+1], [a_, e_])
        return d
    def cmul(x, w):
        d = newp()
        op(f"v_pk_mul_f32 {vr(d,2)}, {vr(x,2)}, {vr(w,2)} op_sel:[0,0] op_sel_hi:[1,0]", [d, d+1], [x, x+1, w], lat=12)
        op(f"v_pk_fma_f32 {vr(d,2)}, {vr(x,2)}, {vr(w,2)}, {vr(d,2)} op_sel:[1,1,0] op_sel_hi:[0,1,1] neg_lo:[1,0,0]", [d, d+1], [x, x+1, w+1, d, d+1], lat=12)
        return d
    def put(e, x, neg=False):
        t = tmp()
        op(f"v_cvt_pk_bf16_f32 v{t}, v{x}, {'-' if neg else ''}v{x+1}", [t], [x, x+1])
        op(f"ds_write_b32 v{WA}, v{t} offset:{e*272}", [], [t])
    Z8, Z1, Z128 = anchor(8), anchor(1), anchor(128)
    t_ = tmp()
    op(f"v_mov_b32 v{t_}, 0x3f80", [t_], [])
    op(f"ds_write_b32 v{WA}, v{t_}", [], [t_])
    e = {1: Z8}
    e[2] = cmul(e[1], e[1]); e[3] = cmul(e[2], e[1]); e[4] = cmul(e[2], e[2])
    for j in (5, 6, 7): e[j] = cmul(e[4], e[j-4])
    e[8] = cmul(e[4], e[4])
    for j in range(9, 16): e[j] = cmul(e[8], e[j-8])
    for j in range(1, 16): put(j, e[j], True)
    x = {0: C}
    x[1] = cmul(C, Z1); Z2 = cmul(Z1, Z1); x[2] = cmul(x[0], Z2); x[3] = cmul(x[1], Z2); Z4 = cmul(Z2, Z2)
    for r in range(4, 8): x[r] = cmul(x[r-4], Z4)
    y = {r: cmul(x[r], Z128) for r in range(8)}
    Z256 = cmul(Z128, Z128)
    pp = {r: cmul(x[2*r], Z256) for r in range(4)}
    qq = {r: cmul(y[2*r], Z256) for r in range(4)}
    Z512 = cmul(Z256, Z256)
    rr = [cmul(v_, Z512) for v_ in (x[0], x[4], y[0], y[4], pp[0], pp[2], qq[0], qq[2])]
    Z1024 = cmul(Z512, Z512)
    ss = [cmul(v_, Z1024) for v_ in (x[0], y[0], pp[0], qq[0], rr[0], rr[2], rr[4], rr[6])]
    s2048 = cmul(ss[0], Z1024)
    for r in range(8): put(16 + r, x[r]); put(24 + r, y[r])
    for r in range(4): put(32 + r, pp[r]); put(36 + r, qq[r])
    for r in range(8): put(40 + r, rr[r])
    for r in range(8): put(48 + r, ss[r])
    put(56, s2048)
    if OPT.get("NOKGEN"): o("s_branch K1_A_F4")
    o("s_waitcnt vmcnt(8)")
    if FINE: stamp(o, 3)
    est = sc.emit(o)
    FB_ = 90
    for t in range(4):
        for s_ in range(4): o(f"ds_read_b128 {vr(FB_+16*t+4*s_,4)}, v{RA} offset:{t*4352 + 64*s_}")
    for t in range(3):
        o(f"s_waitcnt lgkmcnt({8 - 4*t})")
        for s_ in range(4):
            o(f"v_mfma_f32_16x16x32_bf16 {vr(GA+4*t,4)}, {vr(FB_+16+16*t+4*s_,4)}, {vr(FB_+4*s_,4)}, {vr(GA+4*t,4)}")
    o(f"""
    s_cmp_eq_u32 s57, 0
    s_cbranch_scc1 K1_A_F4
    s_nop 7
    ds_write_b128 v{T}, {vr(GA,4)}
    ds_write_b128 v{T}, {vr(GA+4,4)} offset:1024
    ds_write_b128 v{T}, {vr(GA+8,4)} offset:2048
    """)
    o.lab("K1_A_F4")
    X = [104 + 2 * i for i in range(8)]
    Y = [120 + 2 * i for i in range(8)]
    def f5():
        o(f"""
        s_cmp_lg_u32 s57, 0
        s_cbranch_scc1 K1_A_F5
        ds_read_b128 {vr(X[0],4)}, v{T}
        ds_read_b128 {vr(X[0]+4,4)}, v{T} offset:1024
        ds_read_b128 {vr(X[0]+8,4)}, v{T} offset:2048
        v_lshrrev_b32 v{Y[0]}, 1, v3
        v_lshlrev_b32 v{Y[0]}, 8, v{Y[0]}
        v_lshl_add_u32 v{Y[0]}, v2, 4, v{Y[0]}
        v_and_b32 v{Y[0]+1}, 1, v3
        v_lshl_add_u32 v{Y[0]}, v{Y[0]+1}, 3, v{Y[0]}
        v_cmp_gt_u32 s[60:61], 2, v3
        v_lshlrev_b32 v{Y[1]}, 2, v2
        v_lshlrev_b32 v{Y[1]+1}, 3, v2
        v_cndmask_b32 v{Y[1]}, v{Y[1]}, v{Y[1]+1}, s[60:61]
        v_lshl_add_u32 v{Y[1]}, v3, 7, v{Y[1]}
        v_mov_b32 v{Y[1]+1}, 64
        v_cndmask_b32 v{Y[1]+1}, v{Y[1]+1}, 4, s[60:61]
        v_add_u32 v{Y[1]+1}, v{Y[1]}, v{Y[1]+1}
        v_lshlrev_b32 v{Y[2]}, 7, v3
        v_lshl_add_u32 v{Y[2]}, v2, 1, v{Y[2]}
        v_add_u32 v{Y[0]}, s58, v{Y[0]}
        v_add_u32 v{Y[1]}, s58, v{Y[1]}
        v_add_u32 v{Y[1]+1}, s58, v{Y[1]+1}
        v_add_u32 v{Y[2]}, s58, v{Y[2]}
        s_waitcnt lgkmcnt(0)
        """)
        for i in range(12): o(f"v_add_f32 v{GA+i}, v{GA+i}, v{X[0]+i}")
        g = Y[4]
        for i in range(6): o(f"v_cvt_pk_bf16_f32 v{g+i}, v{GA+2*i}, v{GA+2*i+1}")
        o(f"""
        ds_write_b64 v{Y[0]}, {vr(g,2)}
        ds_write_b32 v{Y[1]}, v{g+2} offset:512
        ds_write_b32 v{Y[1]+1}, v{g+3} offset:512
        ds_write_b16 v{Y[2]}, v{g+4} offset:1024
        ds_write_b16_d16_hi v{Y[2]}, v{g+4} offset:1056
        ds_write_b16 v{Y[2]}, v{g+5} offset:1088
        ds_write_b16_d16_hi v{Y[2]}, v{g+5} offset:1120
        """)
        o.lab("K1_A_F5")
    def f6():
        o(f"""
        s_lshl_b32 s60, s57, 10
        v_add_u32 v{T}, s60, v{T}
        ds_read_b128 {vr(X[0],4)}, v{T}
        s_mul_i32 s59, s56, {GC_SZ}
        s_add_u32 s59, s59, {GC_OFF:#x}
        s_add_u32 s59, s59, s60
        v_lshlrev_b32 v{Y[0]}, 4, v0
        s_sub_u32 s60, s57, 1
        s_waitcnt lgkmcnt(0)
        s_mov_b32 exec_hi, s60
        buffer_store_dwordx4 {vr(X[0],4)}, v{Y[0]}, s[20:23], s59 offen
        s_mov_b32 exec_hi, -1
        """)
    gemm("A", {0: f5, 1: f6})
    o("s_branch K1_EPI")

    o.lab("K1_B")
    if OPT.get("AUXLATE"):
        for n in range(2): dma(n)
    srd(o, 16, 10, 2048*1024)
    o(f"""
    s_sub_u32 s55, s3, 4            ; w-4
    s_and_b32 s56, s2, 31           ; lb
    s_lshr_b32 s57, s2, 5           ; cb
    v_sub_u32 v80, 7, v10
    v_lshlrev_b32 v80, 10, v80
    v_lshl_add_u32 v80, v11, 4, v80
    s_lshl_b32 s58, s56, 6
    s_add_u32 s58, s58, 56
    s_lshl_b32 s59, s55, 4
    s_sub_u32 s58, s58, s59
    s_lshl_b32 s58, s58, 10
    s_lshl_b32 s59, s57, 7
    s_add_u32 s58, s58, s59
    s_lshl_b32 s59, s55, 11
    s_add_u32 m0, s59, {K1_UT}
    s_nop 0
    buffer_load_dwordx4 v80, s[16:19], s58 offen lds
    s_sub_u32 s58, s58, 8192
    s_add_u32 m0, m0, 1024
    s_nop 0
    buffer_load_dwordx4 v80, s[16:19], s58 offen lds
    s_cmp_ge_u32 s55, 2
    s_cbranch_scc1 K1_BG
    """)
    srd(o, 16, 8, 512*1024)
    o(f"""
    v_lshlrev_b32 v80, 10, v10
    v_lshl_add_u32 v80, v11, 4, v80
    s_lshr_b32 s58, s2, 3
    s_lshl_b32 s58, s58, 1
    s_add_u32 s58, s58, s55
    s_lshl_b32 s58, s58, 13
    s_and_b32 s59, s2, 7
    s_lshl_b32 s59, s59, 7
    s_add_u32 s58, s58, s59
    s_lshl_b32 s59, s55, 10
    s_add_u32 m0, s59, {K1_WO}
    s_nop 0
    buffer_load_dwordx4 v80, s[16:19], s58 offen lds
    """)
    o.lab("K1_BG")
    if not OPT.get("AUXLATE"):
        for n in range(2): dma(n)
    addrs()
    def g1():
        o(f"""
        v_bfe_u32 v80, v0, 2, 2
        v_lshl_add_u32 v81, v3, 3, v80
        v_lshlrev_b32 v81, 7, v81
        v_and_b32 v82, 3, v0
        v_lshl_add_u32 v81, v82, 3, v81
        s_lshl_b32 s58, s55, 5
        s_add_u32 s58, s58, {K1_UT}
        v_add_u32 v81, s58, v81
        ds_read_b64_tr_b16 v[88:89], v81
        ds_read_b64_tr_b16 v[90:91], v81 offset:512
        ds_read_b64_tr_b16 v[92:93], v81 offset:4096
        ds_read_b64_tr_b16 v[94:95], v81 offset:4608
        v_lshrrev_b32 v83, 5, v0
        v_lshl_add_u32 v83, v83, 2, v80
        v_lshlrev_b32 v83, 7, v83
        v_and_b32 v84, 1, v3
        v_lshl_add_u32 v83, v84, 5, v83
        v_lshl_add_u32 v83, v82, 3, v83
        s_and_b32 s58, s55, 1
        s_lshl_b32 s59, s58, 6
        s_add_u32 s59, s59, {K1_WO}
        v_add_u32 v83, s59, v83
        ds_read_b64_tr_b16 v[96:97], v83
        ds_read_b64_tr_b16 v[98:99], v83 offset:1024
        v_lshlrev_b32 v85, 12, v2
        v_lshl_add_u32 v85, v3, 4, v85
        s_lshl_b32 s59, s57, 6
        s_lshl_b32 s60, s55, 4
        s_add_u32 s59, s59, s60
        s_lshl_b32 s59, s59, 12
        s_add_u32 s59, s59, {UT_OFF + 3968:#x}
        s_lshl_b32 s60, s56, 7
        s_sub_u32 s59, s59, s60
        v_lshlrev_b32 v86, 4, v0
        s_and_b32 s60, s2, 7
        s_lshl_b32 s60, s60, 1
        s_add_u32 s60, s60, s58
        s_lshl_b32 s60, s60, 5
        s_lshr_b32 s61, s2, 3
        s_add_u32 s60, s60, s61
        s_lshl_b32 s60, s60, 10
        s_add_u32 s60, s60, {WOF_OFF:#x}
        """)
    def g7():
        o(f"""
        s_waitcnt lgkmcnt(0)
        buffer_store_dwordx4 v[88:91], v85, s[20:23], s59 offen
        buffer_store_dwordx4 v[92:95], v85, s[20:23], s59 offen offset:64
        s_cmp_ge_u32 s55, 2
        s_cbranch_scc1 K1_B_G1
        buffer_store_dwordx4 v[96:99], v86, s[20:23], s60 offen
        """)
        o.lab("K1_B_G1")
    def g17(): g1(); g7()
    gemm("B", {(1 if OPT.get("AUXLATE") else 0): g17})

    o.lab("K1_EPI")
    if not FINE: stamp(o, 3)
    o(f"""
    v_lshlrev_b32 v4, 4, v0
    s_lshl_b32 s49, s27, 2
    s_add_u32 s49, s49, s48         ; head
    s_lshl_b32 s49, s49, 6
    s_lshl_b32 s50, s26, 1
    s_add_u32 s49, s49, s50
    s_add_u32 s49, s49, s30
    s_lshl_b32 s50, s49, 11
    s_lshl_b32 s49, s49, 10
    s_add_u32 s50, s50, {KV_OFF:#x}
    s_mov_b32 s51, {f2u(0.25*LOG2E):#x}
    s_nop 4
    """)
    for i in range(8): o(f"v_mul_f32 v{ACC+i}, s51, v{ACC+i}")
    for a in range(6):
        b = ACC + 4 * a
        o(f"v_cvt_pk_bf16_f32 v{FR+2*a}, v{b}, v{b+1}")
        o(f"v_cvt_pk_bf16_f32 v{FR+1+2*a}, v{b+2}, v{b+3}")
    o("s_nop 1")
    for a in range(3):
        o(f"v_permlane16_swap_b32 v{FR+4*a}, v{FR+4*a+2}")
        o(f"v_permlane16_swap_b32 v{FR+4*a+1}, v{FR+4*a+3}")
    o("s_nop 1")
    for a, (so, off) in enumerate(((49, 0), (50, 0), (50, 1024))):
        o(f"buffer_store_dwordx4 {vr(FR+4*a,4)}, v4, s[20:23], s{so} offen offset:{off}")
    stamp_out(o, 0)
    o.lab("K1_END0")
    o("s_endpgm")

K2_LDS = 131072 + 26624
K2_EARLY = 6
def k2(o):
    kstart(o, "k2_kernel")
    rstamp(o, 0); stamp(o, 1)
    o(f"""
    s_cmp_ge_u32 s2, 256
    s_cbranch_scc1 K2_END0
    s_load_dwordx2 s[28:29], s[0:1], 112
    s_load_dwordx2 s[4:5], s[0:1], 24
    s_load_dwordx4 s[8:11], s[0:1], 88
    v_lshrrev_b32 v1, 6, v0
    v_and_b32 v0, 63, v0
    s_nop 0
    v_readfirstlane_b32 s3, v1
    v_lshlrev_b32 v1, 4, v0
    s_and_b32 s24, s2, 7
    s_lshr_b32 s25, s2, 3
    s_waitcnt lgkmcnt(0)
    """)
    if FINE: stamp(o, 3)
    srd(o, 20, 28, WS_USED)
    if OPT.get("K2EXIT"):
        stamp_out(o, 1)
        o("s_endpgm")
    o(f"""
    s_lshl_b32 s26, s24, 2
    s_and_b32 s27, s25, 3
    s_add_u32 s26, s26, s27         ; head
    s_lshr_b32 s27, s25, 2          ; qb
    s_lshl_b32 s31, s3, 10
    s_lshl_b32 s30, s26, 17
    s_add_u32 s30, s30, {KV_OFF:#x}
    s_add_u32 s30, s30, s31
    s_mov_b32 m0, s31
    s_cmp_ge_u32 s3, 4
    s_cbranch_scc1 K2_CONV
    """)
    QA, QB, NMA, NMB, OA, OB, SX, SY = 4, 8, 12, 28, 44, 60, 76, 92
    KF, V0, V1, IDX, AD, MB = (108, 112), (116, 120), (124, 128), 132, 2, 133
    o(f"""
    s_lshl_b32 s35, s26, 6
    s_lshl_b32 s36, s27, 3
    s_add_u32 s35, s35, s36
    s_lshl_b32 s36, s3, 1
    s_add_u32 s35, s35, s36
    s_lshl_b32 s35, s35, 10
    buffer_load_dwordx4 v1, s[20:23], s30 offen lds
    buffer_load_dwordx4 {vr(QA,4)}, v1, s[20:23], s35 offen
    buffer_load_dwordx4 {vr(QB,4)}, v1, s[20:23], s35 offen offset:1024
    s_add_u32 s30, s30, 8192
    s_add_u32 m0, m0, 8192
    s_nop 0
    buffer_load_dwordx4 v1, s[20:23], s30 offen lds
    """)
    def vinit():
        o("s_mov_b64 exec, s[42:43]")
        for r in range(V0[0], V0[0] + 16): o(f"v_mov_b32 v{r}, 0x3f803f80")
        o("s_not_b64 exec, exec")
        for r in range(V0[0], V0[0] + 16): o(f"v_mov_b32 v{r}, 0")
        o("s_mov_b64 exec, -1")
    o(f"""
    s_mov_b32 s40, 0xffff
    s_mov_b32 s41, 0xffff
    s_mov_b32 s42, 0x110000
    s_mov_b32 s43, 0x110000
    s_mov_b32 s34, 0
    v_mov_b32 v{IDX}, 0xdddd
    """)
    vinit()
    if OPT.get("APRIO"): o(f"s_setprio {OPT['APRIO']}")
    o("s_waitcnt vmcnt(0)")
    o("s_barrier")
    stamp(o, 2)
    o(f"""
    ds_read_b128 {vr(KF[0],4)}, v1
    ds_read_b128 {vr(KF[1],4)}, v1 offset:2048
    s_mov_b64 exec, s[40:41]
    ds_read_b128 {vr(V0[0],4)}, v1 offset:1024
    ds_read_b128 {vr(V1[0],4)}, v1 offset:1280
    s_mov_b64 exec, -1
    s_waitcnt lgkmcnt(3)
    v_mfma_f32_32x32x16_bf16 {vr(SX,16)}, {vr(KF[0],4)}, {vr(QA,4)}, 0
    v_mfma_f32_32x32x16_bf16 {vr(SY,16)}, {vr(KF[0],4)}, {vr(QB,4)}, 0
    """)
    for i in range(16): o(f"v_mov_b32 v{OA+i}, 0")
    def maxred(src, dst):
        o(f"v_max3_f32 v{dst}, v{src}, v{src+1}, v{src+2}")
        for i in range(3, 15, 2): o(f"v_max3_f32 v{dst}, v{dst}, v{src+i}, v{src+i+1}")
        o(f"v_max_f32 v{dst}, v{dst}, v{src+15}")
    maxred(SX, 3)
    maxred(SY, MB)
    o.lab("K2_PASS")
    o(f"""
    v_mov_b32 v{AD}, v3
    v_mov_b32 v{MB+1}, v{MB}
    s_nop 1
    v_permlane32_swap_b32 v3, v{AD}
    v_permlane32_swap_b32 v{MB}, v{MB+1}
    s_nop 1
    v_max_f32 v3, v3, v{AD}
    v_max_f32 v{MB}, v{MB}, v{MB+1}
    v_mov_b32 v{AD}, v1
    """)
    for i in range(16): o(f"v_sub_f32 v{NMA+i}, 0, v3")
    o("s_nop 1")
    o(f"v_mfma_f32_32x32x16_bf16 {vr(SX,16)}, {vr(KF[0],4)}, {vr(QA,4)}, {vr(NMA,16)}")
    for i in range(16): o(f"v_sub_f32 v{NMB+i}, 0, v{MB}")
    for i in range(16): o(f"v_mov_b32 v{OB+i}, 0")
    for i in range(8, 16): o(f"v_mov_b32 v{SY+i}, 0")
    o(f"""
    s_mov_b32 s32, 0                ; iteration
    s_cmp_eq_u32 s34, 0
    s_cselect_b32 s33, 1, 16        ; limit
    """)
    o.raw(".p2align 6")
    o.lab("K2_LOOP")
    def ex(X, a, b):
        for i in range(a, b): o(f"v_exp_f32 v{X+i}, v{X+i}")
    for u in range(4):
        p = u & 1
        ex(SX, 0, 3)
        o("s_waitcnt lgkmcnt(0)")
        o(f"v_smfmac_f32_32x32x32_bf16 {vr(OB,16)}, {vr(V1[p^1],4)}, {vr(SY+8,8)}, v{IDX}")
        o("s_mov_b64 exec, s[40:41]")
        o(f"ds_read_b128 {vr(V0[p^1],4)}, v{AD} offset:{(u+1)*2048+1024}")
        o(f"ds_read_b128 {vr(V1[p^1],4)}, v{AD} offset:{(u+1)*2048+1280}")
        o("s_mov_b64 exec, -1")
        ex(SX, 3, 8)
        o(f"v_mfma_f32_32x32x16_bf16 {vr(SY,16)}, {vr(KF[p],4)}, {vr(QB,4)}, {vr(NMB,16)}")
        o(f"ds_read_b128 {vr(KF[p],4)}, v{AD} offset:{(u+2)*2048}")
        ex(SX, 8, 13)
        o(f"v_smfmac_f32_32x32x32_bf16 {vr(OA,16)}, {vr(V0[p],4)}, {vr(SX,8)}, v{IDX}")
        ex(SX, 13, 16)
        if u == 3:
            o(f"v_add_u32 v{AD}, 8192, v{AD}")
            o("s_add_u32 s32, s32, 1")
            o("s_cmp_lt_u32 s32, s33")
        ex(SY, 0, 3)
        o(f"v_smfmac_f32_32x32x32_bf16 {vr(OA,16)}, {vr(V1[p],4)}, {vr(SX+8,8)}, v{IDX}")
        ex(SY, 3, 8)
        o(f"v_mfma_f32_32x32x16_bf16 {vr(SX,16)}, {vr(KF[p^1],4)}, {vr(QA,4)}, {vr(NMA,16)}")
        ex(SY, 8, 13)
        o(f"v_smfmac_f32_32x32x32_bf16 {vr(OB,16)}, {vr(V0[p],4)}, {vr(SY,8)}, v{IDX}")
        ex(SY, 13, 16)
    o(f"""
    s_cbranch_scc1 K2_LOOP
    s_cmp_ge_u32 s32, 16
    s_cbranch_scc1 K2_FIN
    s_barrier
    """)
    if not FINE: stamp(o, 4)
    o(f"""
    s_cmp_eq_u32 s32, 1
    s_cselect_b32 s33, 5, 16
    s_branch K2_LOOP
    """)
    o.lab("K2_FIN")
    if not FINE: stamp(o, 5)
    o(f"""
    v_smfmac_f32_32x32x32_bf16 {vr(OB,16)}, {vr(V1[1],4)}, {vr(SY+8,8)}, v{IDX}
    v_mul_f32 v3, 0, v{OA+8}
    """)
    for i in range(8): o(f"v_fma_f32 v3, v{OA+i}, 0, v3")
    o("s_nop 3")
    for i in range(9): o(f"v_fma_f32 v3, v{OB+i}, 0, v3")
    o(f"""
    s_cmp_lg_u32 s34, 0
    s_cbranch_scc1 K2_OUT
    v_cmp_u_f32 vcc, v3, v3
    s_nop 1
    s_cbranch_vccz K2_OUT
    s_mov_b32 s34, 1
    s_mov_b32 s32, 0
    v_mov_b32 v{AD}, v1
    v_mov_b32 v3, 0xff800000
    v_mov_b32 v{MB}, 0xff800000
    s_waitcnt lgkmcnt(0)
    """)
    o.lab("K2_MAXL")
    o(f"""
    ds_read_b128 {vr(KF[0],4)}, v{AD}
    v_add_u32 v{AD}, 2048, v{AD}
    s_waitcnt lgkmcnt(0)
    v_mfma_f32_32x32x16_bf16 {vr(SX,16)}, {vr(KF[0],4)}, {vr(QA,4)}, 0
    v_mfma_f32_32x32x16_bf16 {vr(SY,16)}, {vr(KF[0],4)}, {vr(QB,4)}, 0
    s_nop 15
    """)
    for i in range(0, 16, 2): o(f"v_max3_f32 v3, v3, v{SX+i}, v{SX+i+1}")
    for i in range(0, 16, 2): o(f"v_max3_f32 v{MB}, v{MB}, v{SY+i}, v{SY+i+1}")
    o(f"""
    s_add_u32 s32, s32, 1
    s_cmp_lt_u32 s32, 64
    s_cbranch_scc1 K2_MAXL
    """)
    vinit()
    o(f"""
    ds_read_b128 {vr(KF[0],4)}, v1
    ds_read_b128 {vr(KF[1],4)}, v1 offset:2048
    s_mov_b64 exec, s[40:41]
    ds_read_b128 {vr(V0[0],4)}, v1 offset:1024
    ds_read_b128 {vr(V1[0],4)}, v1 offset:1280
    s_mov_b64 exec, -1
    """)
    for i in range(16): o(f"v_mov_b32 v{OA+i}, 0")
    o("s_waitcnt lgkmcnt(0)")
    o("s_branch K2_PASS")
    o.lab("K2_OUT")
    o(f"""
    v_rcp_f32 v3, v{OA+8}
    v_rcp_f32 v{MB}, v{OB+8}
    s_lshl_b32 s30, s27, 3
    s_lshl_b32 s31, s3, 1
    s_add_u32 s30, s30, s31
    s_lshl_b32 s30, s30, 5
    s_add_u32 s30, s30, s26
    s_lshl_b32 s30, s30, 10
    s_add_u32 s30, s30, {OF_OFF:#x}
    s_add_u32 s31, s30, 32768
    """)
    for i in range(8): o(f"v_mul_f32 v{OA+i}, v{OA+i}, v3")
    for i in range(4): o(f"v_cvt_pk_bf16_f32 v{SX+i}, v{OA+2*i}, v{OA+2*i+1}")
    o(f"buffer_store_dwordx4 {vr(SX,4)}, v1, s[20:23], s30 offen")
    for i in range(8): o(f"v_mul_f32 v{OB+i}, v{OB+i}, v{MB}")
    for i in range(4): o(f"v_cvt_pk_bf16_f32 v{SX+4+i}, v{OB+2*i}, v{OB+2*i+1}")
    o(f"buffer_store_dwordx4 {vr(SX+4,4)}, v1, s[20:23], s31 offen")
    stamp_out(o, 1)
    o("s_endpgm")

    CHL = 131072
    L_E, L_C1, L_UT, L_U1 = 4160, 8320, 16640, 4608
    o.lab("K2_CONV")
    srd(o, 16, 10, 2048*2048)
    o(f"""
    buffer_load_dwordx4 v1, s[20:23], s30 offen lds
    s_add_u32 s30, s30, 8192
    s_add_u32 m0, m0, 8192
    s_sub_u32 s3, s3, 4             ; w'
    buffer_load_dwordx4 v1, s[20:23], s30 offen lds
    s_add_u32 s30, s30, 4096
    s_add_u32 m0, m0, 4096
    s_lshl_b32 s31, s3, 10
    """)
    def kvdma(n):
        for i in range(n):
            o("s_nop 0")
            o("buffer_load_dwordx4 v1, s[20:23], s30 offen lds")
            o("s_add_u32 s30, s30, 4096")
            o("s_add_u32 m0, m0, 4096")
    kvdma(8)
    o(f"""
    s_lshl_b32 s26, s24, 5
    s_add_u32 s26, s26, s25
    s_lshl_b32 s32, s26, 2
    s_lshr_b32 s33, s3, 1           ; ch'
    s_and_b32 s34, s3, 1
    s_lshl_b32 s35, s26, 1
    s_add_u32 s35, s35, s33
    s_mul_i32 s35, s35, {GC_SZ}
    s_add_u32 s35, s35, {GC_OFF:#x}
    v_lshlrev_b32 v5, 3, v0
    v_lshlrev_b32 v6, 2, v0
    v_mov_b32 v7, 0
    v_mov_b32 v8, s32
    s_waitcnt vmcnt(8)
    s_barrier
    buffer_load_dwordx2 v[50:51], v5, s[20:23], s35 offen
    buffer_load_dword v52, v5, s[20:23], s35 offen offset:8
    buffer_load_dwordx2 v[54:55], v6, s[20:23], s35 offen offset:512
    buffer_load_dwordx2 v[56:57], v6, s[20:23], s35 offen offset:768
    buffer_load_dwordx2 v[58:59], v6, s[20:23], s35 offen offset:1024
    buffer_load_ushort v60, v7, s[20:23], s35 offen
    global_load_dword v16, v8, s[8:9]
    """)
    kvdma(K2_EARLY)
    o(f"""
    s_waitcnt vmcnt({7 + K2_EARLY})
    s_barrier
    s_mov_b32 s38, m0
    s_lshl_b32 s36, s26, 13
    s_add_u32 s36, s36, {UT_OFF:#x}
    s_add_u32 s36, s36, s31
    s_add_u32 m0, s31, {CHL + L_UT}
    s_nop 0
    buffer_load_dwordx4 v1, s[20:23], s36 offen lds
    s_add_u32 s36, s36, 4096
    s_add_u32 m0, m0, {L_U1}
    s_nop 0
    buffer_load_dwordx4 v1, s[20:23], s36 offen lds
    s_mov_b32 m0, s38
    """)
    kvdma(20 - K2_EARLY)
    o(f"""
    v_and_b32 v2, 15, v0
    v_lshrrev_b32 v3, 4, v0
    s_sub_u32 s27, 7, s3            ; iH
    v_lshlrev_b32 v4, 2, v3
    v_lshl_add_u32 v4, v2, 4, v4    ; 16a+4g
    v_lshlrev_b32 v9, 1, v4
    v_sub_u32 v9, {CHL + L_UT + 4088}, v9
    v_lshlrev_b32 v4, 11, v4        ; *2048 (out)
    ; A addresses
    v_and_b32 v10, 1, v2
    v_mul_u32_u24 v17, {L_E}, v10
    v_add_u32 v11, v2, v10
    v_lshl_add_u32 v17, v11, 1, v17
    v_lshl_add_u32 v17, v3, 4, v17
    v_add_u32 v17, {CHL}, v17       ; A ch0
    v_add_u32 v18, {L_C1}, v17      ; A ch1
    v_lshlrev_b32 v10, 5, v2
    v_lshlrev_b32 v11, 4, v3
    v_sub_u32 v11, v11, v10
    v_add_u32 v11, {CHL + L_UT + 4064}, v11
    s_lshl_b32 s35, s27, 9
    s_lshl_b32 s36, s3, 9
    v_subrev_u32 v19, s35, v11      ; B H
    v_subrev_u32 v20, s36, v11      ; B L
    v_subrev_u32 v21, s35, v9       ; skip H
    v_subrev_u32 v22, s36, v9       ; skip L
    s_mul_i32 s38, s33, {L_C1}
    s_xor_b32 s39, s34, 1
    s_mul_i32 s39, s39, {L_E}
    s_add_u32 s38, s38, s39
    s_add_u32 s38, s38, {CHL}
    v_add_u32 v5, s38, v5           ; +8t
    v_lshl_add_u32 v6, v0, 4, s38   ; +16t
    v_lshl_add_u32 v7, v0, 5, s38   ; +32t
    v_lshl_add_u32 v8, v0, 2, s38   ; +4t
    s_mul_i32 s39, s33, {L_U1}
    s_add_u32 s39, s39, {CHL + L_UT + 4096}
    v_lshl_add_u32 v10, v0, 3, s39
    s_mov_b32 s40, 0x01000100
    s_mov_b32 s41, 0x03020302
    v_mov_b32 v92, 0
    v_mov_b32 v93, 0
    v_cmp_eq_u32 s[42:43], 7, v0
    s_waitcnt vmcnt({22 - K2_EARLY + K2_EARLY})
    s_cmp_eq_u32 s34, 0
    s_cbranch_scc0 K2_XO
    v_perm_b32 v64, v54, v54, s40
    v_alignbit_b32 v65, v55, v54, 16
    v_perm_b32 v68, v56, v56, s40
    v_mov_b32 v69, v56
    v_perm_b32 v70, v56, v56, s41
    v_perm_b32 v71, v57, v57, s40
    v_perm_b32 v76, v58, v58, s40
    v_mov_b32 v77, v76
    v_mov_b32 v78, v58
    v_perm_b32 v79, v58, v58, s41
    v_mov_b32 v80, v79
    v_mov_b32 v81, v79
    v_perm_b32 v82, v59, v59, s40
    v_mov_b32 v83, v82
    v_mov_b32 v60, 0
    ds_write_b64 v10, v[92:93]
    s_branch K2_XW
    """)
    o.lab("K2_XO")
    o(f"""
    v_alignbit_b32 v50, v51, v50, 16
    v_alignbit_b32 v51, v52, v51, 16
    v_mov_b32 v64, v54
    v_perm_b32 v65, v55, v55, s40
    v_perm_b32 v68, v56, v56, s40
    v_perm_b32 v69, v56, v56, s41
    v_alignbit_b32 v70, v57, v56, 16
    v_perm_b32 v71, v57, v57, s40
    v_perm_b32 v76, v58, v58, s40
    v_mov_b32 v77, v76
    v_perm_b32 v78, v58, v58, s41
    v_mov_b32 v79, v78
    v_mov_b32 v80, v78
    v_alignbit_b32 v81, v59, v58, 16
    v_perm_b32 v82, v59, v59, s40
    v_mov_b32 v83, v82
    v_lshlrev_b32 v60, 16, v60
    v_cndmask_b32 v60, 0, v60, s[42:43]
    """)
    o.lab("K2_XW")
    o(f"""
    ds_write_b64 v5, v[50:51] offset:32
    ds_write_b64 v5, v[64:65] offset:544
    ds_write_b128 v6, v[68:71] offset:1056
    ds_write_b128 v7, v[76:79] offset:2080
    ds_write_b128 v7, v[80:83] offset:2096
    s_mov_b64 exec, 0xff
    ds_write_b32 v8, v60
    s_mov_b64 exec, -1
    """)
    CA = 24
    for i in range(16): o(f"v_mov_b32 v{CA+i}, 0")
    FB = 40
    def creads(st, both):
        b = FB + (st & 1) * 24
        k = st % 8 if st < 8 else 8
        return b
    def issue(buf, k, both):
        b = FB + buf * 24
        o(f"ds_read2_b32 {vr(b,2)}, v17 offset0:{16*k} offset1:{16*k+1}")
        o(f"ds_read2_b32 {vr(b+2,2)}, v17 offset0:{16*k+2} offset1:{16*k+3}")
        o(f"ds_read2_b32 {vr(b+4,2)}, v18 offset0:{16*k} offset1:{16*k+1}")
        o(f"ds_read2_b32 {vr(b+6,2)}, v18 offset0:{16*k+2} offset1:{16*k+3}")
        o(f"ds_read_b128 {vr(b+8,4)}, v19 offset:{64*k}")
        o(f"ds_read_b128 {vr(b+12,4)}, v19 offset:{64*k+L_U1}")
        if both:
            o(f"ds_read_b128 {vr(b+16,4)}, v20 offset:{64*k}")
            o(f"ds_read_b128 {vr(b+20,4)}, v20 offset:{64*k+L_U1}")
    def cloop(lab, both):
        o.lab(lab)
        for k in range(8):
            issue((k + 1) & 1, k + 1, both)
            o(f"s_waitcnt lgkmcnt({8 if both else 6})")
            b = FB + (k & 1) * 24
            o(f"v_mfma_f32_16x16x32_bf16 {vr(CA,4)}, {vr(b,4)}, {vr(b+8,4)}, {vr(CA,4)}")
            o(f"v_mfma_f32_16x16x32_bf16 {vr(CA+4,4)}, {vr(b+4,4)}, {vr(b+12,4)}, {vr(CA+4,4)}")
            if both:
                o(f"v_mfma_f32_16x16x32_bf16 {vr(CA+8,4)}, {vr(b,4)}, {vr(b+16,4)}, {vr(CA+8,4)}")
                o(f"v_mfma_f32_16x16x32_bf16 {vr(CA+12,4)}, {vr(b+4,4)}, {vr(b+20,4)}, {vr(CA+12,4)}")
        for r in (17, 18, 19, 20): o(f"v_add_u32 v{r}, 512, v{r}")
        o("s_add_u32 s37, s37, 1")
    o(f"""
    s_waitcnt vmcnt(0) lgkmcnt(0)
    s_barrier
    s_mov_b32 s37, 0
    """)
    stamp(o, 2)
    if OPT.get("NOCONV"):
        stamp_out(o, 1, wadd=4)
        o("s_endpgm")
    if OPT.get("CPRIO"): o(f"s_setprio {OPT['CPRIO']}")
    issue(0, 0, True)
    cloop("K2_CA", True)
    o("s_cmp_le_u32 s37, s3")
    o("s_cbranch_scc1 K2_CA")
    cloop("K2_CB", False)
    o("s_cmp_le_u32 s37, s27")
    o("s_cbranch_scc1 K2_CB")
    stamp(o, 3)
    o(f"""
    ds_read_b64 v[8:9], v21
    ds_read_b64 v[10:11], v21 offset:{L_U1}
    ds_read_b64 v[12:13], v22
    ds_read_b64 v[14:15], v22 offset:{L_U1}
    v_lshlrev_b32 v6, 16, v16       ; D0
    v_and_b32 v7, 0xffff0000, v16   ; D1
    s_lshl_b32 s33, s27, 19
    s_add_u32 s33, s33, s32
    s_add_u32 s33, s33, 1024
    s_lshl_b32 s34, s3, 19
    s_add_u32 s34, s34, s32
    s_add_u32 s34, s34, 1024
    s_add_u32 s35, s33, 4096
    s_add_u32 s36, s34, 4096
    s_waitcnt lgkmcnt(0)
    """)
    for blk in range(2):
        for r in range(4):
            y0, y1 = CA + 8 * blk + r, CA + 8 * blk + 4 + r
            for c, y, dd in ((0, y0, 6), (1, y1, 7)):
                src = 8 + 4 * blk + 2 * c + (1 - (r >> 1))
                if r & 1: o(f"v_lshlrev_b32 v{40+c}, 16, v{src}")
                else:     o(f"v_and_b32 v{40+c}, 0xffff0000, v{src}")
                o(f"v_fma_f32 v{y}, v{40+c}, v{dd}, v{y}")
            o(f"v_cvt_pk_bf16_f32 v{44+4*blk+r}, v{y0}, v{y1}")
            so = (33, 35)[r >> 1] + blk
            o(f"buffer_store_dword v{44+4*blk+r}, v4, s[16:19], s{so} offen offset:{2048*(r&1)}")
    stamp_out(o, 1, wadd=4)
    o.lab("K2_END0")
    o("s_endpgm")

K3_LDS = 49152
def k3(o):
    kstart(o, "k3_kernel")
    rstamp(o, 0); stamp(o, 1)
    o(f"""
    s_cmp_ge_u32 s2, 256
    s_cbranch_scc1 K3_END0
    s_load_dwordx2 s[28:29], s[0:1], 112
    s_load_dwordx2 s[10:11], s[0:1], 96
    v_lshrrev_b32 v1, 6, v0
    v_and_b32 v0, 63, v0
    s_nop 0
    v_readfirstlane_b32 s3, v1
    v_lshlrev_b32 v1, 4, v0
    s_and_b32 s24, s2, 7
    s_lshr_b32 s25, s2, 3
    s_lshl_b32 s26, s24, 2
    s_and_b32 s27, s25, 3
    s_add_u32 s26, s26, s27         ; tb
    s_lshr_b32 s27, s25, 2          ; nb
    s_and_b32 s30, s3, 1
    s_lshr_b32 s31, s3, 1
    s_lshl_b32 s32, s26, 1
    s_add_u32 s32, s32, s30
    s_xor_b32 s33, s32, 1
    s_lshl_b32 s34, s27, 1
    s_add_u32 s34, s34, s31
    s_xor_b32 s35, s34, 1
    s_lshl_b32 s36, s3, 13          ; w*8 heads*1024
    s_lshl_b32 s40, s34, 15
    s_lshl_b32 s41, s35, 15
    s_lshl_b32 s42, s32, 15
    s_lshl_b32 s43, s33, 15
    s_add_u32 s36, s36, {OF_OFF:#x}
    s_add_u32 s42, s42, s36
    s_add_u32 s43, s43, s36
    s_add_u32 s36, s36, {WOF_OFF-OF_OFF:#x}
    s_add_u32 s40, s40, s36
    s_add_u32 s41, s41, s36
    s_add_u32 s44, s40, 4096
    s_add_u32 s45, s41, 4096
    s_add_u32 s46, s42, 4096
    s_add_u32 s47, s43, 4096
    s_waitcnt lgkmcnt(0)
    """)
    srd(o, 20, 28, WS_USED)
    srd(o, 16, 10, 2048*2048)
    FR = 68
    for h in range(8):
        for k in range(4):
            o(f"buffer_load_dwordx4 {vr(FR+16*h+4*k,4)}, v1, s[20:23], s{40+k+(4 if h>=4 else 0)} offen offset:{1024*(h&3)}")
    AC = 4
    for h in range(8):
        o(f"s_waitcnt vmcnt({28-4*h})")
        if h == 0: stamp(o, 2)
        b = FR + 16 * h
        for k in range(4):
            ka, kb = k >> 1, k & 1
            c = vr(AC + 16 * k, 16)
            o(f"v_mfma_f32_32x32x16_bf16 {c}, {vr(b+4*ka,4)}, {vr(b+8+4*kb,4)}, {c if h else 0}")
    stamp(o, 3)
    o("s_nop 7")
    for k in range(1, 4):
        o(f"s_xor_b32 s36, s3, {k}")
        o(f"s_mul_i32 s36, s36, 12288")
        o(f"v_add_u32 v{2 + (k & 1)}, s36, v1")
        if k == 1: o("s_nop 7")
        for q in range(4):
            o(f"ds_write_b128 v{2 + (k & 1)}, {vr(AC+16*k+4*q,4)} offset:{(k-1)*4096 + q*1024}")
    o(f"""
    s_mul_i32 s36, s3, 12288
    v_add_u32 v2, s36, v1
    s_waitcnt lgkmcnt(0)
    s_barrier
    """)
    for k in range(3):
        for q in range(4):
            o(f"ds_read_b128 {vr(FR+16*k+4*q,4)}, v2 offset:{k*4096 + q*1024}")
    o(f"""
    v_and_b32 v2, 31, v0
    v_lshlrev_b32 v2, 11, v2
    v_lshrrev_b32 v3, 5, v0
    v_lshl_add_u32 v2, v3, 4, v2
    s_lshl_b32 s36, s32, 16
    s_lshl_b32 s37, s34, 6
    s_add_u32 s36, s36, s37
    """)
    for k in range(3):
        o(f"s_waitcnt lgkmcnt({8-4*k})")
        for i in range(16): o(f"v_add_f32 v{AC+i}, v{AC+i}, v{FR+16*k+i}")
    for i in range(8): o(f"v_cvt_pk_bf16_f32 v{24+i}, v{AC+2*i}, v{AC+2*i+1}")
    o(f"""
    s_nop 1
    v_permlane32_swap_b32 v24, v26
    v_permlane32_swap_b32 v25, v27
    v_permlane32_swap_b32 v28, v30
    v_permlane32_swap_b32 v29, v31
    s_nop 1
    buffer_store_dwordx4 v[24:27], v2, s[16:19], s36 offen
    buffer_store_dwordx4 v[28:31], v2, s[16:19], s36 offen offset:32
    """)
    stamp_out(o, 2)
    o.lab("K3_END0")
    o("s_endpgm")

def main(out):
    hdr = open(f"cdna_kernels/{NAME}.s.ref").read().split("; Override launch")[0]
    o = A()
    o.raw(hdr.rstrip())
    for _ in range(OPT.get("PRE", 0)): o.raw("; @launch kernel=k0_kernel grid=(1,1,1) block=(64,1,1) lds=0")
    o.raw(f"; @launch kernel=k1_kernel grid=(256,1,1) block=(512,1,1) lds={K1_LDS}")
    o.raw(f"; @launch kernel=k2_kernel grid=(256,1,1) block=(512,1,1) lds={K2_LDS}")
    o.raw(f"; @launch kernel=k3_kernel grid=(256,1,1) block=(256,1,1) lds={K3_LDS}")
    for _ in range(OPT.get("POST", 0)): o.raw("; @launch kernel=k0_kernel grid=(1,1,1) block=(64,1,1) lds=0")
    o.raw('.amdgcn_target "amdgcn-amd-amdhsa--gfx950"\n.text')
    if OPT.get("PRE") or OPT.get("POST"):
        kstart(o, "k0_kernel"); o("s_endpgm")
    k1(o); k2(o); k3(o)
    o.raw('.section .rodata,"a"')
    if OPT.get("PRE") or OPT.get("POST"): o.raw(kdesc("k0_kernel", 8))
    o.raw(kdesc("k1_kernel", 256))
    o.raw(kdesc("k2_kernel", 136))
    o.raw(kdesc("k3_kernel", 196))
    txt = o.text()
    if STFLAG:
        import re
        txt = "\n".join((l + " " + STFLAG) if l.strip().startswith("buffer_store") and "s80" not in l and "s[16:19]" not in l else l for l in txt.split("\n"))
    open(out, "w").write(txt)

if __name__ == "__main__":
    if "--stamp" in sys.argv:
        STAMP = True; sys.argv.remove("--stamp")
    for a_ in list(sys.argv):
        if a_.startswith("-D"):
            kk, _, vv = a_[2:].partition("="); OPT[kk] = int(vv or 1); sys.argv.remove(a_)
    for a_ in list(sys.argv):
        if a_.startswith("--st="):
            STFLAG = a_[5:].replace(",", " "); sys.argv.remove(a_)
    if "--fine2" in sys.argv:
        FINE2 = True; sys.argv.remove("--fine2")
    if "--fine" in sys.argv:
        FINE = True; sys.argv.remove("--fine")
    main(sys.argv[1] if len(sys.argv) > 1 else f"cdna_kernels/{NAME}.s")
```

```python
import sys, math, struct

NAME = "concat_heads__softmax_full_mha__ssm_conv_s4__prompt"

QF_OFF  = 0
KV_OFF  = 2 << 20
OF_OFF  = 6 << 20
WOF_OFF = 8 << 20
UT_OFF  = 9 << 20
GC_OFF  = 11 << 20
GC_SZ   = 1536
ST1 = ""
WS_USED = 32 << 20

def f2u(x): return struct.unpack('<I', struct.pack('<f', x))[0]
LOG2E = 1.4426950408889634

class A:
    def __init__(s): s.l = []
    def __call__(s, t):
        for x in t.split("\n"):
            x = x.strip()
            if x: s.l.append("    " + x)
    def lab(s, n): s.l.append(n + ":")
    def raw(s, t): s.l.append(t)
    def text(s): return "\n".join(s.l) + "\n"

def vr(a, n): return f"v[{a}:{a+n-1}]" if n > 1 else f"v{a}"
def sr(a, n): return f"s[{a}:{a+n-1}]" if n > 1 else f"s{a}"

def srd(o, d, b, size, add=0):
    if add:
        o(f"s_add_u32 s{d}, s{b}, {add:#x}")
        o(f"s_addc_u32 s{d+1}, s{b+1}, 0")
    else:
        o(f"s_mov_b32 s{d}, s{b}")
        o(f"s_mov_b32 s{d+1}, s{b+1}")
    o(f"s_mov_b32 s{d+2}, {size:#x}")
    o(f"s_mov_b32 s{d+3}, 0x00020000")

class Sched:
    def __init__(s): s.ops = []
    def add(s, text, defs, uses, lat=8, cost=4, trans=False):
        s.ops.append(dict(t=text, d=set(defs), u=set(uses), lat=lat, cost=cost, tr=trans))
    def emit(s, o):
        ops = s.ops; n = len(ops)
        pred = [[] for _ in ops]
        lastw, readers = {}, {}
        for i, op in enumerate(ops):
            for r in op['u']:
                if r in lastw: pred[i].append((lastw[r], ops[lastw[r]]['lat']))
            for r in op['d']:
                if r in lastw: pred[i].append((lastw[r], 4))
                for j in readers.get(r, []):
                    if j != i: pred[i].append((j, 8))
            for r in op['u']: readers.setdefault(r, []).append(i)
            for r in op['d']: lastw[r] = i; readers[r] = []
        succ = [[] for _ in ops]
        for i in range(n):
            for j, l in pred[i]: succ[j].append((i, l))
        cp = [0] * n
        for i in reversed(range(n)):
            cp[i] = ops[i]['cost'] + max([l + cp[k] for k, l in succ[i]], default=0)
        done, when, t, last = set(), {}, 0, None
        while len(done) < n:
            cand = [i for i in range(n) if i not in done and all(j in done for j, _ in pred[i])]
            rdy = {i: max([when[j] + l for j, l in pred[i]], default=0) for i in cand}
            now = [i for i in cand if rdy[i] <= t]
            i = max(now, key=lambda k: cp[k]) if now else min(cand, key=lambda k: (rdy[k], -cp[k]))
            if last is not None and ops[last]['tr'] and not ops[i]['tr'] and (ops[last]['d'] & ops[i]['u']): o("s_nop 0")
            t = max(t, rdy[i]); when[i] = t; t += ops[i]['cost']; done.add(i); last = i
            o(ops[i]['t'])
        return t

STAMP = False
FINE = False
FINE2 = False
OPT = {}
STFLAG = 'sc1'
ST_OFF = 16 << 20
def stamp(o, i):
    if OPT.get("DBG"): o(f"s_memrealtime s[{64+2*i}:{65+2*i}]"); return
    if STAMP: o(f"s_memtime s[{64+2*i}:{65+2*i}]")
def rstamp(o, i):
    if STAMP: o(f"s_memrealtime s[{64+2*i}:{65+2*i}]")
def stamp_out(o, kid, wave_sgpr="s3", wadd=0):
    if OPT.get("DBG"):
        lab = f"DBG_{kid}_{len(o.l)}"
        o("s_load_dwordx2 s[82:83], s[0:1], 104")
        o("s_waitcnt vmcnt(0)")
        o("s_memrealtime s[78:79]")
        o("s_and_b32 s80, s2, 7")
        o(f"s_add_u32 s80, s80, {wave_sgpr}")
        o("s_waitcnt lgkmcnt(0)")
        o("s_cmp_lg_u32 s80, 0")
        o(f"s_cbranch_scc1 {lab}")
        o(f"s_add_u32 s82, s82, {(2-kid)*512}")
        o("s_addc_u32 s83, s83, 0")
        o("s_mov_b64 exec, 1")
        o("s_not_b32 s66, s66")
        o("v_mov_b32 v2, 0")
        sl = {0: [(66, 0), (78, 1), (68, 6), (70, 7)], 1: [(66, 2), (78, 3), (68, 8), (74, 9)], 2: [(66, 4), (78, 5), (68, 10), (70, 11)]}[kid]
        if wadd: sl = [(78, 12), (70, 13)]
        for q, (sg, slot) in enumerate(sl):
            o(f"v_mov_b32 v{4+q}, s{sg}")
            o(f"global_atomic_umax v2, v{4+q}, s[82:83] offset:{4*slot}")
        o.lab(lab)
        return
    if not STAMP: return
    o("s_memrealtime s[78:79]")
    o("s_waitcnt lgkmcnt(0)")
    o("s_mov_b64 exec, 1")
    o(f"s_lshl_b32 s80, s2, 4")
    o(f"s_add_u32 s80, s80, {wave_sgpr}")
    o(f"s_add_u32 s80, s80, {kid*8192 + wadd}")
    o(f"s_lshl_b32 s80, s80, 6")
    o(f"s_add_u32 s80, s80, {ST_OFF:#x}")
    o("s_waitcnt vmcnt(0)")
    o("s_memtime s[76:77]")
    o("s_waitcnt lgkmcnt(0)")
    for i in range(16): o(f"v_mov_b32 v{4+i}, s{64+i}")
    o("v_mov_b32 v2, 0")
    for q in range(4): o(f"buffer_store_dwordx4 v[{4+4*q}:{7+4*q}], v2, s[20:23], s80 offen offset:{16*q}")

def kstart(o, name):
    o.raw(f".globl {name}\n.p2align 8\n.type {name},@function")
    o.lab(name)

def kdesc(name, nv, ns=96):
    return f""".p2align 6
.amdhsa_kernel {name}
  .amdhsa_next_free_vgpr {nv}
  .amdhsa_next_free_sgpr {ns}
  .amdhsa_accum_offset {(nv+3)//4*4}
  .amdhsa_group_segment_fixed_size 0
  .amdhsa_kernarg_size 120
  .amdhsa_user_sgpr_count 2
  .amdhsa_user_sgpr_kernarg_segment_ptr 1
  .amdhsa_system_sgpr_workgroup_id_x 1
.end_amdhsa_kernel
"""

STG = 32768
K1_SCR = 4 * STG
K1_UT = K1_SCR + 4 * 4352
K1_WO = K1_UT + 8192
K1_LDS = K1_WO + 2048
def k1(o):
    kstart(o, "k1_kernel")
    rstamp(o, 0); stamp(o, 1)
    o(f"""
    s_cmp_ge_u32 s2, 256
    s_cbranch_scc1 K1_END0
    s_load_dwordx8 s[4:11], s[0:1], 0
    s_load_dwordx2 s[28:29], s[0:1], 112
    s_load_dwordx16 s[32:47], s[0:1], 32
    v_lshrrev_b32 v1, 6, v0
    v_and_b32 v0, 63, v0
    s_nop 0
    v_readfirstlane_b32 s3, v1
    v_and_b32 v2, 15, v0
    v_lshrrev_b32 v3, 4, v0
    s_and_b32 s24, s2, 7
    s_lshr_b32 s25, s2, 3
    s_lshr_b32 s26, s24, 1
    s_lshl_b32 s26, s26, 3
    s_and_b32 s31, s25, 7
    s_add_u32 s26, s26, s31         ; mt (0..31)
    s_and_b32 s27, s24, 1
    s_lshl_b32 s27, s27, 2
    s_lshr_b32 s30, s25, 3
    s_add_u32 s27, s27, s30         ; hg (0..7)
    s_lshl_b32 s30, s30, 1
    s_add_u32 s31, s31, s30
    s_and_b32 s31, s31, {OPT.get("ROTMASK", 7)}
    s_and_b32 s30, s3, 1            ; tg
    s_lshr_b32 s48, s3, 1           ; hq
    s_lshl_b32 s53, s3, 12
    v_lshrrev_b32 v10, 3, v0
    v_and_b32 v11, 7, v0
    """)
    o(f"""
    s_cmp_ge_u32 s3, 2
    s_cbranch_scc1 K1_SW
    v_xor_b32 v76, v11, v3
    v_lshlrev_b32 v76, 4, v76
    v_lshl_add_u32 v76, v10, 10, v76
    s_lshl_b32 s50, s26, 6
    s_lshl_b32 s51, s3, 5
    s_add_u32 s50, s50, s51
    s_lshl_b32 s50, s50, 10
    s_mov_b32 s51, 8192
    s_mov_b32 s52, 128
    s_waitcnt lgkmcnt(0)
    """)
    srd(o, 12, 4, 2048*1024)
    o("s_branch K1_SD")
    o.lab("K1_SW")
    o(f"""
    v_and_b32 v76, 1, v3
    v_lshlrev_b32 v76, 1, v76
    v_xor_b32 v76, v76, v11
    v_lshlrev_b32 v76, 4, v76
    v_mul_u32_u24 v77, 3072, v10
    v_add_u32 v76, v76, v77
    s_sub_u32 s50, s3, 2
    s_lshr_b32 s51, s50, 1
    s_lshl_b32 s51, s51, 10
    s_and_b32 s50, s50, 1
    s_mul_i32 s50, s50, {32*3072}
    s_add_u32 s50, s50, s51
    s_lshl_b32 s51, s27, 7
    s_add_u32 s50, s50, s51
    s_mov_b32 s51, {8*3072}
    s_mov_b32 s52, {64*3072}
    s_waitcnt lgkmcnt(0)
    """)
    srd(o, 12, 6, 512*3072)
    o.lab("K1_SD")
    o("v_xor_b32 v77, 64, v76")
    srd(o, 20, 28, WS_USED)
    if OPT.get("K1EXIT"):
        stamp_out(o, 0)
        o("s_endpgm")
    ACC = 12
    FR = 36
    FR1 = 180
    def dma(n):
        o(f"s_add_u32 s54, s31, {n}")
        o("s_and_b32 s54, s54, 7")
        o("s_mul_i32 s54, s54, s52")
        o("s_add_u32 s54, s54, s50")
        o(f"s_add_u32 m0, s53, {(n & 3) * STG}")
        for q in range(4):
            if q:
                o("s_add_u32 s54, s54, s51")
                o("s_add_u32 m0, m0, 1024")
            o("s_nop 0")
            o(f"buffer_load_dwordx4 v{76 + (q & 1)}, s[12:15], s54 offen lds")
    def addrs():
        o(f"""
        v_lshrrev_b32 v10, 1, v2
        v_xor_b32 v10, v10, v3
        v_lshlrev_b32 v10, 4, v10
        v_lshl_add_u32 v4, v2, 7, v10
        s_lshl_b32 s49, s30, 12
        v_add_u32 v4, s49, v4
        v_xor_b32 v5, 64, v4
        v_add_u32 v6, {2*STG}, v4
        v_add_u32 v7, {2*STG}, v5
        v_bfe_u32 v10, v0, 2, 2
        v_lshl_add_u32 v10, v3, 3, v10
        v_lshlrev_b32 v10, 7, v10
        v_bfe_u32 v11, v0, 3, 2
        v_xor_b32 v11, s48, v11
        v_lshl_add_u32 v10, v11, 5, v10
        v_and_b32 v11, 3, v0
        v_lshl_add_u32 v8, v11, 3, v10
        v_add_u32 v8, 8192, v8
        v_add_u32 v9, {2*STG}, v8
        """)
        for i in range(24): o(f"v_mov_b32 v{ACC+i}, 0")
    def reads(n):
        xa = (4, 5) if (n & 3) < 2 else (6, 7)
        wa = 8 if (n & 3) < 2 else 9
        so = (n & 1) * STG
        for ks in range(2):
            b = (FR1 if n & 1 else FR) + 20 * ks
            o(f"ds_read_b128 {vr(b,4)}, v{xa[ks]} offset:{so}")
            o(f"ds_read_b128 {vr(b+4,4)}, v{xa[ks]} offset:{so + 2048}")
            for p in range(3):
                o(f"ds_read_b64_tr_b16 {vr(b+8+4*p,2)}, v{wa} offset:{so + p*8192 + ks*4096}")
                o(f"ds_read_b64_tr_b16 {vr(b+10+4*p,2)}, v{wa} offset:{so + p*8192 + ks*4096 + 512}")
    def gemm(path, fill):
        if OPT.get("NOCOMP"):
            for n in range(2, 8):
                dma(n)
                if n == 3: stamp(o, 4)
            stamp(o, 5)
            o("s_waitcnt vmcnt(0)")
            stamp(o, 2)
            return
        if FINE: stamp(o, 4)
        o(f"s_waitcnt vmcnt({6 if (path == 'B' and OPT.get('AUXLATE')) else 4}) lgkmcnt(0)")
        if FINE: stamp(o, 5)
        o("s_barrier")
        stamp(o, 2)
        reads(0)
        dma(2)
        dma(3)
        for n in range(8):
            if n < 7:
                N = [8,8,8,8,8,4,0][n]
                if path == "B" and n in ((2, 3, 4) if OPT.get("AUXLATE") else (1, 2, 3)): N += 2
                if path == "A" and n in (2, 3, 4): N += 1
                o(f"s_waitcnt vmcnt({N}) lgkmcnt(0)")
                o("s_barrier")
                if FINE2 and n in (2, 4): stamp(o, 3 + n // 2)
                reads(n + 1)
            else:
                o("s_waitcnt lgkmcnt(0)")
            for ks in range(2):
                b = (FR1 if n & 1 else FR) + 20 * ks
                for tt in range(2):
                    x = vr(b + 4 * tt, 4)
                    o(f"v_mfma_f32_16x16x32_bf16 {vr(ACC+4*tt,4)}, {vr(b+8,4)}, {x}, {vr(ACC+4*tt,4)}")
                for tt in range(2):
                    x = vr(b + 4 * tt, 4)
                    o(f"v_mfma_f32_16x16x32_bf16 {vr(ACC+8+4*tt,4)}, {vr(b+12,4)}, {x}, {vr(ACC+8+4*tt,4)}")
                for tt in range(2):
                    x = vr(b + 4 * tt, 4)
                    o(f"v_mfma_f32_16x16x32_bf16 {vr(ACC+16+4*tt,4)}, {x}, {vr(b+16,4)}, {vr(ACC+16+4*tt,4)}")
            if n + 4 <= 7: dma(n + 4)
            if n in fill: fill[n]()
    o("s_cmp_ge_u32 s3, 4")
    o("s_cbranch_scc1 K1_B")

    P = 80
    o(f"""
    s_lshr_b32 s55, s3, 1
    s_lshl_b32 s56, s2, 1
    s_add_u32 s56, s56, s55         ; ch
    s_and_b32 s57, s3, 1            ; n half
    s_lshl_b32 s58, s56, 8
    s_lshl_b32 s59, s57, 7
    s_add_u32 s58, s58, s59
    v_lshl_add_u32 v10, v0, 1, s58
    s_lshl_b32 s59, s56, 1
    v_mov_b32 v11, s59
    global_load_ushort v{P+6}, v11, s[44:45]
    global_load_ushort v{P}, v10, s[32:33]
    global_load_ushort v{P+1}, v10, s[34:35]
    global_load_ushort v{P+2}, v10, s[36:37]
    global_load_ushort v{P+3}, v10, s[38:39]
    global_load_ushort v{P+4}, v10, s[40:41]
    global_load_ushort v{P+5}, v10, s[42:43]
    """)
    for n in range(2): dma(n)
    addrs()
    T = 88
    GA = 168
    WA, RA = 78, 79
    XCH = K1_SCR + 5120
    o(f"""
    s_mul_i32 s58, s3, 17408
    s_add_u32 s58, s58, {2*STG}
    v_lshl_add_u32 v{WA}, v0, 2, s58
    v_mul_u32_u24 v{RA}, 272, v2
    v_lshl_add_u32 v{RA}, v3, 4, v{RA}
    v_add_u32 v{RA}, s58, v{RA}
    s_mul_i32 s58, s55, 3072
    s_add_u32 s58, s58, {XCH}
    v_lshl_add_u32 v{T}, v0, 4, s58
    """)
    for i in range(12): o(f"v_mov_b32 v{GA+i}, 0")
    sc = Sched()
    pairs = [r for r in range(36, 76, 2)] + [r for r in range(90, 168, 2)] + [r for r in range(180, 236, 2)]
    tpool = list(range(236, 256)); tix = [0]
    def newp(): return pairs.pop(0)
    def tmp():
        t = tpool[tix[0] % len(tpool)]; tix[0] += 1; return t
    def op(text, d, u, **k): sc.add(text, d, u, **k)
    for r in range(P, P + 7): op(f"v_lshlrev_b32 v{r}, 16, v{r}", [r], [r])
    D = P + 6
    op(f"v_mul_f32 v{D}, {f2u(LOG2E):#x}, v{D}", [D], [D])
    op(f"v_exp_f32 v{D}, v{D}", [D], [D], lat=16, cost=8, trans=True)
    op(f"v_cvt_pk_bf16_f32 v{D}, v{D}, v{D}", [D], [D])
    op(f"v_lshlrev_b32 v{D}, 16, v{D}", [D], [D])
    for k in range(4): op(f"v_mul_f32 v{P+k}, v{D}, v{P+k}", [P+k], [D, P+k])
    op(f"v_mul_f32 v{P}, {f2u(LOG2E):#x}, v{P}", [P], [P])
    op(f"v_mul_f32 v{P+1}, {f2u(1/(2*math.pi)):#x}, v{P+1}", [P+1], [P+1])
    C = newp()
    op(f"v_mul_f32 v{C}, v{P+4}, v{P+2}", [C], [P+4, P+2])
    op(f"v_mul_f32 v{C+1}, v{P+4}, v{P+3}", [C+1], [P+4, P+3])
    op(f"v_fma_f32 v{C}, -v{P+5}, v{P+3}, v{C}", [C], [P+5, P+3, C])
    op(f"v_fma_f32 v{C+1}, v{P+5}, v{P+2}, v{C+1}", [C+1], [P+5, P+2, C+1])
    def anchor(t):
        d = newp(); a_, b_, c_, e_ = tmp(), tmp(), tmp(), tmp()
        op(f"v_mul_f32 v{a_}, {f2u(float(t)):#x}, v{P}", [a_], [P])
        op(f"v_mul_f32 v{b_}, {f2u(float(t)):#x}, v{P+1}", [b_], [P+1])
        op(f"v_exp_f32 v{a_}, v{a_}", [a_], [a_], lat=16, cost=8, trans=True)
        op(f"v_fract_f32 v{b_}, v{b_}", [b_], [b_])
        op(f"v_cos_f32 v{c_}, v{b_}", [c_], [b_], lat=16, cost=8, trans=True)
        op(f"v_sin_f32 v{e_}, v{b_}", [e_], [b_], lat=16, cost=8, trans=True)
        op(f"v_mul_f32 v{d}, v{a_}, v{c_}", [d], [a_, c_])
        op(f"v_mul_f32 v{d+1}, v{a_}, v{e_}", [d+1], [a_, e_])
        return d
    def cmul(x, w):
        d = newp()
        op(f"v_pk_mul_f32 {vr(d,2)}, {vr(x,2)}, {vr(w,2)} op_sel:[0,0] op_sel_hi:[1,0]", [d, d+1], [x, x+1, w], lat=12)
        op(f"v_pk_fma_f32 {vr(d,2)}, {vr(x,2)}, {vr(w,2)}, {vr(d,2)} op_sel:[1,1,0] op_sel_hi:[0,1,1] neg_lo:[1,0,0]", [d, d+1], [x, x+1, w+1, d, d+1], lat=12)
        return d
    def put(e, x, neg=False):
        t = tmp()
        op(f"v_cvt_pk_bf16_f32 v{t}, v{x}, {'-' if neg else ''}v{x+1}", [t], [x, x+1])
        op(f"ds_write_b32 v{WA}, v{t} offset:{e*272}", [], [t])
    Z8, Z1, Z128 = anchor(8), anchor(1), anchor(128)
    t_ = tmp()
    op(f"v_mov_b32 v{t_}, 0x3f80", [t_], [])
    op(f"ds_write_b32 v{WA}, v{t_}", [], [t_])
    e = {1: Z8}
    e[2] = cmul(e[1], e[1]); e[3] = cmul(e[2], e[1]); e[4] = cmul(e[2], e[2])
    for j in (5, 6, 7): e[j] = cmul(e[4], e[j-4])
    e[8] = cmul(e[4], e[4])
    for j in range(9, 16): e[j] = cmul(e[8], e[j-8])
    for j in range(1, 16): put(j, e[j], True)
    x = {0: C}
    x[1] = cmul(C, Z1); Z2 = cmul(Z1, Z1); x[2] = cmul(x[0], Z2); x[3] = cmul(x[1], Z2); Z4 = cmul(Z2, Z2)
    for r in range(4, 8): x[r] = cmul(x[r-4], Z4)
    y = {r: cmul(x[r], Z128) for r in range(8)}
    Z256 = cmul(Z128, Z128)
    pp = {r: cmul(x[2*r], Z256) for r in range(4)}
    qq = {r: cmul(y[2*r], Z256) for r in range(4)}
    Z512 = cmul(Z256, Z256)
    rr = [cmul(v_, Z512) for v_ in (x[0], x[4], y[0], y[4], pp[0], pp[2], qq[0], qq[2])]
    Z1024 = cmul(Z512, Z512)
    ss = [cmul(v_, Z1024) for v_ in (x[0], y[0], pp[0], qq[0], rr[0], rr[2], rr[4], rr[6])]
    s2048 = cmul(ss[0], Z1024)
    for r in range(8): put(16 + r, x[r]); put(24 + r, y[r])
    for r in range(4): put(32 + r, pp[r]); put(36 + r, qq[r])
    for r in range(8): put(40 + r, rr[r])
    for r in range(8): put(48 + r, ss[r])
    put(56, s2048)
    if OPT.get("NOKGEN"): o("s_branch K1_A_F4")
    o("s_waitcnt vmcnt(8)")
    if FINE: stamp(o, 3)
    est = sc.emit(o)
    FB_ = 90
    for t in range(4):
        for s_ in range(4): o(f"ds_read_b128 {vr(FB_+16*t+4*s_,4)}, v{RA} offset:{t*4352 + 64*s_}")
    for t in range(3):
        o(f"s_waitcnt lgkmcnt({8 - 4*t})")
        for s_ in range(4):
            o(f"v_mfma_f32_16x16x32_bf16 {vr(GA+4*t,4)}, {vr(FB_+16+16*t+4*s_,4)}, {vr(FB_+4*s_,4)}, {vr(GA+4*t,4)}")
    o(f"""
    s_cmp_eq_u32 s57, 0
    s_cbranch_scc1 K1_A_F4
    s_nop 7
    ds_write_b128 v{T}, {vr(GA,4)}
    ds_write_b128 v{T}, {vr(GA+4,4)} offset:1024
    ds_write_b128 v{T}, {vr(GA+8,4)} offset:2048
    """)
    o.lab("K1_A_F4")
    X = [104 + 2 * i for i in range(8)]
    Y = [120 + 2 * i for i in range(8)]
    def f5():
        o(f"""
        s_cmp_lg_u32 s57, 0
        s_cbranch_scc1 K1_A_F5
        ds_read_b128 {vr(X[0],4)}, v{T}
        ds_read_b128 {vr(X[0]+4,4)}, v{T} offset:1024
        ds_read_b128 {vr(X[0]+8,4)}, v{T} offset:2048
        v_lshrrev_b32 v{Y[0]}, 1, v3
        v_lshlrev_b32 v{Y[0]}, 8, v{Y[0]}
        v_lshl_add_u32 v{Y[0]}, v2, 4, v{Y[0]}
        v_and_b32 v{Y[0]+1}, 1, v3
        v_lshl_add_u32 v{Y[0]}, v{Y[0]+1}, 3, v{Y[0]}
        v_cmp_gt_u32 s[60:61], 2, v3
        v_lshlrev_b32 v{Y[1]}, 2, v2
        v_lshlrev_b32 v{Y[1]+1}, 3, v2
        v_cndmask_b32 v{Y[1]}, v{Y[1]}, v{Y[1]+1}, s[60:61]
        v_lshl_add_u32 v{Y[1]}, v3, 7, v{Y[1]}
        v_mov_b32 v{Y[1]+1}, 64
        v_cndmask_b32 v{Y[1]+1}, v{Y[1]+1}, 4, s[60:61]
        v_add_u32 v{Y[1]+1}, v{Y[1]}, v{Y[1]+1}
        v_lshlrev_b32 v{Y[2]}, 7, v3
        v_lshl_add_u32 v{Y[2]}, v2, 1, v{Y[2]}
        v_add_u32 v{Y[0]}, s58, v{Y[0]}
        v_add_u32 v{Y[1]}, s58, v{Y[1]}
        v_add_u32 v{Y[1]+1}, s58, v{Y[1]+1}
        v_add_u32 v{Y[2]}, s58, v{Y[2]}
        s_waitcnt lgkmcnt(0)
        """)
        for i in range(12): o(f"v_add_f32 v{GA+i}, v{GA+i}, v{X[0]+i}")
        g = Y[4]
        for i in range(6): o(f"v_cvt_pk_bf16_f32 v{g+i}, v{GA+2*i}, v{GA+2*i+1}")
        o(f"""
        ds_write_b64 v{Y[0]}, {vr(g,2)}
        ds_write_b32 v{Y[1]}, v{g+2} offset:512
        ds_write_b32 v{Y[1]+1}, v{g+3} offset:512
        ds_write_b16 v{Y[2]}, v{g+4} offset:1024
        ds_write_b16_d16_hi v{Y[2]}, v{g+4} offset:1056
        ds_write_b16 v{Y[2]}, v{g+5} offset:1088
        ds_write_b16_d16_hi v{Y[2]}, v{g+5} offset:1120
        """)
        o.lab("K1_A_F5")
    def f6():
        o(f"""
        s_lshl_b32 s60, s57, 10
        v_add_u32 v{T}, s60, v{T}
        ds_read_b128 {vr(X[0],4)}, v{T}
        s_mul_i32 s59, s56, {GC_SZ}
        s_add_u32 s59, s59, {GC_OFF:#x}
        s_add_u32 s59, s59, s60
        v_lshlrev_b32 v{Y[0]}, 4, v0
        s_sub_u32 s60, s57, 1
        s_waitcnt lgkmcnt(0)
        s_mov_b32 exec_hi, s60
        buffer_store_dwordx4 {vr(X[0],4)}, v{Y[0]}, s[20:23], s59 offen
        s_mov_b32 exec_hi, -1
        """)
    gemm("A", {0: f5, 1: f6})
    o("s_branch K1_EPI")

    o.lab("K1_B")
    if OPT.get("AUXLATE"):
        for n in range(2): dma(n)
    srd(o, 16, 10, 2048*1024)
    o(f"""
    s_sub_u32 s55, s3, 4            ; w-4
    s_and_b32 s56, s2, 31           ; lb
    s_lshr_b32 s57, s2, 5           ; cb
    v_sub_u32 v80, 7, v10
    v_lshlrev_b32 v80, 10, v80
    v_lshl_add_u32 v80, v11, 4, v80
    s_lshl_b32 s58, s56, 6
    s_add_u32 s58, s58, 56
    s_lshl_b32 s59, s55, 4
    s_sub_u32 s58, s58, s59
    s_lshl_b32 s58, s58, 10
    s_lshl_b32 s59, s57, 7
    s_add_u32 s58, s58, s59
    s_lshl_b32 s59, s55, 11
    s_add_u32 m0, s59, {K1_UT}
    s_nop 0
    buffer_load_dwordx4 v80, s[16:19], s58 offen lds
    s_sub_u32 s58, s58, 8192
    s_add_u32 m0, m0, 1024
    s_nop 0
    buffer_load_dwordx4 v80, s[16:19], s58 offen lds
    s_cmp_ge_u32 s55, 2
    s_cbranch_scc1 K1_BG
    """)
    srd(o, 16, 8, 512*1024)
    o(f"""
    v_lshlrev_b32 v80, 10, v10
    v_lshl_add_u32 v80, v11, 4, v80
    s_lshr_b32 s58, s2, 3
    s_lshl_b32 s58, s58, 1
    s_add_u32 s58, s58, s55
    s_lshl_b32 s58, s58, 13
    s_and_b32 s59, s2, 7
    s_lshl_b32 s59, s59, 7
    s_add_u32 s58, s58, s59
    s_lshl_b32 s59, s55, 10
    s_add_u32 m0, s59, {K1_WO}
    s_nop 0
    buffer_load_dwordx4 v80, s[16:19], s58 offen lds
    """)
    o.lab("K1_BG")
    if not OPT.get("AUXLATE"):
        for n in range(2): dma(n)
    addrs()
    def g1():
        o(f"""
        v_bfe_u32 v80, v0, 2, 2
        v_lshl_add_u32 v81, v3, 3, v80
        v_lshlrev_b32 v81, 7, v81
        v_and_b32 v82, 3, v0
        v_lshl_add_u32 v81, v82, 3, v81
        s_lshl_b32 s58, s55, 5
        s_add_u32 s58, s58, {K1_UT}
        v_add_u32 v81, s58, v81
        ds_read_b64_tr_b16 v[88:89], v81
        ds_read_b64_tr_b16 v[90:91], v81 offset:512
        ds_read_b64_tr_b16 v[92:93], v81 offset:4096
        ds_read_b64_tr_b16 v[94:95], v81 offset:4608
        v_lshrrev_b32 v83, 5, v0
        v_lshl_add_u32 v83, v83, 2, v80
        v_lshlrev_b32 v83, 7, v83
        v_and_b32 v84, 1, v3
        v_lshl_add_u32 v83, v84, 5, v83
        v_lshl_add_u32 v83, v82, 3, v83
        s_and_b32 s58, s55, 1
        s_lshl_b32 s59, s58, 6
        s_add_u32 s59, s59, {K1_WO}
        v_add_u32 v83, s59, v83
        ds_read_b64_tr_b16 v[96:97], v83
        ds_read_b64_tr_b16 v[98:99], v83 offset:1024
        v_lshlrev_b32 v85, 12, v2
        v_lshl_add_u32 v85, v3, 4, v85
        s_lshl_b32 s59, s57, 6
        s_lshl_b32 s60, s55, 4
        s_add_u32 s59, s59, s60
        s_lshl_b32 s59, s59, 12
        s_add_u32 s59, s59, {UT_OFF + 3968:#x}
        s_lshl_b32 s60, s56, 7
        s_sub_u32 s59, s59, s60
        v_lshlrev_b32 v86, 4, v0
        s_and_b32 s60, s2, 7
        s_lshl_b32 s60, s60, 1
        s_add_u32 s60, s60, s58
        s_lshl_b32 s60, s60, 5
        s_lshr_b32 s61, s2, 3
        s_add_u32 s60, s60, s61
        s_lshl_b32 s60, s60, 10
        s_add_u32 s60, s60, {WOF_OFF:#x}
        """)
    def g7():
        o(f"""
        s_waitcnt lgkmcnt(0)
        buffer_store_dwordx4 v[88:91], v85, s[20:23], s59 offen
        buffer_store_dwordx4 v[92:95], v85, s[20:23], s59 offen offset:64
        s_cmp_ge_u32 s55, 2
        s_cbranch_scc1 K1_B_G1
        buffer_store_dwordx4 v[96:99], v86, s[20:23], s60 offen
        """)
        o.lab("K1_B_G1")
    def g17(): g1(); g7()
    gemm("B", {(1 if OPT.get("AUXLATE") else 0): g17})

    o.lab("K1_EPI")
    if not FINE: stamp(o, 3)
    o(f"""
    v_lshlrev_b32 v4, 4, v0
    s_lshl_b32 s49, s27, 2
    s_add_u32 s49, s49, s48         ; head
    s_lshl_b32 s49, s49, 6
    s_lshl_b32 s50, s26, 1
    s_add_u32 s49, s49, s50
    s_add_u32 s49, s49, s30
    s_lshl_b32 s50, s49, 11
    s_lshl_b32 s49, s49, 10
    s_add_u32 s50, s50, {KV_OFF:#x}
    s_mov_b32 s51, {f2u(0.25*LOG2E):#x}
    s_nop 4
    """)
    for i in range(8): o(f"v_mul_f32 v{ACC+i}, s51, v{ACC+i}")
    for a in range(6):
        b = ACC + 4 * a
        o(f"v_cvt_pk_bf16_f32 v{FR+2*a}, v{b}, v{b+1}")
        o(f"v_cvt_pk_bf16_f32 v{FR+1+2*a}, v{b+2}, v{b+3}")
    o("s_nop 1")
    for a in range(3):
        o(f"v_permlane16_swap_b32 v{FR+4*a}, v{FR+4*a+2}")
        o(f"v_permlane16_swap_b32 v{FR+4*a+1}, v{FR+4*a+3}")
    o("s_nop 1")
    for a, (so, off) in enumerate(((49, 0), (50, 0), (50, 1024))):
        o(f"buffer_store_dwordx4 {vr(FR+4*a,4)}, v4, s[20:23], s{so} offen offset:{off}")
    stamp_out(o, 0)
    o.lab("K1_END0")
    o("s_endpgm")

K2_LDS = 131072 + 26624
K2_EARLY = 6
def k2(o):
    kstart(o, "k2_kernel")
    rstamp(o, 0); stamp(o, 1)
    o(f"""
    s_cmp_ge_u32 s2, 256
    s_cbranch_scc1 K2_END0
    s_load_dwordx2 s[28:29], s[0:1], 112
    s_load_dwordx2 s[4:5], s[0:1], 24
    s_load_dwordx4 s[8:11], s[0:1], 88
    v_lshrrev_b32 v1, 6, v0
    v_and_b32 v0, 63, v0
    s_nop 0
    v_readfirstlane_b32 s3, v1
    v_lshlrev_b32 v1, 4, v0
    s_and_b32 s24, s2, 7
    s_lshr_b32 s25, s2, 3
    s_waitcnt lgkmcnt(0)
    """)
    if FINE: stamp(o, 3)
    srd(o, 20, 28, WS_USED)
    if OPT.get("K2EXIT"):
        stamp_out(o, 1)
        o("s_endpgm")
    o(f"""
    s_lshl_b32 s26, s24, 2
    s_and_b32 s27, s25, 3
    s_add_u32 s26, s26, s27         ; head
    s_lshr_b32 s27, s25, 2          ; qb
    s_lshl_b32 s31, s3, 10
    s_lshl_b32 s30, s26, 17
    s_add_u32 s30, s30, {KV_OFF:#x}
    s_add_u32 s30, s30, s31
    s_mov_b32 m0, s31
    s_cmp_ge_u32 s3, 4
    s_cbranch_scc1 K2_CONV
    """)
    QA, QB, NMA, NMB, OA, OB, SX, SY = 4, 8, 12, 28, 44, 60, 76, 92
    KF, V0, V1, IDX, AD, MB = (108, 112), (116, 120), (124, 128), 132, 2, 133
    o(f"""
    s_lshl_b32 s35, s26, 6
    s_lshl_b32 s36, s27, 3
    s_add_u32 s35, s35, s36
    s_lshl_b32 s36, s3, 1
    s_add_u32 s35, s35, s36
    s_lshl_b32 s35, s35, 10
    buffer_load_dwordx4 v1, s[20:23], s30 offen lds
    buffer_load_dwordx4 {vr(QA,4)}, v1, s[20:23], s35 offen
    buffer_load_dwordx4 {vr(QB,4)}, v1, s[20:23], s35 offen offset:1024
    s_add_u32 s30, s30, 8192
    s_add_u32 m0, m0, 8192
    s_nop 0
    buffer_load_dwordx4 v1, s[20:23], s30 offen lds
    """)
    def vinit():
        o("s_mov_b64 exec, s[42:43]")
        for r in range(V0[0], V0[0] + 16): o(f"v_mov_b32 v{r}, 0x3f803f80")
        o("s_not_b64 exec, exec")
        for r in range(V0[0], V0[0] + 16): o(f"v_mov_b32 v{r}, 0")
        o("s_mov_b64 exec, -1")
    o(f"""
    s_mov_b32 s40, 0xffff
    s_mov_b32 s41, 0xffff
    s_mov_b32 s42, 0x110000
    s_mov_b32 s43, 0x110000
    s_mov_b32 s34, 0
    v_mov_b32 v{IDX}, 0xdddd
    """)
    vinit()
    if OPT.get("APRIO"): o(f"s_setprio {OPT['APRIO']}")
    o("s_waitcnt vmcnt(0)")
    o("s_barrier")
    stamp(o, 2)
    o(f"""
    ds_read_b128 {vr(KF[0],4)}, v1
    ds_read_b128 {vr(KF[1],4)}, v1 offset:2048
    s_mov_b64 exec, s[40:41]
    ds_read_b128 {vr(V0[0],4)}, v1 offset:1024
    ds_read_b128 {vr(V1[0],4)}, v1 offset:1280
    s_mov_b64 exec, -1
    s_waitcnt lgkmcnt(3)
    v_mfma_f32_32x32x16_bf16 {vr(SX,16)}, {vr(KF[0],4)}, {vr(QA,4)}, 0
    v_mfma_f32_32x32x16_bf16 {vr(SY,16)}, {vr(KF[0],4)}, {vr(QB,4)}, 0
    """)
    for i in range(16): o(f"v_mov_b32 v{OA+i}, 0")
    def maxred(src, dst):
        o(f"v_max3_f32 v{dst}, v{src}, v{src+1}, v{src+2}")
        for i in range(3, 15, 2): o(f"v_max3_f32 v{dst}, v{dst}, v{src+i}, v{src+i+1}")
        o(f"v_max_f32 v{dst}, v{dst}, v{src+15}")
    maxred(SX, 3)
    maxred(SY, MB)
    o.lab("K2_PASS")
    o(f"""
    v_mov_b32 v{AD}, v3
    v_mov_b32 v{MB+1}, v{MB}
    s_nop 1
    v_permlane32_swap_b32 v3, v{AD}
    v_permlane32_swap_b32 v{MB}, v{MB+1}
    s_nop 1
    v_max_f32 v3, v3, v{AD}
    v_max_f32 v{MB}, v{MB}, v{MB+1}
    v_mov_b32 v{AD}, v1
    """)
    for i in range(16): o(f"v_sub_f32 v{NMA+i}, 0, v3")
    o("s_nop 1")
    o(f"v_mfma_f32_32x32x16_bf16 {vr(SX,16)}, {vr(KF[0],4)}, {vr(QA,4)}, {vr(NMA,16)}")
    for i in range(16): o(f"v_sub_f32 v{NMB+i}, 0, v{MB}")
    for i in range(16): o(f"v_mov_b32 v{OB+i}, 0")
    for i in range(8, 16): o(f"v_mov_b32 v{SY+i}, 0")
    o(f"""
    s_mov_b32 s32, 0                ; iteration
    s_cmp_eq_u32 s34, 0
    s_cselect_b32 s33, 1, 16        ; limit
    """)
    o.raw(".p2align 6")
    o.lab("K2_LOOP")
    def ex(X, a, b):
        for i in range(a, b): o(f"v_exp_f32 v{X+i}, v{X+i}")
    for u in range(4):
        p = u & 1
        ex(SX, 0, 3)
        o("s_waitcnt lgkmcnt(0)")
        o(f"v_smfmac_f32_32x32x32_bf16 {vr(OB,16)}, {vr(V1[p^1],4)}, {vr(SY+8,8)}, v{IDX}")
        o("s_mov_b64 exec, s[40:41]")
        o(f"ds_read_b128 {vr(V0[p^1],4)}, v{AD} offset:{(u+1)*2048+1024}")
        o(f"ds_read_b128 {vr(V1[p^1],4)}, v{AD} offset:{(u+1)*2048+1280}")
        o("s_mov_b64 exec, -1")
        ex(SX, 3, 8)
        o(f"v_mfma_f32_32x32x16_bf16 {vr(SY,16)}, {vr(KF[p],4)}, {vr(QB,4)}, {vr(NMB,16)}")
        o(f"ds_read_b128 {vr(KF[p],4)}, v{AD} offset:{(u+2)*2048}")
        ex(SX, 8, 13)
        o(f"v_smfmac_f32_32x32x32_bf16 {vr(OA,16)}, {vr(V0[p],4)}, {vr(SX,8)}, v{IDX}")
        ex(SX, 13, 16)
        if u == 3:
            o(f"v_add_u32 v{AD}, 8192, v{AD}")
            o("s_add_u32 s32, s32, 1")
            o("s_cmp_lt_u32 s32, s33")
        ex(SY, 0, 3)
        o(f"v_smfmac_f32_32x32x32_bf16 {vr(OA,16)}, {vr(V1[p],4)}, {vr(SX+8,8)}, v{IDX}")
        ex(SY, 3, 8)
        o(f"v_mfma_f32_32x32x16_bf16 {vr(SX,16)}, {vr(KF[p^1],4)}, {vr(QA,4)}, {vr(NMA,16)}")
        ex(SY, 8, 13)
        o(f"v_smfmac_f32_32x32x32_bf16 {vr(OB,16)}, {vr(V0[p],4)}, {vr(SY,8)}, v{IDX}")
        ex(SY, 13, 16)
    o(f"""
    s_cbranch_scc1 K2_LOOP
    s_cmp_ge_u32 s32, 16
    s_cbranch_scc1 K2_FIN
    s_barrier
    """)
    if not FINE: stamp(o, 4)
    o(f"""
    s_cmp_eq_u32 s32, 1
    s_cselect_b32 s33, 5, 16
    s_branch K2_LOOP
    """)
    o.lab("K2_FIN")
    if not FINE: stamp(o, 5)
    o(f"""
    v_smfmac_f32_32x32x32_bf16 {vr(OB,16)}, {vr(V1[1],4)}, {vr(SY+8,8)}, v{IDX}
    v_mul_f32 v3, 0, v{OA+8}
    """)
    for i in range(8): o(f"v_fma_f32 v3, v{OA+i}, 0, v3")
    o("s_nop 3")
    for i in range(9): o(f"v_fma_f32 v3, v{OB+i}, 0, v3")
    o(f"""
    s_cmp_lg_u32 s34, 0
    s_cbranch_scc1 K2_OUT
    v_cmp_u_f32 vcc, v3, v3
    s_nop 1
    s_cbranch_vccz K2_OUT
    s_mov_b32 s34, 1
    s_mov_b32 s32, 0
    v_mov_b32 v{AD}, v1
    v_mov_b32 v3, 0xff800000
    v_mov_b32 v{MB}, 0xff800000
    s_waitcnt lgkmcnt(0)
    """)
    o.lab("K2_MAXL")
    o(f"""
    ds_read_b128 {vr(KF[0],4)}, v{AD}
    v_add_u32 v{AD}, 2048, v{AD}
    s_waitcnt lgkmcnt(0)
    v_mfma_f32_32x32x16_bf16 {vr(SX,16)}, {vr(KF[0],4)}, {vr(QA,4)}, 0
    v_mfma_f32_32x32x16_bf16 {vr(SY,16)}, {vr(KF[0],4)}, {vr(QB,4)}, 0
    s_nop 15
    """)
    for i in range(0, 16, 2): o(f"v_max3_f32 v3, v3, v{SX+i}, v{SX+i+1}")
    for i in range(0, 16, 2): o(f"v_max3_f32 v{MB}, v{MB}, v{SY+i}, v{SY+i+1}")
    o(f"""
    s_add_u32 s32, s32, 1
    s_cmp_lt_u32 s32, 64
    s_cbranch_scc1 K2_MAXL
    """)
    vinit()
    o(f"""
    ds_read_b128 {vr(KF[0],4)}, v1
    ds_read_b128 {vr(KF[1],4)}, v1 offset:2048
    s_mov_b64 exec, s[40:41]
    ds_read_b128 {vr(V0[0],4)}, v1 offset:1024
    ds_read_b128 {vr(V1[0],4)}, v1 offset:1280
    s_mov_b64 exec, -1
    """)
    for i in range(16): o(f"v_mov_b32 v{OA+i}, 0")
    o("s_waitcnt lgkmcnt(0)")
    o("s_branch K2_PASS")
    o.lab("K2_OUT")
    o(f"""
    v_rcp_f32 v3, v{OA+8}
    v_rcp_f32 v{MB}, v{OB+8}
    s_lshl_b32 s30, s27, 3
    s_lshl_b32 s31, s3, 1
    s_add_u32 s30, s30, s31
    s_lshl_b32 s30, s30, 5
    s_add_u32 s30, s30, s26
    s_lshl_b32 s30, s30, 10
    s_add_u32 s30, s30, {OF_OFF:#x}
    s_add_u32 s31, s30, 32768
    """)
    for i in range(8): o(f"v_mul_f32 v{OA+i}, v{OA+i}, v3")
    for i in range(4): o(f"v_cvt_pk_bf16_f32 v{SX+i}, v{OA+2*i}, v{OA+2*i+1}")
    o(f"buffer_store_dwordx4 {vr(SX,4)}, v1, s[20:23], s30 offen")
    for i in range(8): o(f"v_mul_f32 v{OB+i}, v{OB+i}, v{MB}")
    for i in range(4): o(f"v_cvt_pk_bf16_f32 v{SX+4+i}, v{OB+2*i}, v{OB+2*i+1}")
    o(f"buffer_store_dwordx4 {vr(SX+4,4)}, v1, s[20:23], s31 offen")
    stamp_out(o, 1)
    o("s_endpgm")

    CHL = 131072
    L_E, L_C1, L_UT, L_U1 = 4160, 8320, 16640, 4608
    o.lab("K2_CONV")
    srd(o, 16, 10, 2048*2048)
    o(f"""
    buffer_load_dwordx4 v1, s[20:23], s30 offen lds
    s_add_u32 s30, s30, 8192
    s_add_u32 m0, m0, 8192
    s_sub_u32 s3, s3, 4             ; w'
    buffer_load_dwordx4 v1, s[20:23], s30 offen lds
    s_add_u32 s30, s30, 4096
    s_add_u32 m0, m0, 4096
    s_lshl_b32 s31, s3, 10
    """)
    def kvdma(n):
        for i in range(n):
            o("s_nop 0")
            o("buffer_load_dwordx4 v1, s[20:23], s30 offen lds")
            o("s_add_u32 s30, s30, 4096")
            o("s_add_u32 m0, m0, 4096")
    kvdma(8)
    o(f"""
    s_lshl_b32 s26, s24, 5
    s_add_u32 s26, s26, s25
    s_lshl_b32 s32, s26, 2
    s_lshr_b32 s33, s3, 1           ; ch'
    s_and_b32 s34, s3, 1
    s_lshl_b32 s35, s26, 1
    s_add_u32 s35, s35, s33
    s_mul_i32 s35, s35, {GC_SZ}
    s_add_u32 s35, s35, {GC_OFF:#x}
    v_lshlrev_b32 v5, 3, v0
    v_lshlrev_b32 v6, 2, v0
    v_mov_b32 v7, 0
    v_mov_b32 v8, s32
    s_waitcnt vmcnt(8)
    s_barrier
    buffer_load_dwordx2 v[50:51], v5, s[20:23], s35 offen
    buffer_load_dword v52, v5, s[20:23], s35 offen offset:8
    buffer_load_dwordx2 v[54:55], v6, s[20:23], s35 offen offset:512
    buffer_load_dwordx2 v[56:57], v6, s[20:23], s35 offen offset:768
    buffer_load_dwordx2 v[58:59], v6, s[20:23], s35 offen offset:1024
    buffer_load_ushort v60, v7, s[20:23], s35 offen
    global_load_dword v16, v8, s[8:9]
    """)
    kvdma(K2_EARLY)
    o(f"""
    s_waitcnt vmcnt({7 + K2_EARLY})
    s_barrier
    s_mov_b32 s38, m0
    s_lshl_b32 s36, s26, 13
    s_add_u32 s36, s36, {UT_OFF:#x}
    s_add_u32 s36, s36, s31
    s_add_u32 m0, s31, {CHL + L_UT}
    s_nop 0
    buffer_load_dwordx4 v1, s[20:23], s36 offen lds
    s_add_u32 s36, s36, 4096
    s_add_u32 m0, m0, {L_U1}
    s_nop 0
    buffer_load_dwordx4 v1, s[20:23], s36 offen lds
    s_mov_b32 m0, s38
    """)
    kvdma(20 - K2_EARLY)
    o(f"""
    v_and_b32 v2, 15, v0
    v_lshrrev_b32 v3, 4, v0
    s_sub_u32 s27, 7, s3            ; iH
    v_lshlrev_b32 v4, 2, v3
    v_lshl_add_u32 v4, v2, 4, v4    ; 16a+4g
    v_lshlrev_b32 v9, 1, v4
    v_sub_u32 v9, {CHL + L_UT + 4088}, v9
    v_lshlrev_b32 v4, 11, v4        ; *2048 (out)
    ; A addresses
    v_and_b32 v10, 1, v2
    v_mul_u32_u24 v17, {L_E}, v10
    v_add_u32 v11, v2, v10
    v_lshl_add_u32 v17, v11, 1, v17
    v_lshl_add_u32 v17, v3, 4, v17
    v_add_u32 v17, {CHL}, v17       ; A ch0
    v_add_u32 v18, {L_C1}, v17      ; A ch1
    v_lshlrev_b32 v10, 5, v2
    v_lshlrev_b32 v11, 4, v3
    v_sub_u32 v11, v11, v10
    v_add_u32 v11, {CHL + L_UT + 4064}, v11
    s_lshl_b32 s35, s27, 9
    s_lshl_b32 s36, s3, 9
    v_subrev_u32 v19, s35, v11      ; B H
    v_subrev_u32 v20, s36, v11      ; B L
    v_subrev_u32 v21, s35, v9       ; skip H
    v_subrev_u32 v22, s36, v9       ; skip L
    s_mul_i32 s38, s33, {L_C1}
    s_xor_b32 s39, s34, 1
    s_mul_i32 s39, s39, {L_E}
    s_add_u32 s38, s38, s39
    s_add_u32 s38, s38, {CHL}
    v_add_u32 v5, s38, v5           ; +8t
    v_lshl_add_u32 v6, v0, 4, s38   ; +16t
    v_lshl_add_u32 v7, v0, 5, s38   ; +32t
    v_lshl_add_u32 v8, v0, 2, s38   ; +4t
    s_mul_i32 s39, s33, {L_U1}
    s_add_u32 s39, s39, {CHL + L_UT + 4096}
    v_lshl_add_u32 v10, v0, 3, s39
    s_mov_b32 s40, 0x01000100
    s_mov_b32 s41, 0x03020302
    v_mov_b32 v92, 0
    v_mov_b32 v93, 0
    v_cmp_eq_u32 s[42:43], 7, v0
    s_waitcnt vmcnt({22 - K2_EARLY + K2_EARLY})
    s_cmp_eq_u32 s34, 0
    s_cbranch_scc0 K2_XO
    v_perm_b32 v64, v54, v54, s40
    v_alignbit_b32 v65, v55, v54, 16
    v_perm_b32 v68, v56, v56, s40
    v_mov_b32 v69, v56
    v_perm_b32 v70, v56, v56, s41
    v_perm_b32 v71, v57, v57, s40
    v_perm_b32 v76, v58, v58, s40
    v_mov_b32 v77, v76
    v_mov_b32 v78, v58
    v_perm_b32 v79, v58, v58, s41
    v_mov_b32 v80, v79
    v_mov_b32 v81, v79
    v_perm_b32 v82, v59, v59, s40
    v_mov_b32 v83, v82
    v_mov_b32 v60, 0
    ds_write_b64 v10, v[92:93]
    s_branch K2_XW
    """)
    o.lab("K2_XO")
    o(f"""
    v_alignbit_b32 v50, v51, v50, 16
    v_alignbit_b32 v51, v52, v51, 16
    v_mov_b32 v64, v54
    v_perm_b32 v65, v55, v55, s40
    v_perm_b32 v68, v56, v56, s40
    v_perm_b32 v69, v56, v56, s41
    v_alignbit_b32 v70, v57, v56, 16
    v_perm_b32 v71, v57, v57, s40
    v_perm_b32 v76, v58, v58, s40
    v_mov_b32 v77, v76
    v_perm_b32 v78, v58, v58, s41
    v_mov_b32 v79, v78
    v_mov_b32 v80, v78
    v_alignbit_b32 v81, v59, v58, 16
    v_perm_b32 v82, v59, v59, s40
    v_mov_b32 v83, v82
    v_lshlrev_b32 v60, 16, v60
    v_cndmask_b32 v60, 0, v60, s[42:43]
    """)
    o.lab("K2_XW")
    o(f"""
    ds_write_b64 v5, v[50:51] offset:32
    ds_write_b64 v5, v[64:65] offset:544
    ds_write_b128 v6, v[68:71] offset:1056
    ds_write_b128 v7, v[76:79] offset:2080
    ds_write_b128 v7, v[80:83] offset:2096
    s_mov_b64 exec, 0xff
    ds_write_b32 v8, v60
    s_mov_b64 exec, -1
    """)
    CA = 24
    for i in range(16): o(f"v_mov_b32 v{CA+i}, 0")
    FB = 40
    def creads(st, both):
        b = FB + (st & 1) * 24
        k = st % 8 if st < 8 else 8
        return b
    def issue(buf, k, both):
        b = FB + buf * 24
        o(f"ds_read2_b32 {vr(b,2)}, v17 offset0:{16*k} offset1:{16*k+1}")
        o(f"ds_read2_b32 {vr(b+2,2)}, v17 offset0:{16*k+2} offset1:{16*k+3}")
        o(f"ds_read2_b32 {vr(b+4,2)}, v18 offset0:{16*k} offset1:{16*k+1}")
        o(f"ds_read2_b32 {vr(b+6,2)}, v18 offset0:{16*k+2} offset1:{16*k+3}")
        o(f"ds_read_b128 {vr(b+8,4)}, v19 offset:{64*k}")
        o(f"ds_read_b128 {vr(b+12,4)}, v19 offset:{64*k+L_U1}")
        if both:
            o(f"ds_read_b128 {vr(b+16,4)}, v20 offset:{64*k}")
            o(f"ds_read_b128 {vr(b+20,4)}, v20 offset:{64*k+L_U1}")
    def cloop(lab, both):
        o.lab(lab)
        for k in range(8):
            issue((k + 1) & 1, k + 1, both)
            o(f"s_waitcnt lgkmcnt({8 if both else 6})")
            b = FB + (k & 1) * 24
            o(f"v_mfma_f32_16x16x32_bf16 {vr(CA,4)}, {vr(b,4)}, {vr(b+8,4)}, {vr(CA,4)}")
            o(f"v_mfma_f32_16x16x32_bf16 {vr(CA+4,4)}, {vr(b+4,4)}, {vr(b+12,4)}, {vr(CA+4,4)}")
            if both:
                o(f"v_mfma_f32_16x16x32_bf16 {vr(CA+8,4)}, {vr(b,4)}, {vr(b+16,4)}, {vr(CA+8,4)}")
                o(f"v_mfma_f32_16x16x32_bf16 {vr(CA+12,4)}, {vr(b+4,4)}, {vr(b+20,4)}, {vr(CA+12,4)}")
        for r in (17, 18, 19, 20): o(f"v_add_u32 v{r}, 512, v{r}")
        o("s_add_u32 s37, s37, 1")
    o(f"""
    s_waitcnt vmcnt(0) lgkmcnt(0)
    s_barrier
    s_mov_b32 s37, 0
    """)
    stamp(o, 2)
    if OPT.get("NOCONV"):
        stamp_out(o, 1, wadd=4)
        o("s_endpgm")
    if OPT.get("CPRIO"): o(f"s_setprio {OPT['CPRIO']}")
    issue(0, 0, True)
    cloop("K2_CA", True)
    o("s_cmp_le_u32 s37, s3")
    o("s_cbranch_scc1 K2_CA")
    cloop("K2_CB", False)
    o("s_cmp_le_u32 s37, s27")
    o("s_cbranch_scc1 K2_CB")
    stamp(o, 3)
    o(f"""
    ds_read_b64 v[8:9], v21
    ds_read_b64 v[10:11], v21 offset:{L_U1}
    ds_read_b64 v[12:13], v22
    ds_read_b64 v[14:15], v22 offset:{L_U1}
    v_lshlrev_b32 v6, 16, v16       ; D0
    v_and_b32 v7, 0xffff0000, v16   ; D1
    s_lshl_b32 s33, s27, 19
    s_add_u32 s33, s33, s32
    s_add_u32 s33, s33, 1024
    s_lshl_b32 s34, s3, 19
    s_add_u32 s34, s34, s32
    s_add_u32 s34, s34, 1024
    s_add_u32 s35, s33, 4096
    s_add_u32 s36, s34, 4096
    s_waitcnt lgkmcnt(0)
    """)
    for blk in range(2):
        for r in range(4):
            y0, y1 = CA + 8 * blk + r, CA + 8 * blk + 4 + r
            for c, y, dd in ((0, y0, 6), (1, y1, 7)):
                src = 8 + 4 * blk + 2 * c + (1 - (r >> 1))
                if r & 1: o(f"v_lshlrev_b32 v{40+c}, 16, v{src}")
                else:     o(f"v_and_b32 v{40+c}, 0xffff0000, v{src}")
                o(f"v_fma_f32 v{y}, v{40+c}, v{dd}, v{y}")
            o(f"v_cvt_pk_bf16_f32 v{44+4*blk+r}, v{y0}, v{y1}")
            so = (33, 35)[r >> 1] + blk
            o(f"buffer_store_dword v{44+4*blk+r}, v4, s[16:19], s{so} offen offset:{2048*(r&1)}")
    stamp_out(o, 1, wadd=4)
    o.lab("K2_END0")
    o("s_endpgm")

K3_LDS = 49152
def k3(o):
    kstart(o, "k3_kernel")
    rstamp(o, 0); stamp(o, 1)
    o(f"""
    s_cmp_ge_u32 s2, 256
    s_cbranch_scc1 K3_END0
    s_load_dwordx2 s[28:29], s[0:1], 112
    s_load_dwordx2 s[10:11], s[0:1], 96
    v_lshrrev_b32 v1, 6, v0
    v_and_b32 v0, 63, v0
    s_nop 0
    v_readfirstlane_b32 s3, v1
    v_lshlrev_b32 v1, 4, v0
    s_and_b32 s24, s2, 7
    s_lshr_b32 s25, s2, 3
    s_lshl_b32 s26, s24, 2
    s_and_b32 s27, s25, 3
    s_add_u32 s26, s26, s27         ; tb
    s_lshr_b32 s27, s25, 2          ; nb
    s_and_b32 s30, s3, 1
    s_lshr_b32 s31, s3, 1
    s_lshl_b32 s32, s26, 1
    s_add_u32 s32, s32, s30
    s_xor_b32 s33, s32, 1
    s_lshl_b32 s34, s27, 1
    s_add_u32 s34, s34, s31
    s_xor_b32 s35, s34, 1
    s_lshl_b32 s36, s3, 13          ; w*8 heads*1024
    s_lshl_b32 s40, s34, 15
    s_lshl_b32 s41, s35, 15
    s_lshl_b32 s42, s32, 15
    s_lshl_b32 s43, s33, 15
    s_add_u32 s36, s36, {OF_OFF:#x}
    s_add_u32 s42, s42, s36
    s_add_u32 s43, s43, s36
    s_add_u32 s36, s36, {WOF_OFF-OF_OFF:#x}
    s_add_u32 s40, s40, s36
    s_add_u32 s41, s41, s36
    s_add_u32 s44, s40, 4096
    s_add_u32 s45, s41, 4096
    s_add_u32 s46, s42, 4096
    s_add_u32 s47, s43, 4096
    s_waitcnt lgkmcnt(0)
    """)
    srd(o, 20, 28, WS_USED)
    srd(o, 16, 10, 2048*2048)
    FR = 68
    for h in range(8):
        for k in range(4):
            o(f"buffer_load_dwordx4 {vr(FR+16*h+4*k,4)}, v1, s[20:23], s{40+k+(4 if h>=4 else 0)} offen offset:{1024*(h&3)}")
    AC = 4
    for h in range(8):
        o(f"s_waitcnt vmcnt({28-4*h})")
        if h == 0: stamp(o, 2)
        b = FR + 16 * h
        for k in range(4):
            ka, kb = k >> 1, k & 1
            c = vr(AC + 16 * k, 16)
            o(f"v_mfma_f32_32x32x16_bf16 {c}, {vr(b+4*ka,4)}, {vr(b+8+4*kb,4)}, {c if h else 0}")
    stamp(o, 3)
    o("s_nop 7")
    for k in range(1, 4):
        o(f"s_xor_b32 s36, s3, {k}")
        o(f"s_mul_i32 s36, s36, 12288")
        o(f"v_add_u32 v{2 + (k & 1)}, s36, v1")
        if k == 1: o("s_nop 7")
        for q in range(4):
            o(f"ds_write_b128 v{2 + (k & 1)}, {vr(AC+16*k+4*q,4)} offset:{(k-1)*4096 + q*1024}")
    o(f"""
    s_mul_i32 s36, s3, 12288
    v_add_u32 v2, s36, v1
    s_waitcnt lgkmcnt(0)
    s_barrier
    """)
    for k in range(3):
        for q in range(4):
            o(f"ds_read_b128 {vr(FR+16*k+4*q,4)}, v2 offset:{k*4096 + q*1024}")
    o(f"""
    v_and_b32 v2, 31, v0
    v_lshlrev_b32 v2, 11, v2
    v_lshrrev_b32 v3, 5, v0
    v_lshl_add_u32 v2, v3, 4, v2
    s_lshl_b32 s36, s32, 16
    s_lshl_b32 s37, s34, 6
    s_add_u32 s36, s36, s37
    """)
    for k in range(3):
        o(f"s_waitcnt lgkmcnt({8-4*k})")
        for i in range(16): o(f"v_add_f32 v{AC+i}, v{AC+i}, v{FR+16*k+i}")
    for i in range(8): o(f"v_cvt_pk_bf16_f32 v{24+i}, v{AC+2*i}, v{AC+2*i+1}")
    o(f"""
    s_nop 1
    v_permlane32_swap_b32 v24, v26
    v_permlane32_swap_b32 v25, v27
    v_permlane32_swap_b32 v28, v30
    v_permlane32_swap_b32 v29, v31
    s_nop 1
    buffer_store_dwordx4 v[24:27], v2, s[16:19], s36 offen
    buffer_store_dwordx4 v[28:31], v2, s[16:19], s36 offen offset:32
    """)
    stamp_out(o, 2)
    o.lab("K3_END0")
    o("s_endpgm")

def main(out):
    hdr = open(f"cdna_kernels/{NAME}.s.ref").read().split("; Override launch")[0]
    o = A()
    o.raw(hdr.rstrip())
    for _ in range(OPT.get("PRE", 0)): o.raw("; @launch kernel=k0_kernel grid=(1,1,1) block=(64,1,1) lds=0")
    o.raw(f"; @launch kernel=k1_kernel grid=(256,1,1) block=(512,1,1) lds={K1_LDS}")
    o.raw(f"; @launch kernel=k2_kernel grid=(256,1,1) block=(512,1,1) lds={K2_LDS}")
    o.raw(f"; @launch kernel=k3_kernel grid=(256,1,1) block=(256,1,1) lds={K3_LDS}")
    for _ in range(OPT.get("POST", 0)): o.raw("; @launch kernel=k0_kernel grid=(1,1,1) block=(64,1,1) lds=0")
    o.raw('.amdgcn_target "amdgcn-amd-amdhsa--gfx950"\n.text')
    if OPT.get("PRE") or OPT.get("POST"):
        kstart(o, "k0_kernel"); o("s_endpgm")
    k1(o); k2(o); k3(o)
    o.raw('.section .rodata,"a"')
    if OPT.get("PRE") or OPT.get("POST"): o.raw(kdesc("k0_kernel", 8))
    o.raw(kdesc("k1_kernel", 256))
    o.raw(kdesc("k2_kernel", 136))
    o.raw(kdesc("k3_kernel", 196))
    txt = o.text()
    if STFLAG:
        import re
        txt = "\n".join((l + " " + STFLAG) if l.strip().startswith("buffer_store") and "s80" not in l and "s[16:19]" not in l else l for l in txt.split("\n"))
    open(out, "w").write(txt)

if __name__ == "__main__":
    if "--stamp" in sys.argv:
        STAMP = True; sys.argv.remove("--stamp")
    for a_ in list(sys.argv):
        if a_.startswith("-D"):
            kk, _, vv = a_[2:].partition("="); OPT[kk] = int(vv or 1); sys.argv.remove(a_)
    for a_ in list(sys.argv):
        if a_.startswith("--st="):
            STFLAG = a_[5:].replace(",", " "); sys.argv.remove(a_)
    if "--fine2" in sys.argv:
        FINE2 = True; sys.argv.remove("--fine2")
    if "--fine" in sys.argv:
        FINE = True; sys.argv.remove("--fine")
    main(sys.argv[1] if len(sys.argv) > 1 else f"cdna_kernels/{NAME}.s")
```

```python
import sys, math, struct

NAME = "concat_heads__softmax_full_mha__ssm_conv_s4__prompt"

QF_OFF  = 0
KV_OFF  = 2 << 20
OF_OFF  = 6 << 20
WOF_OFF = 8 << 20
UT_OFF  = 9 << 20
GC_OFF  = 11 << 20
GC_SZ   = 1536
ST1 = ""
WS_USED = 32 << 20

def f2u(x): return struct.unpack('<I', struct.pack('<f', x))[0]
LOG2E = 1.4426950408889634

class A:
    def __init__(s): s.l = []
    def __call__(s, t):
        for x in t.split("\n"):
            x = x.strip()
            if x: s.l.append("    " + x)
    def lab(s, n): s.l.append(n + ":")
    def raw(s, t): s.l.append(t)
    def text(s): return "\n".join(s.l) + "\n"

def vr(a, n): return f"v[{a}:{a+n-1}]" if n > 1 else f"v{a}"
def sr(a, n): return f"s[{a}:{a+n-1}]" if n > 1 else f"s{a}"

def srd(o, d, b, size, add=0):
    if add:
        o(f"s_add_u32 s{d}, s{b}, {add:#x}")
        o(f"s_addc_u32 s{d+1}, s{b+1}, 0")
    else:
        o(f"s_mov_b32 s{d}, s{b}")
        o(f"s_mov_b32 s{d+1}, s{b+1}")
    o(f"s_mov_b32 s{d+2}, {size:#x}")
    o(f"s_mov_b32 s{d+3}, 0x00020000")

class Sched:
    def __init__(s, pace=14): s.ops = []; s.pace = pace
    def add(s, text, defs, uses, lat=8, cost=4, trans=False):
        s.ops.append(dict(t=text, d=set(defs), u=set(uses), lat=lat, cost=cost, tr=trans))
    def emit(s, o):
        ops = s.ops; n = len(ops)
        pred = [[] for _ in ops]
        lastw, readers = {}, {}
        for i, op in enumerate(ops):
            for r in op['u']:
                if r in lastw: pred[i].append((lastw[r], ops[lastw[r]]['lat']))
            for r in op['d']:
                if r in lastw: pred[i].append((lastw[r], 4))
                for j in readers.get(r, []):
                    if j != i: pred[i].append((j, 8))
            for r in op['u']: readers.setdefault(r, []).append(i)
            for r in op['d']: lastw[r] = i; readers[r] = []
        succ = [[] for _ in ops]
        for i in range(n):
            for j, l in pred[i]: succ[j].append((i, l))
        cp = [0] * n
        for i in reversed(range(n)):
            cp[i] = ops[i]['cost'] + max([l + cp[k] for k, l in succ[i]], default=0)
        done, when, t, last, lastwr = set(), {}, 0, None, -99
        while len(done) < n:
            cand = [i for i in range(n) if i not in done and all(j in done for j, _ in pred[i])]
            rdy = {i: max([when[j] + l for j, l in pred[i]], default=0) for i in cand}
            now = [i for i in cand if rdy[i] <= t]
            wr = [k for k in now if ops[k]['t'].startswith('ds_write')]
            cv = [k for k in now if ops[k]['t'].startswith('v_cvt_pk') and any(ops[z]['t'].startswith('ds_write') for z, _ in succ[k])]
            oth = [k for k in now if k not in wr]
            if wr and (t - lastwr >= s.pace or not oth): i = wr[0]; lastwr = t
            elif cv and len(wr) < 2: i = cv[0]
            elif oth: i = max(oth, key=lambda k: cp[k])
            else: i = min(cand, key=lambda k: (rdy[k], -cp[k]))
            if last is not None and ops[last]['tr'] and not ops[i]['tr'] and (ops[last]['d'] & ops[i]['u']): o("s_nop 0")
            t = max(t, rdy[i]); when[i] = t; t += ops[i]['cost']; done.add(i); last = i
            o(ops[i]['t'])
        return t

STAMP = False
FINE = False
FINE2 = False
OPT = {}
STFLAG = 'sc1'
ST_OFF = 16 << 20
def stamp(o, i):
    if OPT.get("DBG"): o(f"s_memrealtime s[{64+2*i}:{65+2*i}]"); return
    if STAMP: o(f"s_memtime s[{64+2*i}:{65+2*i}]")
def xstamp(o, i):
    if STAMP: o(f"s_memtime s[{84+2*i}:{85+2*i}]")
def rstamp(o, i):
    if STAMP: o(f"s_memrealtime s[{64+2*i}:{65+2*i}]")
def stamp_out(o, kid, wave_sgpr="s3", wadd=0):
    if OPT.get("DBG"):
        lab = f"DBG_{kid}_{len(o.l)}"
        o("s_load_dwordx2 s[82:83], s[0:1], 104")
        o("s_waitcnt vmcnt(0)")
        o("s_memrealtime s[78:79]")
        o("s_and_b32 s80, s2, 7")
        o(f"s_add_u32 s80, s80, {wave_sgpr}")
        o("s_waitcnt lgkmcnt(0)")
        o("s_cmp_lg_u32 s80, 0")
        o(f"s_cbranch_scc1 {lab}")
        o(f"s_add_u32 s82, s82, {(2-kid)*512}")
        o("s_addc_u32 s83, s83, 0")
        o("s_mov_b64 exec, 1")
        o("s_not_b32 s66, s66")
        o("v_mov_b32 v2, 0")
        sl = {0: [(66, 0), (78, 1), (68, 6), (70, 7)], 1: [(66, 2), (78, 3), (68, 8), (74, 9)], 2: [(66, 4), (78, 5), (68, 10), (70, 11)]}[kid]
        if wadd: sl = [(78, 12), (70, 13)]
        for q, (sg, slot) in enumerate(sl):
            o(f"v_mov_b32 v{4+q}, s{sg}")
            o(f"global_atomic_umax v2, v{4+q}, s[82:83] offset:{4*slot}")
        o.lab(lab)
        return
    if not STAMP: return
    o("s_memrealtime s[78:79]")
    o("s_waitcnt lgkmcnt(0)")
    o("s_mov_b64 exec, 1")
    o(f"s_lshl_b32 s80, s2, 4")
    o(f"s_add_u32 s80, s80, {wave_sgpr}")
    o(f"s_add_u32 s80, s80, {kid*8192 + wadd}")
    o(f"s_lshl_b32 s80, s80, 7")
    o(f"s_add_u32 s80, s80, {ST_OFF:#x}")
    o("s_waitcnt vmcnt(0)")
    o("s_memtime s[76:77]")
    o("s_waitcnt lgkmcnt(0)")
    for i in range(16): o(f"v_mov_b32 v{4+i}, s{64+i}")
    for i in range(16): o(f"v_mov_b32 v{20+i}, s{84+i}")
    o("v_mov_b32 v2, 0")
    for q in range(8): o(f"buffer_store_dwordx4 v[{4+4*q}:{7+4*q}], v2, s[20:23], s80 offen offset:{16*q}")

def kstart(o, name):
    o.raw(f".globl {name}\n.p2align 8\n.type {name},@function")
    o.lab(name)

def kdesc(name, nv, ns=100):
    return f""".p2align 6
.amdhsa_kernel {name}
  .amdhsa_next_free_vgpr {nv}
  .amdhsa_next_free_sgpr {ns}
  .amdhsa_accum_offset {(nv+3)//4*4}
  .amdhsa_group_segment_fixed_size 0
  .amdhsa_kernarg_size 120
  .amdhsa_user_sgpr_count 2
  .amdhsa_user_sgpr_kernarg_segment_ptr 1
  .amdhsa_system_sgpr_workgroup_id_x 1
.end_amdhsa_kernel
"""

STG = 32768
K1_KS = 15504
K1_KB = 3 * STG
K1_UT = 150016
K1_WO = K1_UT + 8192
K1_LDS = K1_KB + 4 * K1_KS + 2048
def k1(o):
    kstart(o, "k1_kernel")
    rstamp(o, 0); stamp(o, 1)
    o(f"""
    s_cmp_ge_u32 s2, 256
    s_cbranch_scc1 K1_END0
    s_load_dwordx8 s[4:11], s[0:1], 0
    s_load_dwordx2 s[28:29], s[0:1], 112
    s_load_dwordx16 s[32:47], s[0:1], 32
    v_lshrrev_b32 v1, 6, v0
    v_and_b32 v0, 63, v0
    s_nop 0
    v_readfirstlane_b32 s3, v1
    v_and_b32 v2, 15, v0
    v_lshrrev_b32 v3, 4, v0
    s_and_b32 s24, s2, 7
    s_lshr_b32 s25, s2, 3
    s_lshr_b32 s26, s24, 1
    s_lshl_b32 s26, s26, 3
    s_and_b32 s31, s25, 7
    s_add_u32 s26, s26, s31         ; mt (0..31)
    s_and_b32 s27, s24, 1
    s_lshl_b32 s27, s27, 2
    s_lshr_b32 s30, s25, 3
    s_add_u32 s27, s27, s30         ; hg (0..7)
    s_lshl_b32 s30, s30, 1
    s_add_u32 s31, s31, s30
    s_and_b32 s31, s31, 7
    s_and_b32 s30, s3, 1            ; tg
    s_lshr_b32 s48, s3, 1           ; hq
    s_and_b32 s55, s3, 3
    s_lshl_b32 s53, s3, 12
    v_lshrrev_b32 v10, 3, v0
    v_and_b32 v11, 7, v0
    s_cmp_ge_u32 s3, 2
    s_cbranch_scc1 K1_SW
    v_xor_b32 v76, v11, v3
    v_lshlrev_b32 v76, 4, v76
    v_lshl_add_u32 v76, v10, 10, v76
    s_lshl_b32 s50, s26, 6
    s_lshl_b32 s51, s3, 5
    s_add_u32 s50, s50, s51
    s_lshl_b32 s50, s50, 10
    s_mov_b32 s51, 8192
    s_mov_b32 s52, 128
    s_waitcnt lgkmcnt(0)
    """)
    srd(o, 12, 4, 2048*1024)
    o("s_branch K1_SD")
    o.lab("K1_SW")
    o(f"""
    v_and_b32 v76, 1, v3
    v_lshlrev_b32 v76, 1, v76
    v_xor_b32 v76, v76, v11
    v_lshlrev_b32 v76, 4, v76
    v_mul_u32_u24 v77, 3072, v10
    v_add_u32 v76, v76, v77
    s_sub_u32 s50, s3, 2
    s_lshr_b32 s51, s50, 1
    s_lshl_b32 s51, s51, 10
    s_and_b32 s50, s50, 1
    s_mul_i32 s50, s50, {32*3072}
    s_add_u32 s50, s50, s51
    s_lshl_b32 s51, s27, 7
    s_add_u32 s50, s50, s51
    s_mov_b32 s51, {8*3072}
    s_mov_b32 s52, {64*3072}
    s_waitcnt lgkmcnt(0)
    """)
    srd(o, 12, 6, 512*3072)
    o.lab("K1_SD")
    o("v_xor_b32 v77, 64, v76")
    ACC = 12
    FR = 36
    FR1 = 180
    def dma_l(n):
        L = []
        for q in range(4):
            if q == 0:
                t = f"s_add_u32 s54, s31, {n}\ns_and_b32 s54, s54, 7\ns_mul_i32 s54, s54, s52\ns_add_u32 s54, s54, s50\ns_add_u32 m0, s53, {(n & 3) * STG}\n"
            else:
                t = "s_add_u32 s54, s54, s51\ns_add_u32 m0, m0, 1024\n"
            L.append(t + f"s_nop 0\nbuffer_load_dwordx4 v{76 + (q & 1)}, s[12:15], s54 offen lds")
        return L
    def dma(n):
        for t in dma_l(n): o(t)
    def addrs():
        srd(o, 20, 28, WS_USED)
        o(f"""
        v_lshrrev_b32 v78, 1, v2
        v_xor_b32 v78, v78, v3
        v_lshlrev_b32 v78, 4, v78
        v_lshl_add_u32 v4, v2, 7, v78
        s_lshl_b32 s49, s30, 12
        v_add_u32 v4, s49, v4
        v_xor_b32 v5, 64, v4
        v_add_u32 v6, {2*STG}, v4
        v_add_u32 v7, {2*STG}, v5
        v_bfe_u32 v78, v0, 2, 2
        v_lshl_add_u32 v78, v3, 3, v78
        v_lshlrev_b32 v78, 7, v78
        v_bfe_u32 v79, v0, 3, 2
        v_xor_b32 v79, s48, v79
        v_lshl_add_u32 v78, v79, 5, v78
        v_and_b32 v79, 3, v0
        v_lshl_add_u32 v8, v79, 3, v78
        v_add_u32 v8, 8192, v8
        v_add_u32 v9, {2*STG}, v8
        """)
        for i in range(24): o(f"v_mov_b32 v{ACC+i}, 0")
    def reads_l(n):
        xa = (4, 5) if (n & 3) < 2 else (6, 7)
        wa = 8 if (n & 3) < 2 else 9
        so = (n & 1) * STG
        L = []
        for ks in range(2):
            b = (FR1 if n & 1 else FR) + 20 * ks
            L.append(f"ds_read_b128 {vr(b,4)}, v{xa[ks]} offset:{so}")
            L.append(f"ds_read_b128 {vr(b+4,4)}, v{xa[ks]} offset:{so + 2048}")
            for p in range(3):
                L.append(f"ds_read_b64_tr_b16 {vr(b+8+4*p,2)}, v{wa} offset:{so + p*8192 + ks*4096}")
                L.append(f"ds_read_b64_tr_b16 {vr(b+10+4*p,2)}, v{wa} offset:{so + p*8192 + ks*4096 + 512}")
        return L
    LOOK = OPT.get("K1LOOK", 3)
    def gemm(extra, fill, pre):
        if FINE: stamp(o, 4)
        o(f"s_waitcnt vmcnt({4*(pre-1)}) lgkmcnt(0)")
        if FINE: stamp(o, 5)
        o("s_barrier")
        stamp(o, 2)
        for t in reads_l(0): o(t)
        for n in range(pre, LOOK): dma(n)
        for n in range(8):
            if n < 7:
                o(f"s_waitcnt vmcnt({4*(min(n+LOOK-1,7)-(n+1)) + extra.get(n, 0)}) lgkmcnt(0)")
                o("s_barrier")
            else:
                o("s_waitcnt lgkmcnt(0)")
            xstamp(o, n)
            R = reads_l(n + 1) if n < 7 else []
            Dm = dma_l(n + LOOK) if n + LOOK <= 7 else []
            M = []
            for ks in range(2):
                b = (FR1 if n & 1 else FR) + 20 * ks
                for tt in range(2):
                    M.append(f"v_mfma_f32_16x16x32_bf16 {vr(ACC+8+4*tt,4)}, {vr(b+12,4)}, {vr(b+4*tt,4)}, {vr(ACC+8+4*tt,4)}")
                for tt in range(2):
                    M.append(f"v_mfma_f32_16x16x32_bf16 {vr(ACC+16+4*tt,4)}, {vr(b+4*tt,4)}, {vr(b+16,4)}, {vr(ACC+16+4*tt,4)}")
                for tt in range(2):
                    M.append(f"v_mfma_f32_16x16x32_bf16 {vr(ACC+4*tt,4)}, {vr(b+8,4)}, {vr(b+4*tt,4)}, {vr(ACC+4*tt,4)}")
            for i, m in enumerate(M):
                o(m)
                if i < 8:
                    for t in R[2*i:2*i+2]: o(t)
                elif Dm:
                    o(Dm[i - 8])
            if n in fill: fill[n]()
    o("s_cmp_lt_u32 s3, 4")
    o("s_cbranch_scc1 K1_O")

    for n in range(OPT.get("K1PRE", 2)): dma(n)
    addrs()
    o("s_barrier")
    gemm({}, {}, OPT.get("K1PRE", 2))
    o("s_branch K1_EPI")

    o.lab("K1_O")
    P = 80
    o(f"""
    s_lshr_b32 s55, s55, 1
    s_lshl_b32 s56, s2, 1
    s_add_u32 s56, s56, s55         ; ch
    s_lshl_b32 s58, s56, 8
    s_lshl_b32 s59, s30, 7
    s_add_u32 s58, s58, s59
    v_lshl_add_u32 v10, v0, 1, s58
    s_lshl_b32 s59, s56, 1
    v_mov_b32 v11, s59
    global_load_ushort v{P+6}, v11, s[44:45]
    global_load_ushort v{P}, v10, s[32:33]
    global_load_ushort v{P+1}, v10, s[34:35]
    global_load_ushort v{P+2}, v10, s[36:37]
    global_load_ushort v{P+3}, v10, s[38:39]
    global_load_ushort v{P+4}, v10, s[40:41]
    global_load_ushort v{P+5}, v10, s[42:43]
    """)
    dma(0); dma(1)
    addrs()
    T = 88
    GA = 168
    WA, RA = 78, 79
    o(f"""
    s_lshl_b32 s58, s30, 1
    s_add_u32 s58, s58, s55
    s_mul_i32 s58, s58, {K1_KS}
    s_add_u32 s58, s58, {K1_KB}
    v_lshl_add_u32 v{WA}, v0, 2, s58
    v_mul_u32_u24 v{RA}, 272, v2
    v_lshl_add_u32 v{RA}, v3, 4, v{RA}
    v_add_u32 v{RA}, s58, v{RA}
    s_mul_i32 s58, s55, {K1_KS}
    s_add_u32 s58, s58, {K1_KB + 2*K1_KS + 2048}
    v_lshl_add_u32 v{T}, v0, 4, s58
    """)
    for i in range(12): o(f"v_mov_b32 v{GA+i}, 0")
    sc = Sched()
    pairs = [r for r in range(36, 76, 2)] + [r for r in range(90, 168, 2)] + [r for r in range(180, 236, 2)]
    tpool = list(range(236, 256)); tix = [0]
    def newp(): return pairs.pop(0)
    def tmp():
        t = tpool[tix[0] % len(tpool)]; tix[0] += 1; return t
    def op(text, d, u, **k): sc.add(text, d, u, **k)
    for r in range(P, P + 7): op(f"v_lshlrev_b32 v{r}, 16, v{r}", [r], [r])
    D = P + 6
    op(f"v_mul_f32 v{D}, {f2u(LOG2E):#x}, v{D}", [D], [D])
    op(f"v_exp_f32 v{D}, v{D}", [D], [D], lat=16, cost=8, trans=True)
    op(f"v_cvt_pk_bf16_f32 v{D}, v{D}, v{D}", [D], [D])
    op(f"v_lshlrev_b32 v{D}, 16, v{D}", [D], [D])
    for k in range(4): op(f"v_mul_f32 v{P+k}, v{D}, v{P+k}", [P+k], [D, P+k])
    op(f"v_mul_f32 v{P}, {f2u(LOG2E):#x}, v{P}", [P], [P])
    op(f"v_mul_f32 v{P+1}, {f2u(1/(2*math.pi)):#x}, v{P+1}", [P+1], [P+1])
    C = newp()
    op(f"v_mul_f32 v{C}, v{P+4}, v{P+2}", [C], [P+4, P+2])
    op(f"v_mul_f32 v{C+1}, v{P+4}, v{P+3}", [C+1], [P+4, P+3])
    op(f"v_fma_f32 v{C}, -v{P+5}, v{P+3}, v{C}", [C], [P+5, P+3, C])
    op(f"v_fma_f32 v{C+1}, v{P+5}, v{P+2}, v{C+1}", [C+1], [P+5, P+2, C+1])
    def anchor(t):
        d = newp(); a_, b_, c_, e_ = tmp(), tmp(), tmp(), tmp()
        op(f"v_mul_f32 v{a_}, {f2u(float(t)):#x}, v{P}", [a_], [P])
        op(f"v_mul_f32 v{b_}, {f2u(float(t)):#x}, v{P+1}", [b_], [P+1])
        op(f"v_exp_f32 v{a_}, v{a_}", [a_], [a_], lat=16, cost=8, trans=True)
        op(f"v_fract_f32 v{b_}, v{b_}", [b_], [b_])
        op(f"v_cos_f32 v{c_}, v{b_}", [c_], [b_], lat=16, cost=8, trans=True)
        op(f"v_sin_f32 v{e_}, v{b_}", [e_], [b_], lat=16, cost=8, trans=True)
        op(f"v_mul_f32 v{d}, v{a_}, v{c_}", [d], [a_, c_])
        op(f"v_mul_f32 v{d+1}, v{a_}, v{e_}", [d+1], [a_, e_])
        return d
    def cmul(x, w):
        d = newp()
        op(f"v_pk_mul_f32 {vr(d,2)}, {vr(x,2)}, {vr(w,2)} op_sel:[0,0] op_sel_hi:[1,0]", [d, d+1], [x, x+1, w], lat=12)
        op(f"v_pk_fma_f32 {vr(d,2)}, {vr(x,2)}, {vr(w,2)}, {vr(d,2)} op_sel:[1,1,0] op_sel_hi:[0,1,1] neg_lo:[1,0,0]", [d, d+1], [x, x+1, w+1, d, d+1], lat=12)
        return d
    def put(e, x, neg=False):
        t = tmp()
        op(f"v_cvt_pk_bf16_f32 v{t}, v{x}, {'-' if neg else ''}v{x+1}", [t], [x, x+1])
        if not OPT.get("KNOW"): op(f"ds_write_b32 v{WA}, v{t} offset:{e*272}", [], [t])
    Z8, Z1, Z128 = anchor(8), anchor(1), anchor(128)
    t_ = tmp()
    op(f"v_mov_b32 v{t_}, 0x3f80", [t_], [])
    op(f"ds_write_b32 v{WA}, v{t_}", [], [t_])
    e = {1: Z8}
    e[2] = cmul(e[1], e[1]); e[3] = cmul(e[2], e[1]); e[4] = cmul(e[2], e[2])
    for j in (5, 6, 7): e[j] = cmul(e[4], e[j-4])
    e[8] = cmul(e[4], e[4])
    for j in range(9, 16): e[j] = cmul(e[8], e[j-8])
    for j in range(1, 16): put(j, e[j], True)
    x = {0: C}
    x[1] = cmul(C, Z1); Z2 = cmul(Z1, Z1); x[2] = cmul(x[0], Z2); x[3] = cmul(x[1], Z2); Z4 = cmul(Z2, Z2)
    for r in range(4, 8): x[r] = cmul(x[r-4], Z4)
    y = {r: cmul(x[r], Z128) for r in range(8)}
    Z256 = cmul(Z128, Z128)
    pp = {r: cmul(x[2*r], Z256) for r in range(4)}
    qq = {r: cmul(y[2*r], Z256) for r in range(4)}
    Z512 = cmul(Z256, Z256)
    rr = [cmul(v_, Z512) for v_ in (x[0], x[4], y[0], y[4], pp[0], pp[2], qq[0], qq[2])]
    Z1024 = cmul(Z512, Z512)
    ss = [cmul(v_, Z1024) for v_ in (x[0], y[0], pp[0], qq[0], rr[0], rr[2], rr[4], rr[6])]
    s2048 = cmul(ss[0], Z1024)
    for r in range(8): put(16 + r, x[r]); put(24 + r, y[r])
    for r in range(4): put(32 + r, pp[r]); put(36 + r, qq[r])
    for r in range(8): put(40 + r, rr[r])
    for r in range(8): put(48 + r, ss[r])
    put(56, s2048)
    o("s_waitcnt vmcnt(8)")
    if FINE: stamp(o, 3)
    est = sc.emit(o)
    if OPT.get("KST"): xstamp(o, 5)
    FB_ = 90
    for t in range(4):
        for s_ in range(4): o(f"ds_read_b128 {vr(FB_+16*t+4*s_,4)}, v{RA} offset:{t*4352 + 64*s_}")
    for t in range(3):
        o(f"s_waitcnt lgkmcnt({8 - 4*t})")
        if OPT.get("KST") and t == 0: xstamp(o, 6)
        for s_ in range(4):
            o(f"v_mfma_f32_16x16x32_bf16 {vr(GA+4*t,4)}, {vr(FB_+16+16*t+4*s_,4)}, {vr(FB_+4*s_,4)}, {vr(GA+4*t,4)}")
    o(f"""
    s_cmp_eq_u32 s30, 0
    s_cbranch_scc1 K1_A_F4
    s_nop 7
    ds_write_b128 v{T}, {vr(GA,4)}
    ds_write_b128 v{T}, {vr(GA+4,4)} offset:1024
    ds_write_b128 v{T}, {vr(GA+8,4)} offset:2048
    """)
    o.lab("K1_A_F4")
    X = [104 + 2 * i for i in range(8)]
    Y = [120 + 2 * i for i in range(8)]
    def f5():
        o(f"""
        s_cmp_lg_u32 s30, 0
        s_cbranch_scc1 K1_A_F5
        ds_read_b128 {vr(X[0],4)}, v{T}
        ds_read_b128 {vr(X[0]+4,4)}, v{T} offset:1024
        ds_read_b128 {vr(X[0]+8,4)}, v{T} offset:2048
        v_lshrrev_b32 v{Y[0]}, 1, v3
        v_lshlrev_b32 v{Y[0]}, 8, v{Y[0]}
        v_lshl_add_u32 v{Y[0]}, v2, 4, v{Y[0]}
        v_and_b32 v{Y[0]+1}, 1, v3
        v_lshl_add_u32 v{Y[0]}, v{Y[0]+1}, 3, v{Y[0]}
        v_cmp_gt_u32 s[60:61], 2, v3
        v_lshlrev_b32 v{Y[1]}, 2, v2
        v_lshlrev_b32 v{Y[1]+1}, 3, v2
        v_cndmask_b32 v{Y[1]}, v{Y[1]}, v{Y[1]+1}, s[60:61]
        v_lshl_add_u32 v{Y[1]}, v3, 7, v{Y[1]}
        v_mov_b32 v{Y[1]+1}, 64
        v_cndmask_b32 v{Y[1]+1}, v{Y[1]+1}, 4, s[60:61]
        v_add_u32 v{Y[1]+1}, v{Y[1]}, v{Y[1]+1}
        v_lshlrev_b32 v{Y[2]}, 7, v3
        v_lshl_add_u32 v{Y[2]}, v2, 1, v{Y[2]}
        v_add_u32 v{Y[0]}, s58, v{Y[0]}
        v_add_u32 v{Y[1]}, s58, v{Y[1]}
        v_add_u32 v{Y[1]+1}, s58, v{Y[1]+1}
        v_add_u32 v{Y[2]}, s58, v{Y[2]}
        s_waitcnt lgkmcnt(0)
        """)
        for i in range(12): o(f"v_add_f32 v{GA+i}, v{GA+i}, v{X[0]+i}")
        g = Y[4]
        for i in range(6): o(f"v_cvt_pk_bf16_f32 v{g+i}, v{GA+2*i}, v{GA+2*i+1}")
        o(f"""
        ds_write_b64 v{Y[0]}, {vr(g,2)}
        ds_write_b32 v{Y[1]}, v{g+2} offset:512
        ds_write_b32 v{Y[1]+1}, v{g+3} offset:512
        ds_write_b16 v{Y[2]}, v{g+4} offset:1024
        ds_write_b16_d16_hi v{Y[2]}, v{g+4} offset:1056
        ds_write_b16 v{Y[2]}, v{g+5} offset:1088
        ds_write_b16_d16_hi v{Y[2]}, v{g+5} offset:1120
        ds_read_b128 {vr(X[0],4)}, v{T}
        v_lshrrev_b32 v{T}, 1, v{T}
        s_lshr_b32 s59, s58, 1
        v_add_u32 v{T}, s59, v{T}
        ds_read_b64 {vr(X[0]+4,2)}, v{T} offset:1024
        s_mul_i32 s59, s56, {GC_SZ}
        s_add_u32 s59, s59, {GC_OFF:#x}
        v_lshlrev_b32 v{Y[0]}, 4, v0
        v_lshlrev_b32 v{Y[1]}, 3, v0
        """)
        o.lab("K1_A_F5")
    def f6():
        o(f"""
        s_lshl_b32 s60, s30, 10
        v_add_u32 v{T}, s60, v{T}
        ds_read_b128 {vr(X[0],4)}, v{T}
        s_mul_i32 s59, s56, {GC_SZ}
        s_add_u32 s59, s59, {GC_OFF:#x}
        s_add_u32 s59, s59, s60
        v_lshlrev_b32 v{Y[0]}, 4, v0
        s_sub_u32 s60, s30, 1
        s_waitcnt lgkmcnt(0)
        s_mov_b32 exec_hi, s60
        buffer_store_dwordx4 {vr(X[0],4)}, v{Y[0]}, s[20:23], s59 offen
        s_mov_b32 exec_hi, -1
        """)
    o("s_waitcnt lgkmcnt(0)")
    o("s_barrier")
    f5()
    def f7():
        o(f"""
        s_cmp_lg_u32 s30, 0
        s_cbranch_scc1 K1_A_F7
        buffer_store_dwordx4 {vr(X[0],4)}, v{Y[0]}, s[20:23], s59 offen
        buffer_store_dwordx2 {vr(X[0]+4,2)}, v{Y[1]}, s[20:23], s59 offen offset:1024
        """)
        o.lab("K1_A_F7")
    gemm({}, {6: f7}, 2)

    o.lab("K1_EPI")
    if not FINE: stamp(o, 3)
    o(f"""
    v_lshlrev_b32 v4, 4, v0
    s_lshl_b32 s49, s27, 2
    s_add_u32 s49, s49, s48         ; head
    s_lshl_b32 s49, s49, 6
    s_lshl_b32 s50, s26, 1
    s_add_u32 s49, s49, s50
    s_add_u32 s49, s49, s30
    s_lshl_b32 s50, s49, 11
    s_lshl_b32 s49, s49, 10
    s_add_u32 s50, s50, {KV_OFF:#x}
    s_mov_b32 s51, {f2u(0.25*LOG2E):#x}
    """)
    def cv(a):
        b = ACC + 4 * a
        o(f"v_cvt_pk_bf16_f32 v{FR+2*a}, v{b}, v{b+1}")
        o(f"v_cvt_pk_bf16_f32 v{FR+1+2*a}, v{b+2}, v{b+3}")
    def sw(a):
        o(f"v_permlane16_swap_b32 v{FR+4*a}, v{FR+4*a+2}")
        o(f"v_permlane16_swap_b32 v{FR+4*a+1}, v{FR+4*a+3}")
    cv(2); cv(3); cv(4); cv(5)
    sw(1)
    for i in range(4): o(f"v_mul_f32 v{ACC+i}, s51, v{ACC+i}")
    o(f"buffer_store_dwordx4 {vr(FR+4,4)}, v4, s[20:23], s50 offen")
    sw(2)
    for i in range(4, 8): o(f"v_mul_f32 v{ACC+i}, s51, v{ACC+i}")
    o(f"buffer_store_dwordx4 {vr(FR+8,4)}, v4, s[20:23], s50 offen offset:1024")
    cv(0); cv(1)
    o("s_nop 1")
    sw(0)
    o("s_nop 1")
    o(f"buffer_store_dwordx4 {vr(FR,4)}, v4, s[20:23], s49 offen")
    stamp_out(o, 0)
    o.lab("K1_END0")
    o("s_endpgm")

K2_LDS = 131072 + 26624 + 2048
K2_EARLY = 6
K2_B4 = 8
def k2(o):
    kstart(o, "k2_kernel")
    rstamp(o, 0); stamp(o, 1)
    o(f"""
    s_cmp_ge_u32 s2, 256
    s_cbranch_scc1 K2_END0
    s_load_dwordx2 s[28:29], s[0:1], 112
    s_load_dwordx4 s[4:7], s[0:1], 16
    s_load_dwordx4 s[8:11], s[0:1], 88
    v_lshrrev_b32 v1, 6, v0
    v_and_b32 v0, 63, v0
    s_nop 0
    v_readfirstlane_b32 s3, v1
    v_lshlrev_b32 v1, 4, v0
    s_and_b32 s24, s2, 7
    s_lshr_b32 s25, s2, 3
    s_waitcnt lgkmcnt(0)
    """)
    if FINE: stamp(o, 3)
    srd(o, 20, 28, WS_USED)
    if OPT.get("K2EXIT"):
        stamp_out(o, 1)
        o("s_endpgm")
    o(f"""
    s_lshl_b32 s26, s24, 2
    s_and_b32 s27, s25, 3
    s_add_u32 s26, s26, s27         ; head
    s_lshr_b32 s27, s25, 2          ; qb
    s_lshl_b32 s31, s3, 10
    s_lshl_b32 s30, s26, 17
    s_add_u32 s30, s30, {KV_OFF:#x}
    s_add_u32 s30, s30, s31
    s_mov_b32 m0, s31
    s_cmp_ge_u32 s3, 4
    s_cbranch_scc1 K2_CONV
    """)
    QA, QB, NMA, NMB, OA, OB, SX, SY = 4, 8, 12, 28, 44, 60, 76, 92
    KF, V0, V1, IDX, AD, MB = (108, 112), (116, 120), (124, 128), 132, 2, 133
    o(f"""
    s_lshl_b32 s35, s26, 6
    s_lshl_b32 s36, s27, 3
    s_add_u32 s35, s35, s36
    s_lshl_b32 s36, s3, 1
    s_add_u32 s35, s35, s36
    s_lshl_b32 s35, s35, 10
    buffer_load_dwordx4 v1, s[20:23], s30 offen lds
    buffer_load_dwordx4 {vr(QA,4)}, v1, s[20:23], s35 offen
    buffer_load_dwordx4 {vr(QB,4)}, v1, s[20:23], s35 offen offset:1024
    s_add_u32 s30, s30, 8192
    s_add_u32 m0, m0, 8192
    s_nop 0
    buffer_load_dwordx4 v1, s[20:23], s30 offen lds
    """)
    def vinit():
        o("s_mov_b64 exec, s[42:43]")
        for r in range(V0[0], V0[0] + 16): o(f"v_mov_b32 v{r}, 0x3f803f80")
        o("s_not_b64 exec, exec")
        for r in range(V0[0], V0[0] + 16): o(f"v_mov_b32 v{r}, 0")
        o("s_mov_b64 exec, -1")
    o(f"""
    s_mov_b32 s40, 0xffff
    s_mov_b32 s41, 0xffff
    s_mov_b32 s42, 0x110000
    s_mov_b32 s43, 0x110000
    s_mov_b32 s34, 0
    v_mov_b32 v{IDX}, 0xdddd
    """)
    vinit()
    if OPT.get("APRIO"): o(f"s_setprio {OPT['APRIO']}")
    o("s_waitcnt vmcnt(0)")
    o("s_barrier")
    stamp(o, 2)
    o(f"""
    ds_read_b128 {vr(KF[0],4)}, v1
    ds_read_b128 {vr(KF[1],4)}, v1 offset:2048
    s_mov_b64 exec, s[40:41]
    ds_read_b128 {vr(V0[0],4)}, v1 offset:1024
    ds_read_b128 {vr(V1[0],4)}, v1 offset:1280
    s_mov_b64 exec, -1
    s_waitcnt lgkmcnt(3)
    v_mfma_f32_32x32x16_bf16 {vr(SX,16)}, {vr(KF[0],4)}, {vr(QA,4)}, 0
    v_mfma_f32_32x32x16_bf16 {vr(SY,16)}, {vr(KF[0],4)}, {vr(QB,4)}, 0
    """)
    for i in range(16): o(f"v_mov_b32 v{OA+i}, 0")
    def maxred(src, dst):
        o(f"v_max3_f32 v{dst}, v{src}, v{src+1}, v{src+2}")
        for i in range(3, 15, 2): o(f"v_max3_f32 v{dst}, v{dst}, v{src+i}, v{src+i+1}")
        o(f"v_max_f32 v{dst}, v{dst}, v{src+15}")
    maxred(SX, 3)
    maxred(SY, MB)
    o.lab("K2_PASS")
    o(f"""
    v_mov_b32 v{AD}, v3
    v_mov_b32 v{MB+1}, v{MB}
    s_nop 1
    v_permlane32_swap_b32 v3, v{AD}
    v_permlane32_swap_b32 v{MB}, v{MB+1}
    s_nop 1
    v_max_f32 v3, v3, v{AD}
    v_max_f32 v{MB}, v{MB}, v{MB+1}
    v_mov_b32 v{AD}, v1
    """)
    for i in range(16): o(f"v_sub_f32 v{NMA+i}, 0, v3")
    o("s_nop 1")
    o(f"v_mfma_f32_32x32x16_bf16 {vr(SX,16)}, {vr(KF[0],4)}, {vr(QA,4)}, {vr(NMA,16)}")
    for i in range(16): o(f"v_sub_f32 v{NMB+i}, 0, v{MB}")
    for i in range(16): o(f"v_mov_b32 v{OB+i}, 0")
    for i in range(8, 16): o(f"v_mov_b32 v{SY+i}, 0")
    o(f"""
    s_mov_b32 s32, 0                ; iteration
    s_cmp_eq_u32 s34, 0
    s_cselect_b32 s33, 1, 16        ; limit
    """)
    o.raw(".p2align 6")
    o.lab("K2_LOOP")
    def ex(X, a, b):
        for i in range(a, b): o(f"v_exp_f32 v{X+i}, v{X+i}")
    for u in range(4):
        p = u & 1
        ex(SX, 0, 3)
        o("s_waitcnt lgkmcnt(0)")
        o(f"v_smfmac_f32_32x32x32_bf16 {vr(OB,16)}, {vr(V1[p^1],4)}, {vr(SY+8,8)}, v{IDX}")
        o("s_mov_b64 exec, s[40:41]")
        o(f"ds_read_b128 {vr(V0[p^1],4)}, v{AD} offset:{(u+1)*2048+1024}")
        o(f"ds_read_b128 {vr(V1[p^1],4)}, v{AD} offset:{(u+1)*2048+1280}")
        o("s_mov_b64 exec, -1")
        ex(SX, 3, 8)
        o(f"v_mfma_f32_32x32x16_bf16 {vr(SY,16)}, {vr(KF[p],4)}, {vr(QB,4)}, {vr(NMB,16)}")
        o(f"ds_read_b128 {vr(KF[p],4)}, v{AD} offset:{(u+2)*2048}")
        ex(SX, 8, 13)
        o(f"v_smfmac_f32_32x32x32_bf16 {vr(OA,16)}, {vr(V0[p],4)}, {vr(SX,8)}, v{IDX}")
        ex(SX, 13, 16)
        if u == 3:
            o(f"v_add_u32 v{AD}, 8192, v{AD}")
            o("s_add_u32 s32, s32, 1")
            o("s_cmp_lt_u32 s32, s33")
        ex(SY, 0, 3)
        o(f"v_smfmac_f32_32x32x32_bf16 {vr(OA,16)}, {vr(V1[p],4)}, {vr(SX+8,8)}, v{IDX}")
        ex(SY, 3, 8)
        o(f"v_mfma_f32_32x32x16_bf16 {vr(SX,16)}, {vr(KF[p^1],4)}, {vr(QA,4)}, {vr(NMA,16)}")
        ex(SY, 8, 13)
        o(f"v_smfmac_f32_32x32x32_bf16 {vr(OB,16)}, {vr(V0[p],4)}, {vr(SY,8)}, v{IDX}")
        ex(SY, 13, 16)
    o(f"""
    s_cbranch_scc1 K2_LOOP
    s_cmp_ge_u32 s32, 16
    s_cbranch_scc1 K2_FIN
    s_barrier
    """)
    if not FINE: stamp(o, 4)
    o(f"""
    s_cmp_eq_u32 s32, {OPT.get("B3", 5)}
    s_cselect_b32 s33, {OPT.get("B4", 7)}, 16
    s_cmp_eq_u32 s32, 1
    s_cselect_b32 s33, {OPT.get("B3", 5)}, s33
    s_branch K2_LOOP
    """)
    o.lab("K2_FIN")
    if not FINE: stamp(o, 5)
    o(f"""
    v_smfmac_f32_32x32x32_bf16 {vr(OB,16)}, {vr(V1[1],4)}, {vr(SY+8,8)}, v{IDX}
    v_mul_f32 v3, 0, v{OA+8}
    """)
    for i in range(8): o(f"v_fma_f32 v3, v{OA+i}, 0, v3")
    o("s_nop 3")
    for i in range(9): o(f"v_fma_f32 v3, v{OB+i}, 0, v3")
    o(f"""
    s_cmp_lg_u32 s34, 0
    s_cbranch_scc1 K2_OUT
    v_cmp_u_f32 vcc, v3, v3
    s_nop 1
    s_cbranch_vccz K2_OUT
    s_mov_b32 s34, 1
    s_mov_b32 s32, 0
    v_mov_b32 v{AD}, v1
    v_mov_b32 v3, 0xff800000
    v_mov_b32 v{MB}, 0xff800000
    s_waitcnt lgkmcnt(0)
    """)
    o.lab("K2_MAXL")
    o(f"""
    ds_read_b128 {vr(KF[0],4)}, v{AD}
    v_add_u32 v{AD}, 2048, v{AD}
    s_waitcnt lgkmcnt(0)
    v_mfma_f32_32x32x16_bf16 {vr(SX,16)}, {vr(KF[0],4)}, {vr(QA,4)}, 0
    v_mfma_f32_32x32x16_bf16 {vr(SY,16)}, {vr(KF[0],4)}, {vr(QB,4)}, 0
    s_nop 15
    """)
    for i in range(0, 16, 2): o(f"v_max3_f32 v3, v3, v{SX+i}, v{SX+i+1}")
    for i in range(0, 16, 2): o(f"v_max3_f32 v{MB}, v{MB}, v{SY+i}, v{SY+i+1}")
    o(f"""
    s_add_u32 s32, s32, 1
    s_cmp_lt_u32 s32, 64
    s_cbranch_scc1 K2_MAXL
    """)
    vinit()
    o(f"""
    ds_read_b128 {vr(KF[0],4)}, v1
    ds_read_b128 {vr(KF[1],4)}, v1 offset:2048
    s_mov_b64 exec, s[40:41]
    ds_read_b128 {vr(V0[0],4)}, v1 offset:1024
    ds_read_b128 {vr(V1[0],4)}, v1 offset:1280
    s_mov_b64 exec, -1
    """)
    for i in range(16): o(f"v_mov_b32 v{OA+i}, 0")
    o("s_waitcnt lgkmcnt(0)")
    o("s_branch K2_PASS")
    o.lab("K2_OUT")
    o(f"""
    v_rcp_f32 v3, v{OA+8}
    v_rcp_f32 v{MB}, v{OB+8}
    s_lshl_b32 s30, s27, 3
    s_lshl_b32 s31, s3, 1
    s_add_u32 s30, s30, s31
    s_lshl_b32 s30, s30, 5
    s_add_u32 s30, s30, s26
    s_lshl_b32 s30, s30, 10
    s_add_u32 s30, s30, {OF_OFF:#x}
    s_add_u32 s31, s30, 32768
    """)
    for i in range(8): o(f"v_mul_f32 v{OA+i}, v{OA+i}, v3")
    for i in range(4): o(f"v_cvt_pk_bf16_f32 v{SX+i}, v{OA+2*i}, v{OA+2*i+1}")
    o(f"buffer_store_dwordx4 {vr(SX,4)}, v1, s[20:23], s30 offen")
    for i in range(8): o(f"v_mul_f32 v{OB+i}, v{OB+i}, v{MB}")
    for i in range(4): o(f"v_cvt_pk_bf16_f32 v{SX+4+i}, v{OB+2*i}, v{OB+2*i+1}")
    o(f"buffer_store_dwordx4 {vr(SX+4,4)}, v1, s[20:23], s31 offen")
    stamp_out(o, 1)
    o("s_endpgm")

    CHL = 131072
    L_E, L_C1, L_UT, L_U1 = 4160, 8320, 16640, 4608
    o.lab("K2_CONV")
    srd(o, 16, 10, 2048*2048)
    o(f"""
    buffer_load_dwordx4 v1, s[20:23], s30 offen lds
    s_add_u32 s30, s30, 8192
    s_add_u32 m0, m0, 8192
    s_sub_u32 s3, s3, 4             ; w'
    buffer_load_dwordx4 v1, s[20:23], s30 offen lds
    s_add_u32 s30, s30, 4096
    s_add_u32 m0, m0, 4096
    s_lshl_b32 s31, s3, 10
    """)
    def kvdma(n):
        for i in range(n):
            o("s_nop 0")
            o("buffer_load_dwordx4 v1, s[20:23], s30 offen lds")
            o("s_add_u32 s30, s30, 4096")
            o("s_add_u32 m0, m0, 4096")
    kvdma(8)
    o(f"""
    s_lshl_b32 s26, s24, 5
    s_add_u32 s26, s26, s25
    s_lshl_b32 s32, s26, 2
    s_lshr_b32 s33, s3, 1           ; ch'
    s_and_b32 s34, s3, 1
    s_lshl_b32 s35, s26, 1
    s_add_u32 s35, s35, s33
    s_mul_i32 s35, s35, {GC_SZ}
    s_add_u32 s35, s35, {GC_OFF:#x}
    v_lshlrev_b32 v5, 3, v0
    v_lshlrev_b32 v6, 2, v0
    v_mov_b32 v7, 0
    v_mov_b32 v8, s32
    s_waitcnt vmcnt(8)
    s_barrier
    buffer_load_dwordx2 v[50:51], v5, s[20:23], s35 offen
    buffer_load_dword v52, v5, s[20:23], s35 offen offset:8
    buffer_load_dwordx2 v[54:55], v6, s[20:23], s35 offen offset:512
    buffer_load_dwordx2 v[56:57], v6, s[20:23], s35 offen offset:768
    buffer_load_dwordx2 v[58:59], v6, s[20:23], s35 offen offset:1024
    buffer_load_ushort v60, v7, s[20:23], s35 offen
    global_load_dword v16, v8, s[8:9]
    """)
    kvdma(K2_EARLY)
    o(f"""
    s_waitcnt vmcnt({7 + K2_EARLY})
    s_barrier
    """)
    kvdma(20 - K2_EARLY)
    srd(o, 48, 6, 2048*1024)
    o(f"""
    v_lshlrev_b32 v9, 10, v0
    s_lshl_b32 s36, s3, 19
    s_add_u32 s36, s36, s32
    """)
    G1 = OPT.get("G1", 5)
    o("v_mov_b32 v106, v9")
    o("s_lshl_b32 s46, s3, 3")
    o("s_add_u32 s46, s46, s25")
    def gath(a_, b_):
        for i in range(a_, b_):
            o(f"s_add_u32 s47, s46, {i}")
            o("s_and_b32 s47, s47, 31")
            o(f"s_lshl_b32 s{52+i}, s47, 7")
            o("s_lshl_b32 s47, s47, 16")
            o("s_add_u32 s47, s47, s32")
            o(f"buffer_load_dword v{96+i}, v106, s[48:51], s47 offen")
    srd(o, 12, 4, 512*1024)
    o(f"""
    v_lshrrev_b32 v9, 2, v0
    v_lshlrev_b32 v9, 10, v9
    v_and_b32 v10, 3, v0
    v_lshl_add_u32 v9, v10, 4, v9
    s_lshr_b32 s36, s2, 3
    s_lshl_b32 s36, s36, 14
    s_and_b32 s44, s2, 7
    s_lshl_b32 s44, s44, 1
    s_add_u32 s44, s44, s34         ; ntile
    s_lshl_b32 s45, s44, 6
    s_add_u32 s36, s36, s45
    s_lshl_b32 s45, s34, 10
    s_add_u32 m0, s45, {CHL + 26624}
    s_cmp_ge_u32 s3, 2
    s_cbranch_scc1 K2_NWO
    buffer_load_dwordx4 v9, s[12:15], s36 offen lds
    """)
    o.lab("K2_NWO")
    gath(0, G1)
    o(f"""
    v_lshrrev_b32 v104, 5, v0
    v_bfe_u32 v105, v0, 2, 2
    v_lshl_add_u32 v104, v104, 2, v105
    v_lshlrev_b32 v104, 6, v104
    v_bfe_u32 v105, v0, 4, 1
    v_lshl_add_u32 v104, v105, 5, v104
    v_lshl_add_u32 v104, v10, 3, v104
    s_add_u32 s45, s45, {CHL + 26624}
    v_add_u32 v104, s45, v104
    s_lshl_b32 s44, s44, 5
    s_lshr_b32 s45, s2, 3
    s_add_u32 s44, s44, s45
    s_lshl_b32 s44, s44, 10
    s_add_u32 s44, s44, {WOF_OFF:#x}
    v_lshlrev_b32 v105, 1, v0
    v_sub_u32 v105, {CHL + L_UT + 4094}, v105
    v_and_b32 v2, 15, v0
    v_lshrrev_b32 v3, 4, v0
    s_sub_u32 s27, 7, s3            ; iH
    v_lshlrev_b32 v4, 2, v3
    v_lshl_add_u32 v4, v2, 4, v4    ; 16a+4g
    v_lshlrev_b32 v9, 1, v4
    v_sub_u32 v9, {CHL + L_UT + 4088}, v9
    v_lshlrev_b32 v4, 11, v4        ; *2048 (out)
    ; A addresses
    v_and_b32 v10, 1, v2
    v_mul_u32_u24 v17, {L_E}, v10
    v_add_u32 v11, v2, v10
    v_lshl_add_u32 v17, v11, 1, v17
    v_lshl_add_u32 v17, v3, 4, v17
    v_add_u32 v17, {CHL}, v17       ; A ch0
    v_add_u32 v18, {L_C1}, v17      ; A ch1
    v_lshlrev_b32 v10, 5, v2
    v_lshlrev_b32 v11, 4, v3
    v_sub_u32 v11, v11, v10
    v_add_u32 v11, {CHL + L_UT + 4064}, v11
    s_lshl_b32 s35, s27, 9
    s_lshl_b32 s36, s3, 9
    v_subrev_u32 v19, s35, v11      ; B H
    v_subrev_u32 v20, s36, v11      ; B L
    v_subrev_u32 v21, s35, v9       ; skip H
    v_subrev_u32 v22, s36, v9       ; skip L
    s_mul_i32 s38, s33, {L_C1}
    s_xor_b32 s39, s34, 1
    s_mul_i32 s39, s39, {L_E}
    s_add_u32 s38, s38, s39
    s_add_u32 s38, s38, {CHL}
    v_add_u32 v5, s38, v5           ; +8t
    v_lshl_add_u32 v6, v0, 4, s38   ; +16t
    v_lshl_add_u32 v7, v0, 5, s38   ; +32t
    v_lshl_add_u32 v8, v0, 2, s38   ; +4t
    s_mul_i32 s39, s33, {L_U1}
    s_add_u32 s39, s39, {CHL + L_UT + 4096}
    v_lshl_add_u32 v10, v0, 3, s39
    s_mov_b32 s40, 0x01000100
    s_mov_b32 s41, 0x03020302
    v_mov_b32 v92, 0
    v_mov_b32 v93, 0
    v_cmp_eq_u32 s[42:43], 7, v0
    s_waitcnt vmcnt({20 + G1})
    s_cmp_eq_u32 s34, 0
    s_cbranch_scc0 K2_XO
    v_perm_b32 v64, v54, v54, s40
    v_alignbit_b32 v65, v55, v54, 16
    v_perm_b32 v68, v56, v56, s40
    v_mov_b32 v69, v56
    v_perm_b32 v70, v56, v56, s41
    v_perm_b32 v71, v57, v57, s40
    v_perm_b32 v76, v58, v58, s40
    v_mov_b32 v77, v76
    v_mov_b32 v78, v58
    v_perm_b32 v79, v58, v58, s41
    v_mov_b32 v80, v79
    v_mov_b32 v81, v79
    v_perm_b32 v82, v59, v59, s40
    v_mov_b32 v83, v82
    v_mov_b32 v60, 0
    ds_write_b64 v10, v[92:93]
    s_branch K2_XW
    """)
    o.lab("K2_XO")
    o(f"""
    v_alignbit_b32 v50, v51, v50, 16
    v_alignbit_b32 v51, v52, v51, 16
    v_mov_b32 v64, v54
    v_perm_b32 v65, v55, v55, s40
    v_perm_b32 v68, v56, v56, s40
    v_perm_b32 v69, v56, v56, s41
    v_alignbit_b32 v70, v57, v56, 16
    v_perm_b32 v71, v57, v57, s40
    v_perm_b32 v76, v58, v58, s40
    v_mov_b32 v77, v76
    v_perm_b32 v78, v58, v58, s41
    v_mov_b32 v79, v78
    v_mov_b32 v80, v78
    v_alignbit_b32 v81, v59, v58, 16
    v_perm_b32 v82, v59, v59, s40
    v_mov_b32 v83, v82
    v_lshlrev_b32 v60, 16, v60
    v_cndmask_b32 v60, 0, v60, s[42:43]
    """)
    o.lab("K2_XW")
    o(f"""
    ds_write_b64 v5, v[50:51] offset:32
    ds_write_b64 v5, v[64:65] offset:544
    ds_write_b128 v6, v[68:71] offset:1056
    ds_write_b128 v7, v[76:79] offset:2080
    ds_write_b128 v7, v[80:83] offset:2096
    s_mov_b64 exec, 0xff
    ds_write_b32 v8, v60
    s_mov_b64 exec, -1
    """)
    CA = 24
    for i in range(16): o(f"v_mov_b32 v{CA+i}, 0")
    FB = 40
    def creads(st, both):
        b = FB + (st & 1) * 24
        k = st % 8 if st < 8 else 8
        return b
    def issue(buf, k, both):
        if OPT.get("CNOLDS"): return
        b = FB + buf * 24
        o(f"ds_read2_b32 {vr(b,2)}, v17 offset0:{16*k} offset1:{16*k+1}")
        o(f"ds_read2_b32 {vr(b+2,2)}, v17 offset0:{16*k+2} offset1:{16*k+3}")
        o(f"ds_read2_b32 {vr(b+4,2)}, v18 offset0:{16*k} offset1:{16*k+1}")
        o(f"ds_read2_b32 {vr(b+6,2)}, v18 offset0:{16*k+2} offset1:{16*k+3}")
        o(f"ds_read_b128 {vr(b+8,4)}, v19 offset:{64*k}")
        o(f"ds_read_b128 {vr(b+12,4)}, v19 offset:{64*k+L_U1}")
        if both:
            o(f"ds_read_b128 {vr(b+16,4)}, v20 offset:{64*k}")
            o(f"ds_read_b128 {vr(b+20,4)}, v20 offset:{64*k+L_U1}")
    def cloop(lab, both):
        o.lab(lab)
        for k in range(8):
            issue((k + 1) & 1, k + 1, both)
            o(f"s_waitcnt lgkmcnt({8 if both else 6})")
            b = FB + (k & 1) * 24
            if OPT.get("CNOMF"): continue
            o(f"v_mfma_f32_16x16x32_bf16 {vr(CA,4)}, {vr(b,4)}, {vr(b+8,4)}, {vr(CA,4)}")
            o(f"v_mfma_f32_16x16x32_bf16 {vr(CA+4,4)}, {vr(b+4,4)}, {vr(b+12,4)}, {vr(CA+4,4)}")
            if both:
                o(f"v_mfma_f32_16x16x32_bf16 {vr(CA+8,4)}, {vr(b,4)}, {vr(b+16,4)}, {vr(CA+8,4)}")
                o(f"v_mfma_f32_16x16x32_bf16 {vr(CA+12,4)}, {vr(b+4,4)}, {vr(b+20,4)}, {vr(CA+12,4)}")
        for r in (17, 18, 19, 20): o(f"v_add_u32 v{r}, 512, v{r}")
        o("s_add_u32 s37, s37, 1")
    o(f"""
    s_waitcnt vmcnt({G1})
    s_barrier
    """)
    stamp(o, 4)
    gath(G1, 8)
    for i in range(8):
        o(f"v_subrev_u32 v{107 + (i & 1)}, s{52+i}, v105")
        o(f"s_waitcnt vmcnt({7 - i})")
        o(f"ds_write_b16 v{107 + (i & 1)}, v{96+i}")
        o(f"ds_write_b16_d16_hi v{107 + (i & 1)}, v{96+i} offset:{L_U1}")
    o(f"""
    s_cmp_ge_u32 s3, 2
    s_cbranch_scc1 K2_NWS
    ds_read_b64_tr_b16 v[96:97], v104
    ds_read_b64_tr_b16 v[98:99], v104 offset:512
    s_waitcnt lgkmcnt(0)
    buffer_store_dwordx4 v[96:99], v1, s[20:23], s44 offen
    """)
    o.lab("K2_NWS")
    stamp(o, 5)
    o(f"""
    s_waitcnt lgkmcnt(0)
    s_barrier
    s_mov_b32 s37, 0
    """)
    stamp(o, 2)
    if OPT.get("NOCONV"):
        stamp_out(o, 1, wadd=4)
        o("s_endpgm")
    if OPT.get("CPRIO"): o(f"s_setprio {OPT['CPRIO']}")
    issue(0, 0, True)
    def fin(blk):
        ad = 21 + blk
        o(f"""
        ds_read_b64 v[8:9], v{ad}
        ds_read_b64 v[10:11], v{ad} offset:{L_U1}
        v_lshlrev_b32 v6, 16, v16
        v_and_b32 v7, 0xffff0000, v16
        s_lshl_b32 s33, s{27 if blk == 0 else 3}, 19
        s_add_u32 s33, s33, s32
        s_add_u32 s33, s33, 1024
        s_add_u32 s35, s33, 4096
        s_waitcnt lgkmcnt(0)
        """)
        for r in range(4):
            y0, y1 = CA + 8 * blk + r, CA + 8 * blk + 4 + r
            for c, y, dd in ((0, y0, 6), (1, y1, 7)):
                src = 8 + 2 * c + (1 - (r >> 1))
                if r & 1: o(f"v_lshlrev_b32 v{12+c}, 16, v{src}")
                else:     o(f"v_and_b32 v{12+c}, 0xffff0000, v{src}")
                o(f"v_fma_f32 v{y}, v{12+c}, v{dd}, v{y}")
            o(f"v_cvt_pk_bf16_f32 v{88+4*blk+r}, v{y0}, v{y1}")
            o(f"buffer_store_dword v{88+4*blk+r}, v4, s[16:19], s{(33, 35)[r >> 1]} offen offset:{2048*(r&1)}")
    cloop("K2_CA", True)
    o("s_cmp_le_u32 s37, s3")
    o("s_cbranch_scc1 K2_CA")
    fin(1)
    cloop("K2_CB", False)
    o("s_cmp_le_u32 s37, s27")
    o("s_cbranch_scc1 K2_CB")
    stamp(o, 3)
    fin(0)
    stamp_out(o, 1, wadd=4)
    o.lab("K2_END0")
    o("s_endpgm")

K3_LDS = 49152
def k3(o):
    kstart(o, "k3_kernel")
    rstamp(o, 0); stamp(o, 1)
    o(f"""
    s_cmp_ge_u32 s2, 256
    s_cbranch_scc1 K3_END0
    s_load_dwordx2 s[28:29], s[0:1], 112
    s_load_dwordx2 s[10:11], s[0:1], 96
    v_lshrrev_b32 v1, 6, v0
    v_and_b32 v0, 63, v0
    s_nop 0
    v_readfirstlane_b32 s3, v1
    v_lshlrev_b32 v1, 4, v0
    s_and_b32 s24, s2, 7
    s_lshr_b32 s25, s2, 3
    s_lshl_b32 s26, s24, 2
    s_and_b32 s27, s25, 3
    s_add_u32 s26, s26, s27         ; tb
    s_lshr_b32 s27, s25, 2          ; nb
    s_and_b32 s30, s3, 1
    s_lshr_b32 s31, s3, 1
    s_lshl_b32 s32, s26, 1
    s_add_u32 s32, s32, s30
    s_xor_b32 s33, s32, 1
    s_lshl_b32 s34, s27, 1
    s_add_u32 s34, s34, s31
    s_xor_b32 s35, s34, 1
    s_lshl_b32 s36, s3, 13          ; w*8 heads*1024
    s_lshl_b32 s40, s34, 15
    s_lshl_b32 s41, s35, 15
    s_lshl_b32 s42, s32, 15
    s_lshl_b32 s43, s33, 15
    s_add_u32 s36, s36, {OF_OFF:#x}
    s_add_u32 s42, s42, s36
    s_add_u32 s43, s43, s36
    s_add_u32 s36, s36, {WOF_OFF-OF_OFF:#x}
    s_add_u32 s40, s40, s36
    s_add_u32 s41, s41, s36
    s_add_u32 s44, s40, 4096
    s_add_u32 s45, s41, 4096
    s_add_u32 s46, s42, 4096
    s_add_u32 s47, s43, 4096
    s_waitcnt lgkmcnt(0)
    """)
    srd(o, 20, 28, WS_USED)
    srd(o, 16, 10, 2048*2048)
    FR = 68
    for h in range(8):
        for k in range(4):
            o(f"buffer_load_dwordx4 {vr(FR+16*h+4*k,4)}, v1, s[20:23], s{40+k+(4 if h>=4 else 0)} offen offset:{1024*(h&3)}")
    AC = 4
    for h in range(8):
        o(f"s_waitcnt vmcnt({28-4*h})")
        if h == 0: stamp(o, 2)
        b = FR + 16 * h
        for k in range(4):
            ka, kb = k >> 1, k & 1
            c = vr(AC + 16 * k, 16)
            o(f"v_mfma_f32_32x32x16_bf16 {c}, {vr(b+4*ka,4)}, {vr(b+8+4*kb,4)}, {c if h else 0}")
    stamp(o, 3)
    o("s_nop 7")
    for k in range(1, 4):
        o(f"s_xor_b32 s36, s3, {k}")
        o(f"s_mul_i32 s36, s36, 12288")
        o(f"v_add_u32 v{2 + (k & 1)}, s36, v1")
        if k == 1: o("s_nop 7")
        for q in range(4):
            o(f"ds_write_b128 v{2 + (k & 1)}, {vr(AC+16*k+4*q,4)} offset:{(k-1)*4096 + q*1024}")
    o(f"""
    s_mul_i32 s36, s3, 12288
    v_add_u32 v2, s36, v1
    s_waitcnt lgkmcnt(0)
    s_barrier
    """)
    for k in range(3):
        for q in range(4):
            o(f"ds_read_b128 {vr(FR+16*k+4*q,4)}, v2 offset:{k*4096 + q*1024}")
    o(f"""
    v_and_b32 v2, 31, v0
    v_lshlrev_b32 v2, 11, v2
    v_lshrrev_b32 v3, 5, v0
    v_lshl_add_u32 v2, v3, 4, v2
    s_lshl_b32 s36, s32, 16
    s_lshl_b32 s37, s34, 6
    s_add_u32 s36, s36, s37
    """)
    for k in range(3):
        o(f"s_waitcnt lgkmcnt({8-4*k})")
        for i in range(16): o(f"v_add_f32 v{AC+i}, v{AC+i}, v{FR+16*k+i}")
    for i in range(8): o(f"v_cvt_pk_bf16_f32 v{24+i}, v{AC+2*i}, v{AC+2*i+1}")
    o(f"""
    s_nop 1
    v_permlane32_swap_b32 v24, v26
    v_permlane32_swap_b32 v25, v27
    v_permlane32_swap_b32 v28, v30
    v_permlane32_swap_b32 v29, v31
    s_nop 1
    buffer_store_dwordx4 v[24:27], v2, s[16:19], s36 offen
    buffer_store_dwordx4 v[28:31], v2, s[16:19], s36 offen offset:32
    """)
    stamp_out(o, 2)
    o.lab("K3_END0")
    o("s_endpgm")

def main(out):
    hdr = open(f"cdna_kernels/{NAME}.s.ref").read().split("; Override launch")[0]
    o = A()
    o.raw(hdr.rstrip())
    for _ in range(OPT.get("PRE", 0)): o.raw("; @launch kernel=k0_kernel grid=(1,1,1) block=(64,1,1) lds=0")
    o.raw(f"; @launch kernel=k1_kernel grid=(256,1,1) block=(512,1,1) lds={K1_LDS}")
    o.raw(f"; @launch kernel=k2_kernel grid=(256,1,1) block=(512,1,1) lds={K2_LDS}")
    o.raw(f"; @launch kernel=k3_kernel grid=(256,1,1) block=(256,1,1) lds={K3_LDS}")
    for _ in range(OPT.get("POST", 0)): o.raw("; @launch kernel=k0_kernel grid=(1,1,1) block=(64,1,1) lds=0")
    o.raw('.amdgcn_target "amdgcn-amd-amdhsa--gfx950"\n.text')
    if OPT.get("PRE") or OPT.get("POST"):
        kstart(o, "k0_kernel"); o("s_endpgm")
    k1(o); k2(o); k3(o)
    o.raw('.section .rodata,"a"')
    if OPT.get("PRE") or OPT.get("POST"): o.raw(kdesc("k0_kernel", 8))
    o.raw(kdesc("k1_kernel", 256))
    o.raw(kdesc("k2_kernel", 136))
    o.raw(kdesc("k3_kernel", 196))
    txt = o.text()
    if STFLAG:
        import re
        txt = "\n".join((l + " " + STFLAG) if l.strip().startswith("buffer_store") and "s80" not in l and "s[16:19]" not in l else l for l in txt.split("\n"))
    open(out, "w").write(txt)

if __name__ == "__main__":
    if "--stamp" in sys.argv:
        STAMP = True; sys.argv.remove("--stamp")
    for a_ in list(sys.argv):
        if a_.startswith("-D"):
            kk, _, vv = a_[2:].partition("="); OPT[kk] = int(vv or 1); sys.argv.remove(a_)
    for a_ in list(sys.argv):
        if a_.startswith("--st="):
            STFLAG = a_[5:].replace(",", " "); sys.argv.remove(a_)
    if "--fine2" in sys.argv:
        FINE2 = True; sys.argv.remove("--fine2")
    if "--fine" in sys.argv:
        FINE = True; sys.argv.remove("--fine")
    main(sys.argv[1] if len(sys.argv) > 1 else f"cdna_kernels/{NAME}.s")
```

```python
import sys, math, struct

NAME = "concat_heads__softmax_full_mha__ssm_conv_s4__prompt"

QF_OFF  = 0
KV_OFF  = 2 << 20
OF_OFF  = 6 << 20
WOF_OFF = 8 << 20
UT_OFF  = 9 << 20
GC_OFF  = 11 << 20
GC_SZ   = 1536
FL2_OFF = 12 << 20
FL1_OFF = (12 << 20) + (1 << 17)
EP_OFF  = 13 << 20
SPIN_MAX = 400000
ST1 = ""
WS_USED = 32 << 20

def f2u(x): return struct.unpack('<I', struct.pack('<f', x))[0]
LOG2E = 1.4426950408889634

class A:
    def __init__(s): s.l = []
    def __call__(s, t):
        for x in t.split("\n"):
            x = x.strip()
            if x: s.l.append("    " + x)
    def lab(s, n): s.l.append(n + ":")
    def raw(s, t): s.l.append(t)
    def text(s): return "\n".join(s.l) + "\n"

def vr(a, n): return f"v[{a}:{a+n-1}]" if n > 1 else f"v{a}"
def sr(a, n): return f"s[{a}:{a+n-1}]" if n > 1 else f"s{a}"

def srd(o, d, b, size, add=0):
    if add:
        o(f"s_add_u32 s{d}, s{b}, {add:#x}")
        o(f"s_addc_u32 s{d+1}, s{b+1}, 0")
    else:
        o(f"s_mov_b32 s{d}, s{b}")
        o(f"s_mov_b32 s{d+1}, s{b+1}")
    o(f"s_mov_b32 s{d+2}, {size:#x}")
    o(f"s_mov_b32 s{d+3}, 0x00020000")

class Sched:
    def __init__(s, pace=14): s.ops = []; s.pace = pace
    def add(s, text, defs, uses, lat=8, cost=4, trans=False):
        s.ops.append(dict(t=text, d=set(defs), u=set(uses), lat=lat, cost=cost, tr=trans))
    def emit(s, o):
        ops = s.ops; n = len(ops)
        pred = [[] for _ in ops]
        lastw, readers = {}, {}
        for i, op in enumerate(ops):
            for r in op['u']:
                if r in lastw: pred[i].append((lastw[r], ops[lastw[r]]['lat']))
            for r in op['d']:
                if r in lastw: pred[i].append((lastw[r], 4))
                for j in readers.get(r, []):
                    if j != i: pred[i].append((j, 8))
            for r in op['u']: readers.setdefault(r, []).append(i)
            for r in op['d']: lastw[r] = i; readers[r] = []
        succ = [[] for _ in ops]
        for i in range(n):
            for j, l in pred[i]: succ[j].append((i, l))
        cp = [0] * n
        for i in reversed(range(n)):
            cp[i] = ops[i]['cost'] + max([l + cp[k] for k, l in succ[i]], default=0)
        done, when, t, last, lastwr = set(), {}, 0, None, -99
        while len(done) < n:
            cand = [i for i in range(n) if i not in done and all(j in done for j, _ in pred[i])]
            rdy = {i: max([when[j] + l for j, l in pred[i]], default=0) for i in cand}
            now = [i for i in cand if rdy[i] <= t]
            wr = [k for k in now if ops[k]['t'].startswith('ds_write')]
            cv = [k for k in now if ops[k]['t'].startswith('v_cvt_pk') and any(ops[z]['t'].startswith('ds_write') for z, _ in succ[k])]
            oth = [k for k in now if k not in wr]
            if wr and (t - lastwr >= s.pace or not oth): i = wr[0]; lastwr = t
            elif cv and len(wr) < 2: i = cv[0]
            elif oth: i = max(oth, key=lambda k: cp[k])
            else: i = min(cand, key=lambda k: (rdy[k], -cp[k]))
            if last is not None and ops[last]['tr'] and not ops[i]['tr'] and (ops[last]['d'] & ops[i]['u']): o("s_nop 0")
            t = max(t, rdy[i]); when[i] = t; t += ops[i]['cost']; done.add(i); last = i
            o(ops[i]['t'])
        return t

STAMP = False
FINE = False
FINE2 = False
FUSE23 = False
OPT = {}
STFLAG = 'sc1'
ST_OFF = 16 << 20
def stamp(o, i):
    if OPT.get("DBG"): o(f"s_memrealtime s[{64+2*i}:{65+2*i}]"); return
    if STAMP: o(f"s_memtime s[{64+2*i}:{65+2*i}]")
def xstamp(o, i):
    if STAMP: o(f"s_memtime s[{84+2*i}:{85+2*i}]")
def rstamp(o, i):
    if STAMP: o(f"s_memrealtime s[{64+2*i}:{65+2*i}]")
def stamp_out(o, kid, wave_sgpr="s3", wadd=0):
    if OPT.get("DBG"):
        lab = f"DBG_{kid}_{len(o.l)}"
        o("s_load_dwordx2 s[82:83], s[0:1], 104")
        o("s_waitcnt vmcnt(0)")
        o("s_memrealtime s[78:79]")
        o("s_and_b32 s80, s2, 7")
        o(f"s_add_u32 s80, s80, {wave_sgpr}")
        o("s_waitcnt lgkmcnt(0)")
        o("s_cmp_lg_u32 s80, 0")
        o(f"s_cbranch_scc1 {lab}")
        o(f"s_add_u32 s82, s82, {(2-kid)*512}")
        o("s_addc_u32 s83, s83, 0")
        o("s_mov_b64 exec, 1")
        o("s_not_b32 s66, s66")
        o("v_mov_b32 v2, 0")
        sl = {0: [(66, 0), (78, 1), (68, 6), (70, 7)], 1: [(66, 2), (78, 3), (68, 8), (74, 9)], 2: [(66, 4), (78, 5), (68, 10), (70, 11)]}[kid]
        if wadd: sl = [(78, 12), (70, 13)]
        for q, (sg, slot) in enumerate(sl):
            o(f"v_mov_b32 v{4+q}, s{sg}")
            o(f"global_atomic_umax v2, v{4+q}, s[82:83] offset:{4*slot}")
        o.lab(lab)
        return
    if not STAMP: return
    o("s_memrealtime s[78:79]")
    o("s_waitcnt lgkmcnt(0)")
    o("s_mov_b64 exec, 1")
    o(f"s_lshl_b32 s80, s2, 4")
    o(f"s_add_u32 s80, s80, {wave_sgpr}")
    o(f"s_add_u32 s80, s80, {kid*8192 + wadd}")
    o(f"s_lshl_b32 s80, s80, 7")
    o(f"s_add_u32 s80, s80, {ST_OFF:#x}")
    o("s_waitcnt vmcnt(0)")
    o("s_memtime s[76:77]")
    o("s_waitcnt lgkmcnt(0)")
    for i in range(16): o(f"v_mov_b32 v{4+i}, s{64+i}")
    for i in range(16): o(f"v_mov_b32 v{20+i}, s{84+i}")
    o("v_mov_b32 v2, 0")
    for q in range(8): o(f"buffer_store_dwordx4 v[{4+4*q}:{7+4*q}], v2, s[20:23], s80 offen offset:{16*q}")

def kstart(o, name):
    o.raw(f".globl {name}\n.p2align 8\n.type {name},@function")
    o.lab(name)

def kdesc(name, nv, ns=102):
    return f""".p2align 6
.amdhsa_kernel {name}
  .amdhsa_next_free_vgpr {nv}
  .amdhsa_next_free_sgpr {ns}
  .amdhsa_accum_offset {(nv+3)//4*4}
  .amdhsa_group_segment_fixed_size 0
  .amdhsa_kernarg_size 120
  .amdhsa_user_sgpr_count 2
  .amdhsa_user_sgpr_kernarg_segment_ptr 1
  .amdhsa_system_sgpr_workgroup_id_x 1
.end_amdhsa_kernel
"""


STG = 32768
CHL = 131072
L_E, L_C1, L_UT, L_U1 = 4160, 8320, 16640, 4608
L_GC = 26624
LDS_ALL = CHL + L_GC + 3072
KS = 15504

def poll(o, name, vaddr, soff, nonce, tmp):
    o("s_mov_b32 s39, 0")
    o.lab(name)
    o(f"""
    buffer_load_dwordx2 {vr(tmp,2)}, v{vaddr}, s[20:23], s{soff} offen sc1
    s_add_u32 s39, s39, 1
    s_waitcnt vmcnt(0)
    v_cmp_ne_u64 vcc, {vr(tmp,2)}, {vr(nonce,2)}
    s_cmp_ge_u32 s39, {SPIN_MAX}
    s_cbranch_scc1 {name}_D
    s_cbranch_vccz {name}_D
    s_sleep 1
    s_branch {name}
    """)
    o.lab(name + "_D")

def phase1(o):
    o(f"""
    s_load_dwordx4 s[4:7], s[0:1], 0
    s_load_dwordx2 s[28:29], s[0:1], 112
    s_load_dwordx16 s[32:47], s[0:1], 32
    v_lshrrev_b32 v1, 6, v0
    v_and_b32 v0, 63, v0
    s_nop 0
    v_readfirstlane_b32 s3, v1
    v_and_b32 v2, 15, v0
    v_lshrrev_b32 v3, 4, v0
    s_and_b32 s24, s2, 7
    s_lshr_b32 s25, s2, 3
    s_lshr_b32 s26, s24, 1
    s_lshl_b32 s26, s26, 3
    s_and_b32 s31, s25, 7
    s_add_u32 s26, s26, s31         ; mt (0..31)
    s_and_b32 s27, s24, 1
    s_lshl_b32 s27, s27, 2
    s_lshr_b32 s30, s25, 3
    s_add_u32 s27, s27, s30         ; hg (0..7)
    s_lshl_b32 s30, s30, 1
    s_add_u32 s31, s31, s30
    s_and_b32 s31, s31, 7
    s_and_b32 s30, s3, 1            ; tg
    s_lshr_b32 s48, s3, 1           ; hq
    s_lshl_b32 s53, s3, 12
    v_lshrrev_b32 v10, 3, v0
    v_and_b32 v11, 7, v0
    s_cmp_ge_u32 s3, 2
    s_cbranch_scc1 P1_SW
    v_xor_b32 v76, v11, v3
    v_lshlrev_b32 v76, 4, v76
    v_lshl_add_u32 v76, v10, 10, v76
    s_lshl_b32 s50, s26, 6
    s_lshl_b32 s51, s3, 5
    s_add_u32 s50, s50, s51
    s_lshl_b32 s50, s50, 10
    s_mov_b32 s51, 8192
    s_mov_b32 s52, 128
    s_waitcnt lgkmcnt(0)
    """)
    srd(o, 12, 4, 2048*1024)
    o("s_branch P1_SD")
    o.lab("P1_SW")
    o(f"""
    v_and_b32 v76, 1, v3
    v_lshlrev_b32 v76, 1, v76
    v_xor_b32 v76, v76, v11
    v_lshlrev_b32 v76, 4, v76
    v_mul_u32_u24 v77, 3072, v10
    v_add_u32 v76, v76, v77
    s_sub_u32 s50, s3, 2
    s_lshr_b32 s51, s50, 1
    s_lshl_b32 s51, s51, 10
    s_and_b32 s50, s50, 1
    s_mul_i32 s50, s50, {32*3072}
    s_add_u32 s50, s50, s51
    s_lshl_b32 s51, s27, 7
    s_add_u32 s50, s50, s51
    s_mov_b32 s51, {8*3072}
    s_mov_b32 s52, {64*3072}
    s_waitcnt lgkmcnt(0)
    """)
    srd(o, 12, 6, 512*3072)
    o.lab("P1_SD")
    o("v_xor_b32 v77, 64, v76")
    ACC, FR, FR1 = 12, 36, 180
    def dma_l(n):
        L = []
        for q in range(4):
            if q == 0:
                t = f"s_add_u32 m0, s53, {(n & 3) * STG}\ns_add_u32 s54, s31, {n}\ns_and_b32 s54, s54, 7\ns_mul_i32 s54, s54, s52\ns_add_u32 s54, s54, s50\n"
            else:
                t = "s_add_u32 m0, m0, 1024\ns_add_u32 s54, s54, s51\n"
            L.append(t + f"buffer_load_dwordx4 v{76 + (q & 1)}, s[12:15], s54 offen lds")
        return L
    def dma(n):
        for t in dma_l(n): o(t)
    PRE, LOOK = OPT.get("K1PRE", 2), OPT.get("K1LOOK", 3)
    for n in range(PRE): dma(n)
    srd(o, 20, 28, WS_USED)
    o(f"""
    s_add_u32 s8, s28, {EP_OFF:#x}
    s_addc_u32 s9, s29, 0
    s_load_dwordx2 s[100:101], s[8:9], 0
    v_lshlrev_b32 v1, 4, v0
    v_lshrrev_b32 v78, 1, v2
    v_xor_b32 v78, v78, v3
    v_lshlrev_b32 v78, 4, v78
    v_lshl_add_u32 v4, v2, 7, v78
    s_lshl_b32 s49, s30, 12
    v_add_u32 v4, s49, v4
    v_xor_b32 v5, 64, v4
    v_add_u32 v6, {2*STG}, v4
    v_add_u32 v7, {2*STG}, v5
    v_bfe_u32 v78, v0, 2, 2
    v_lshl_add_u32 v78, v3, 3, v78
    v_lshlrev_b32 v78, 7, v78
    v_bfe_u32 v79, v0, 3, 2
    v_xor_b32 v79, s48, v79
    v_lshl_add_u32 v78, v79, 5, v78
    v_and_b32 v79, 3, v0
    v_lshl_add_u32 v8, v79, 3, v78
    v_add_u32 v8, 8192, v8
    v_add_u32 v9, {2*STG}, v8
    s_lshl_b32 s56, s24, 5
    s_add_u32 s56, s56, s25
    s_lshl_b32 s56, s56, 1
    s_and_b32 s55, s48, 1
    s_add_u32 s56, s56, s55
    s_lshl_b32 s58, s56, 8
    s_lshl_b32 s59, s30, 7
    s_add_u32 s58, s58, s59
    v_lshl_add_u32 v10, v0, 1, s58
    s_lshl_b32 s59, s56, 1
    v_mov_b32 v11, s59
    """)
    for i in range(24): o(f"v_mov_b32 v{ACC+i}, 0")
    def reads_l(n):
        xa = (4, 5) if (n & 3) < 2 else (6, 7)
        wa = 8 if (n & 3) < 2 else 9
        so = (n & 1) * STG
        L = []
        for ks in range(2):
            b = (FR1 if n & 1 else FR) + 20 * ks
            L.append(f"ds_read_b128 {vr(b,4)}, v{xa[ks]} offset:{so}")
            L.append(f"ds_read_b128 {vr(b+4,4)}, v{xa[ks]} offset:{so + 2048}")
            for p in range(3):
                L.append(f"ds_read_b64_tr_b16 {vr(b+8+4*p,2)}, v{wa} offset:{so + p*8192 + ks*4096}")
                L.append(f"ds_read_b64_tr_b16 {vr(b+10+4*p,2)}, v{wa} offset:{so + p*8192 + ks*4096 + 512}")
        return L
    o(f"s_waitcnt vmcnt({4*(PRE-1)}) lgkmcnt(0)")
    o("s_barrier")
    o("s_add_u32 s100, s100, 0x7f4a7c15")
    o("s_addc_u32 s101, s101, 0x9e3779b9")
    stamp(o, 2)
    for t in reads_l(0): o(t)
    for n in range(PRE, LOOK): dma(n)
    P = 80
    for n in range(8):
        if n < 7:
            o(f"s_waitcnt vmcnt({4*(min(n+LOOK-1,7)-(n+1))}) lgkmcnt(0)")
            o("s_barrier")
        else:
            o("s_waitcnt lgkmcnt(0)")
        if n == 6:
            o(f"""
            s_cmp_lt_u32 s3, 4
            s_cbranch_scc1 P1_NP
            global_load_ushort v{P+6}, v11, s[44:45]
            global_load_ushort v{P}, v10, s[32:33]
            global_load_ushort v{P+1}, v10, s[34:35]
            global_load_ushort v{P+2}, v10, s[36:37]
            global_load_ushort v{P+3}, v10, s[38:39]
            global_load_ushort v{P+4}, v10, s[40:41]
            global_load_ushort v{P+5}, v10, s[42:43]
            """)
            o.lab("P1_NP")
        R = reads_l(n + 1) if n < 7 else []
        Dm = dma_l(n + LOOK) if n + LOOK <= 7 else []
        M = []
        for ks in range(2):
            b = (FR1 if n & 1 else FR) + 20 * ks
            for tt in range(2):
                M.append(f"v_mfma_f32_16x16x32_bf16 {vr(ACC+8+4*tt,4)}, {vr(b+12,4)}, {vr(b+4*tt,4)}, {vr(ACC+8+4*tt,4)}")
            for tt in range(2):
                M.append(f"v_mfma_f32_16x16x32_bf16 {vr(ACC+16+4*tt,4)}, {vr(b+4*tt,4)}, {vr(b+16,4)}, {vr(ACC+16+4*tt,4)}")
            for tt in range(2):
                M.append(f"v_mfma_f32_16x16x32_bf16 {vr(ACC+4*tt,4)}, {vr(b+8,4)}, {vr(b+4*tt,4)}, {vr(ACC+4*tt,4)}")
        for i, m in enumerate(M):
            o(m)
            if i < 8:
                for t in R[2*i:2*i+2]: o(t)
            elif Dm: o(Dm[i - 8])
    stamp(o, 3)
    o(f"""
    s_lshl_b32 s49, s27, 2
    s_add_u32 s49, s49, s48         ; head
    s_lshl_b32 s52, s49, 12
    s_lshl_b32 s49, s49, 6
    s_lshl_b32 s50, s26, 1
    s_add_u32 s50, s50, s30
    s_add_u32 s49, s49, s50
    s_lshl_b32 s53, s50, 3
    s_add_u32 s52, s52, s53
    s_add_u32 s52, s52, {FL1_OFF:#x}
    s_lshl_b32 s50, s49, 11
    s_lshl_b32 s49, s49, 10
    s_add_u32 s50, s50, {KV_OFF:#x}
    s_mov_b32 s51, {f2u(0.25*LOG2E):#x}
    """)
    def cv(a):
        b = ACC + 4 * a
        o(f"v_cvt_pk_bf16_f32 v{FR+2*a}, v{b}, v{b+1}")
        o(f"v_cvt_pk_bf16_f32 v{FR+1+2*a}, v{b+2}, v{b+3}")
    def sw(a):
        o(f"v_permlane16_swap_b32 v{FR+4*a}, v{FR+4*a+2}")
        o(f"v_permlane16_swap_b32 v{FR+4*a+1}, v{FR+4*a+3}")
    cv(2); cv(3); cv(4); cv(5)
    sw(1)
    for i in range(4): o(f"v_mul_f32 v{ACC+i}, s51, v{ACC+i}")
    o(f"buffer_store_dwordx4 {vr(FR+4,4)}, v1, s[20:23], s50 offen")
    sw(2)
    for i in range(4, 8): o(f"v_mul_f32 v{ACC+i}, s51, v{ACC+i}")
    o(f"buffer_store_dwordx4 {vr(FR+8,4)}, v1, s[20:23], s50 offen offset:1024")
    cv(0); cv(1)
    o("s_nop 1")
    sw(0)
    o("s_nop 1")
    o(f"""
    buffer_store_dwordx4 {vr(FR,4)}, v1, s[20:23], s49 offen
    s_load_dwordx4 s[4:7], s[0:1], 16
    s_load_dwordx4 s[8:11], s[0:1], 88
    v_lshlrev_b32 v4, 9, v0
    v_mov_b32 v6, s100
    v_mov_b32 v7, s101
    s_lshl_b32 s26, s24, 2
    s_and_b32 s27, s25, 3
    s_add_u32 s26, s26, s27
    s_lshr_b32 s27, s25, 2          ; qb
    s_mov_b64 exec, 0xff
    s_waitcnt vmcnt(0) lgkmcnt(0)
    buffer_store_dwordx2 v[6:7], v4, s[20:23], s52 offen
    s_mov_b64 exec, -1
    """)
    stamp(o, 4)

def kgen(o):
    P, T, GA, WA, RA = 80, 88, 168, 78, 79
    o(f"""
    s_and_b32 s58, s3, 3
    s_mul_i32 s58, s58, {KS}
    v_lshl_add_u32 v{WA}, v0, 2, s58
    v_mul_u32_u24 v{RA}, 272, v2
    v_lshl_add_u32 v{RA}, v3, 4, v{RA}
    v_add_u32 v{RA}, s58, v{RA}
    s_mul_i32 s58, s55, {L_C1}
    s_add_u32 s58, s58, {CHL}
    v_add_u32 v{T}, s58, v1
    """)
    for i in range(12): o(f"v_mov_b32 v{GA+i}, 0")
    sc = Sched()
    pairs = [r for r in range(36, 76, 2)] + [r for r in range(90, 168, 2)] + [r for r in range(180, 236, 2)]
    tpool = list(range(236, 256)); tix = [0]
    def newp(): return pairs.pop(0)
    def tmp():
        t = tpool[tix[0] % len(tpool)]; tix[0] += 1; return t
    def op(text, d, u, **k): sc.add(text, d, u, **k)
    for r in range(P, P + 7): op(f"v_lshlrev_b32 v{r}, 16, v{r}", [r], [r])
    D = P + 6
    op(f"v_mul_f32 v{D}, {f2u(LOG2E):#x}, v{D}", [D], [D])
    op(f"v_exp_f32 v{D}, v{D}", [D], [D], lat=16, cost=8, trans=True)
    op(f"v_cvt_pk_bf16_f32 v{D}, v{D}, v{D}", [D], [D])
    op(f"v_lshlrev_b32 v{D}, 16, v{D}", [D], [D])
    for k in range(4): op(f"v_mul_f32 v{P+k}, v{D}, v{P+k}", [P+k], [D, P+k])
    op(f"v_mul_f32 v{P}, {f2u(LOG2E):#x}, v{P}", [P], [P])
    op(f"v_mul_f32 v{P+1}, {f2u(1/(2*math.pi)):#x}, v{P+1}", [P+1], [P+1])
    C = newp()
    op(f"v_mul_f32 v{C}, v{P+4}, v{P+2}", [C], [P+4, P+2])
    op(f"v_mul_f32 v{C+1}, v{P+4}, v{P+3}", [C+1], [P+4, P+3])
    op(f"v_fma_f32 v{C}, -v{P+5}, v{P+3}, v{C}", [C], [P+5, P+3, C])
    op(f"v_fma_f32 v{C+1}, v{P+5}, v{P+2}, v{C+1}", [C+1], [P+5, P+2, C+1])
    def anchor(t):
        d = newp(); a_, b_, c_, e_ = tmp(), tmp(), tmp(), tmp()
        op(f"v_mul_f32 v{a_}, {f2u(float(t)):#x}, v{P}", [a_], [P])
        op(f"v_mul_f32 v{b_}, {f2u(float(t)):#x}, v{P+1}", [b_], [P+1])
        op(f"v_exp_f32 v{a_}, v{a_}", [a_], [a_], lat=16, cost=8, trans=True)
        op(f"v_fract_f32 v{b_}, v{b_}", [b_], [b_])
        op(f"v_cos_f32 v{c_}, v{b_}", [c_], [b_], lat=16, cost=8, trans=True)
        op(f"v_sin_f32 v{e_}, v{b_}", [e_], [b_], lat=16, cost=8, trans=True)
        op(f"v_mul_f32 v{d}, v{a_}, v{c_}", [d], [a_, c_])
        op(f"v_mul_f32 v{d+1}, v{a_}, v{e_}", [d+1], [a_, e_])
        return d
    def cmul(x, w):
        d = newp()
        op(f"v_pk_mul_f32 {vr(d,2)}, {vr(x,2)}, {vr(w,2)} op_sel:[0,0] op_sel_hi:[1,0]", [d, d+1], [x, x+1, w], lat=12)
        op(f"v_pk_fma_f32 {vr(d,2)}, {vr(x,2)}, {vr(w,2)}, {vr(d,2)} op_sel:[1,1,0] op_sel_hi:[0,1,1] neg_lo:[1,0,0]", [d, d+1], [x, x+1, w+1, d, d+1], lat=12)
        return d
    def put(e, x, neg=False):
        t = tmp()
        op(f"v_cvt_pk_bf16_f32 v{t}, v{x}, {'-' if neg else ''}v{x+1}", [t], [x, x+1])
        if not OPT.get("KNOW"): op(f"ds_write_b32 v{WA}, v{t} offset:{e*272}", [], [t])
    Z8, Z1, Z128 = anchor(8), anchor(1), anchor(128)
    t_ = tmp()
    op(f"v_mov_b32 v{t_}, 0x3f80", [t_], [])
    op(f"ds_write_b32 v{WA}, v{t_}", [], [t_])
    e = {1: Z8}
    e[2] = cmul(e[1], e[1]); e[3] = cmul(e[2], e[1]); e[4] = cmul(e[2], e[2])
    for j in (5, 6, 7): e[j] = cmul(e[4], e[j-4])
    e[8] = cmul(e[4], e[4])
    for j in range(9, 16): e[j] = cmul(e[8], e[j-8])
    for j in range(1, 16): put(j, e[j], True)
    x = {0: C}
    x[1] = cmul(C, Z1); Z2 = cmul(Z1, Z1); x[2] = cmul(x[0], Z2); x[3] = cmul(x[1], Z2); Z4 = cmul(Z2, Z2)
    for r in range(4, 8): x[r] = cmul(x[r-4], Z4)
    y = {r: cmul(x[r], Z128) for r in range(8)}
    Z256 = cmul(Z128, Z128)
    pp = {r: cmul(x[2*r], Z256) for r in range(4)}
    qq = {r: cmul(y[2*r], Z256) for r in range(4)}
    Z512 = cmul(Z256, Z256)
    rr = [cmul(v_, Z512) for v_ in (x[0], x[4], y[0], y[4], pp[0], pp[2], qq[0], qq[2])]
    Z1024 = cmul(Z512, Z512)
    ss = [cmul(v_, Z1024) for v_ in (x[0], y[0], pp[0], qq[0], rr[0], rr[2], rr[4], rr[6])]
    s2048 = cmul(ss[0], Z1024)
    for r in range(8): put(16 + r, x[r]); put(24 + r, y[r])
    for r in range(4): put(32 + r, pp[r]); put(36 + r, qq[r])
    for r in range(8): put(40 + r, rr[r])
    for r in range(8): put(48 + r, ss[r])
    put(56, s2048)
    sc.emit(o)
    FB_ = 90
    for t in range(4):
        for s_ in range(4): o(f"ds_read_b128 {vr(FB_+16*t+4*s_,4)}, v{RA} offset:{t*4352 + 64*s_}")
    for t in range(3):
        o(f"s_waitcnt lgkmcnt({8 - 4*t})")
        for s_ in range(4):
            o(f"v_mfma_f32_16x16x32_bf16 {vr(GA+4*t,4)}, {vr(FB_+16+16*t+4*s_,4)}, {vr(FB_+4*s_,4)}, {vr(GA+4*t,4)}")
    o(f"""
    s_cmp_eq_u32 s30, 0
    s_cbranch_scc1 KG_EV
    s_nop 7
    ds_write_b128 v{T}, {vr(GA,4)}
    ds_write_b128 v{T}, {vr(GA+4,4)} offset:1024
    ds_write_b128 v{T}, {vr(GA+8,4)} offset:2048
    """)
    o.lab("KG_EV")

def gsum(o):
    T, GA, X0 = 88, 168, 104
    Y = [120, 122, 124, 126, 128]
    o(f"""
    s_cmp_lg_u32 s34, 0
    s_cbranch_scc1 GS_END
    ds_read_b128 {vr(X0,4)}, v{T}
    ds_read_b128 {vr(X0+4,4)}, v{T} offset:1024
    ds_read_b128 {vr(X0+8,4)}, v{T} offset:2048
    s_mul_i32 s58, s33, 1536
    s_add_u32 s58, s58, {CHL + L_GC}
    v_lshrrev_b32 v{Y[0]}, 1, v3
    v_lshlrev_b32 v{Y[0]}, 8, v{Y[0]}
    v_lshl_add_u32 v{Y[0]}, v2, 4, v{Y[0]}
    v_and_b32 v{Y[0]+1}, 1, v3
    v_lshl_add_u32 v{Y[0]}, v{Y[0]+1}, 3, v{Y[0]}
    v_cmp_gt_u32 s[60:61], 2, v3
    v_lshlrev_b32 v{Y[1]}, 2, v2
    v_lshlrev_b32 v{Y[1]+1}, 3, v2
    v_cndmask_b32 v{Y[1]}, v{Y[1]}, v{Y[1]+1}, s[60:61]
    v_lshl_add_u32 v{Y[1]}, v3, 7, v{Y[1]}
    v_mov_b32 v{Y[1]+1}, 64
    v_cndmask_b32 v{Y[1]+1}, v{Y[1]+1}, 4, s[60:61]
    v_add_u32 v{Y[1]+1}, v{Y[1]}, v{Y[1]+1}
    v_lshlrev_b32 v{Y[2]}, 7, v3
    v_lshl_add_u32 v{Y[2]}, v2, 1, v{Y[2]}
    v_add_u32 v{Y[0]}, s58, v{Y[0]}
    v_add_u32 v{Y[1]}, s58, v{Y[1]}
    v_add_u32 v{Y[1]+1}, s58, v{Y[1]+1}
    v_add_u32 v{Y[2]}, s58, v{Y[2]}
    s_waitcnt lgkmcnt(0)
    """)
    for i in range(12): o(f"v_add_f32 v{GA+i}, v{GA+i}, v{X0+i}")
    g = Y[4]
    for i in range(6): o(f"v_cvt_pk_bf16_f32 v{g+i}, v{GA+2*i}, v{GA+2*i+1}")
    o(f"""
    ds_write_b64 v{Y[0]}, {vr(g,2)}
    ds_write_b32 v{Y[1]}, v{g+2} offset:512
    ds_write_b32 v{Y[1]+1}, v{g+3} offset:512
    ds_write_b16 v{Y[2]}, v{g+4} offset:1024
    ds_write_b16_d16_hi v{Y[2]}, v{g+4} offset:1056
    ds_write_b16 v{Y[2]}, v{g+5} offset:1088
    ds_write_b16_d16_hi v{Y[2]}, v{g+5} offset:1120
    """)
    o.lab("GS_END")

def phase3(o):
    srd(o, 12, 4, 512*1024)
    srd(o, 16, 10, 2048*2048)
    o(f"""
    s_and_b32 s30, s3, 1
    s_lshr_b32 s31, s3, 1
    s_lshl_b32 s32, s27, 2
    s_bfe_u32 s33, s26, 0x20002
    s_add_u32 s32, s32, s33         ; tb
    s_lshl_b32 s32, s32, 1
    s_add_u32 s32, s32, s30
    s_xor_b32 s33, s32, 1
    s_lshr_b32 s35, s26, 4
    s_lshl_b32 s35, s35, 2
    s_and_b32 s34, s26, 3
    s_add_u32 s35, s35, s34         ; nb
    s_lshl_b32 s34, s35, 1
    s_add_u32 s34, s34, s31
    s_lshl_b32 s36, s3, 13
    s_add_u32 s36, s36, {OF_OFF:#x}
    s_lshl_b32 s42, s32, 15
    s_lshl_b32 s43, s33, 15
    s_add_u32 s42, s42, s36
    s_add_u32 s43, s43, s36
    s_add_u32 s40, s42, 4096
    s_add_u32 s41, s43, 4096
    v_lshrrev_b32 v2, 3, v0
    v_and_b32 v3, 7, v0
    v_bfe_u32 v4, v0, 4, 1
    v_lshlrev_b32 v4, 2, v4
    v_xor_b32 v3, v3, v4
    v_lshlrev_b32 v3, 4, v3
    v_lshl_add_u32 v2, v2, 10, v3
    s_lshl_b32 s36, s3, 17
    s_lshl_b32 s37, s35, 7
    s_add_u32 s36, s36, s37
    s_lshl_b32 s37, s3, 14
    v_lshrrev_b32 v3, 5, v0
    v_bfe_u32 v4, v0, 2, 2
    v_lshl_add_u32 v3, v3, 2, v4
    v_lshlrev_b32 v3, 7, v3
    v_bfe_u32 v4, v0, 3, 1
    v_xor_b32 v4, s31, v4
    v_lshl_add_u32 v3, v4, 6, v3
    v_bfe_u32 v4, v0, 4, 1
    v_lshl_add_u32 v3, v4, 5, v3
    v_and_b32 v4, 3, v0
    v_lshl_add_u32 v3, v4, 3, v3
    v_add_u32 v3, s37, v3
    v_xor_b32 v4, 64, v3
    s_mov_b32 m0, s37
    v_mov_b32 v6, s100
    v_mov_b32 v7, s101
    v_lshrrev_b32 v5, 2, v0
    v_lshlrev_b32 v5, 4, v5
    v_and_b32 v8, 3, v0
    v_add_u32 v5, v5, v8
    v_lshlrev_b32 v5, 8, v5
    s_lshl_b32 s38, s27, 13
    s_lshl_b32 s39, s26, 3
    s_add_u32 s38, s38, s39
    s_lshl_b32 s39, s3, 10
    s_add_u32 s38, s38, s39
    s_add_u32 s38, s38, {FL2_OFF:#x}
    s_mov_b64 exec, 0xff
    s_waitcnt vmcnt(0) lgkmcnt(0)
    buffer_store_dwordx2 v[6:7], v5, s[20:23], s38 offen
    s_mov_b64 exec, -1
    """)
    xstamp(o, 0)
    o("s_barrier")
    for i in range(16):
        o("buffer_load_dwordx4 v2, s[12:15], s36 offen lds")
        if i < 15:
            o("s_add_u32 m0, m0, 1024")
            o("s_add_u32 s36, s36, 8192")
    FR, AC = 68, 4
    o("v_mov_b32 v198, v3")
    o("v_mov_b32 v199, v4")
    o("s_waitcnt vmcnt(0)")
    for h in range(8):
        for k in range(2):
            o(f"ds_read_b64_tr_b16 {vr(FR+16*h+4*k,2)}, v{198+k} offset:{2048*h}")
            o(f"ds_read_b64_tr_b16 {vr(FR+16*h+4*k+2,2)}, v{198+k} offset:{2048*h+1024}")
    xstamp(o, 1)
    o(f"""
    s_cmp_lg_u32 s3, 0
    s_cbranch_scc1 P3_NP
    s_lshl_b32 s38, s27, 5
    s_add_u32 s38, s38, s26
    s_lshl_b32 s38, s38, 8
    s_add_u32 s38, s38, {FL2_OFF:#x}
    v_lshlrev_b32 v5, 3, v0
    s_mov_b32 exec_hi, 0
    """)
    poll(o, "P3_POLL", 5, 38, 6, 8)
    o(f"""
    s_cmp_lg_u32 s2, 0
    s_cbranch_scc1 P3_NE
    s_mov_b32 s38, {EP_OFF:#x}
    s_mov_b64 exec, 1
    buffer_store_dwordx2 v[6:7], v5, s[20:23], s38 offen
    """)
    o.lab("P3_NE")
    o("s_mov_b64 exec, -1")
    o.lab("P3_NP")
    o("s_barrier")
    xstamp(o, 2)
    for h in range(8):
        for k in range(2):
            o(f"buffer_load_dwordx4 {vr(FR+16*h+8+4*k,4)}, v1, s[20:23], s{(42 if h < 4 else 40)+k} offen offset:{1024*(h&3)} sc1")
    o("s_waitcnt lgkmcnt(0)")
    for h in range(8):
        o(f"s_waitcnt vmcnt({14-2*h})")
        if h == 0: xstamp(o, 3)
        b = FR + 16 * h
        for k in range(4):
            ka, kb = k >> 1, k & 1
            c = vr(AC + 16 * k, 16)
            o(f"v_mfma_f32_32x32x16_bf16 {c}, {vr(b+4*ka,4)}, {vr(b+8+4*kb,4)}, {c if h else 0}")
    xstamp(o, 4)
    XB = 65536
    o("s_nop 7")
    for k in range(1, 4):
        o(f"s_xor_b32 s36, s3, {k}")
        o(f"s_mul_i32 s36, s36, 12288")
        o(f"s_add_u32 s36, s36, {XB}")
        o(f"v_add_u32 v{2 + (k & 1)}, s36, v1")
        if k == 1: o("s_nop 7")
        for q in range(4):
            o(f"ds_write_b128 v{2 + (k & 1)}, {vr(AC+16*k+4*q,4)} offset:{(k-1)*4096 + q*1024}")
    o(f"""
    s_mul_i32 s36, s3, 12288
    s_add_u32 s36, s36, {XB}
    v_add_u32 v2, s36, v1
    s_waitcnt lgkmcnt(0)
    s_barrier
    """)
    for k in range(3):
        for q in range(4):
            o(f"ds_read_b128 {vr(FR+16*k+4*q,4)}, v2 offset:{k*4096 + q*1024}")
    o(f"""
    v_and_b32 v2, 31, v0
    v_lshlrev_b32 v2, 11, v2
    v_lshrrev_b32 v3, 5, v0
    v_lshl_add_u32 v2, v3, 4, v2
    s_lshl_b32 s36, s32, 16
    s_lshl_b32 s37, s34, 6
    s_add_u32 s36, s36, s37
    """)
    for k in range(3):
        o(f"s_waitcnt lgkmcnt({8-4*k})")
        for i in range(16): o(f"v_add_f32 v{AC+i}, v{AC+i}, v{FR+16*k+i}")
    for i in range(8): o(f"v_cvt_pk_bf16_f32 v{24+i}, v{AC+2*i}, v{AC+2*i+1}")
    o(f"""
    s_nop 1
    v_permlane32_swap_b32 v24, v26
    v_permlane32_swap_b32 v25, v27
    v_permlane32_swap_b32 v28, v30
    v_permlane32_swap_b32 v29, v31
    s_nop 1
    buffer_store_dwordx4 v[24:27], v2, s[16:19], s36 offen
    buffer_store_dwordx4 v[28:31], v2, s[16:19], s36 offen offset:32
    """)
    xstamp(o, 5)

def phase2(o):
    o(f"""
    s_lshl_b32 s31, s3, 10
    s_lshl_b32 s36, s26, 17
    s_add_u32 s36, s36, {KV_OFF:#x}
    s_add_u32 s36, s36, s31
    s_cmp_ge_u32 s3, 4
    s_cbranch_scc1 P2_AUX
    s_mov_b32 s30, s36
    """)
    QA, QB, NMA, NMB, OA, OB, SX, SY = 4, 8, 12, 28, 44, 60, 76, 92
    KF, V0, V1, IDX, AD, MB = (108, 112), (116, 120), (124, 128), 132, 2, 133
    o(f"""
    s_lshl_b32 s35, s26, 6
    s_lshl_b32 s36, s27, 3
    s_add_u32 s35, s35, s36
    s_lshl_b32 s36, s3, 1
    s_add_u32 s35, s35, s36
    s_lshl_b32 s35, s35, 10
    """)
    def vinit():
        o("s_mov_b64 exec, s[42:43]")
        for r in range(V0[0], V0[0] + 16): o(f"v_mov_b32 v{r}, 0x3f803f80")
        o("s_not_b64 exec, exec")
        for r in range(V0[0], V0[0] + 16): o(f"v_mov_b32 v{r}, 0")
        o("s_mov_b64 exec, -1")
    o(f"""
    s_mov_b32 s40, 0xffff
    s_mov_b32 s41, 0xffff
    s_mov_b32 s42, 0x110000
    s_mov_b32 s43, 0x110000
    s_mov_b32 s34, 0
    v_mov_b32 v{IDX}, 0xdddd
    """)
    vinit()
    o(f"""
    s_mov_b32 m0, s31
    s_cmp_lg_u32 s3, 0
    s_cbranch_scc1 P2_NP
    s_lshl_b32 s38, s26, 3
    s_add_u32 s38, s38, s27
    s_lshl_b32 s38, s38, 9
    s_add_u32 s38, s38, {FL1_OFF:#x}
    v_lshlrev_b32 v2, 3, v0
    """)
    poll(o, "P2_POLL", 2, 38, 6, 8)
    o.lab("P2_NP")
    o("s_barrier")
    stamp(o, 5)
    o(f"""
    buffer_load_dwordx4 v1, s[20:23], s30 offen sc1 lds
    buffer_load_dwordx4 {vr(QA,4)}, v1, s[20:23], s35 offen sc1
    buffer_load_dwordx4 {vr(QB,4)}, v1, s[20:23], s35 offen offset:1024 sc1
    s_add_u32 s30, s30, 8192
    s_add_u32 m0, m0, 8192
    s_nop 0
    buffer_load_dwordx4 v1, s[20:23], s30 offen sc1 lds
    """)
    o("s_waitcnt vmcnt(0)")
    o("s_barrier")
    xstamp(o, 6)
    o(f"""
    ds_read_b128 {vr(KF[0],4)}, v1
    ds_read_b128 {vr(KF[1],4)}, v1 offset:2048
    s_mov_b64 exec, s[40:41]
    ds_read_b128 {vr(V0[0],4)}, v1 offset:1024
    ds_read_b128 {vr(V1[0],4)}, v1 offset:1280
    s_mov_b64 exec, -1
    s_waitcnt lgkmcnt(3)
    v_mfma_f32_32x32x16_bf16 {vr(SX,16)}, {vr(KF[0],4)}, {vr(QA,4)}, 0
    v_mfma_f32_32x32x16_bf16 {vr(SY,16)}, {vr(KF[0],4)}, {vr(QB,4)}, 0
    """)
    for i in range(16): o(f"v_mov_b32 v{OA+i}, 0")
    def maxred(src, dst):
        o(f"v_max3_f32 v{dst}, v{src}, v{src+1}, v{src+2}")
        for i in range(3, 15, 2): o(f"v_max3_f32 v{dst}, v{dst}, v{src+i}, v{src+i+1}")
        o(f"v_max_f32 v{dst}, v{dst}, v{src+15}")
    maxred(SX, 3)
    maxred(SY, MB)
    o.lab("K2_PASS")
    o(f"""
    v_mov_b32 v{AD}, v3
    v_mov_b32 v{MB+1}, v{MB}
    s_nop 1
    v_permlane32_swap_b32 v3, v{AD}
    v_permlane32_swap_b32 v{MB}, v{MB+1}
    s_nop 1
    v_max_f32 v3, v3, v{AD}
    v_max_f32 v{MB}, v{MB}, v{MB+1}
    v_mov_b32 v{AD}, v1
    """)
    for i in range(16): o(f"v_sub_f32 v{NMA+i}, 0, v3")
    o("s_nop 1")
    o(f"v_mfma_f32_32x32x16_bf16 {vr(SX,16)}, {vr(KF[0],4)}, {vr(QA,4)}, {vr(NMA,16)}")
    for i in range(16): o(f"v_sub_f32 v{NMB+i}, 0, v{MB}")
    for i in range(16): o(f"v_mov_b32 v{OB+i}, 0")
    for i in range(8, 16): o(f"v_mov_b32 v{SY+i}, 0")
    o(f"""
    s_mov_b32 s32, 0                ; iteration
    s_cmp_eq_u32 s34, 0
    s_cselect_b32 s33, 1, 16        ; limit
    """)
    o.raw(".p2align 6")
    o.lab("K2_LOOP")
    def ex(X, a, b):
        for i in range(a, b): o(f"v_exp_f32 v{X+i}, v{X+i}")
    for u in range(4):
        p = u & 1
        ex(SX, 0, 3)
        o("s_waitcnt lgkmcnt(0)")
        o(f"v_smfmac_f32_32x32x32_bf16 {vr(OB,16)}, {vr(V1[p^1],4)}, {vr(SY+8,8)}, v{IDX}")
        o("s_mov_b64 exec, s[40:41]")
        o(f"ds_read_b128 {vr(V0[p^1],4)}, v{AD} offset:{(u+1)*2048+1024}")
        o(f"ds_read_b128 {vr(V1[p^1],4)}, v{AD} offset:{(u+1)*2048+1280}")
        o("s_mov_b64 exec, -1")
        ex(SX, 3, 8)
        o(f"v_mfma_f32_32x32x16_bf16 {vr(SY,16)}, {vr(KF[p],4)}, {vr(QB,4)}, {vr(NMB,16)}")
        o(f"ds_read_b128 {vr(KF[p],4)}, v{AD} offset:{(u+2)*2048}")
        ex(SX, 8, 13)
        o(f"v_smfmac_f32_32x32x32_bf16 {vr(OA,16)}, {vr(V0[p],4)}, {vr(SX,8)}, v{IDX}")
        ex(SX, 13, 16)
        if u == 3:
            o(f"v_add_u32 v{AD}, 8192, v{AD}")
            o("s_add_u32 s32, s32, 1")
            o("s_cmp_lt_u32 s32, s33")
        ex(SY, 0, 3)
        o(f"v_smfmac_f32_32x32x32_bf16 {vr(OA,16)}, {vr(V1[p],4)}, {vr(SX+8,8)}, v{IDX}")
        ex(SY, 3, 8)
        o(f"v_mfma_f32_32x32x16_bf16 {vr(SX,16)}, {vr(KF[p^1],4)}, {vr(QA,4)}, {vr(NMA,16)}")
        ex(SY, 8, 13)
        o(f"v_smfmac_f32_32x32x32_bf16 {vr(OB,16)}, {vr(V0[p],4)}, {vr(SY,8)}, v{IDX}")
        ex(SY, 13, 16)
    o(f"""
    s_cbranch_scc1 K2_LOOP
    s_cmp_ge_u32 s32, 16
    s_cbranch_scc1 K2_FIN
    s_barrier
    """)
    o(f"""
    s_cmp_eq_u32 s32, {OPT.get("B3", 5)}
    s_cselect_b32 s33, {OPT.get("B4", 7)}, 16
    s_cmp_eq_u32 s32, 1
    s_cselect_b32 s33, {OPT.get("B3", 5)}, s33
    s_branch K2_LOOP
    """)
    o.lab("K2_FIN")
    xstamp(o, 7)
    o(f"""
    v_smfmac_f32_32x32x32_bf16 {vr(OB,16)}, {vr(V1[1],4)}, {vr(SY+8,8)}, v{IDX}
    v_mul_f32 v3, 0, v{OA+8}
    """)
    for i in range(8): o(f"v_fma_f32 v3, v{OA+i}, 0, v3")
    o("s_nop 3")
    for i in range(9): o(f"v_fma_f32 v3, v{OB+i}, 0, v3")
    o(f"""
    s_cmp_lg_u32 s34, 0
    s_cbranch_scc1 K2_OUT
    v_cmp_u_f32 vcc, v3, v3
    s_nop 1
    s_cbranch_vccz K2_OUT
    s_mov_b32 s34, 1
    s_mov_b32 s32, 0
    v_mov_b32 v{AD}, v1
    v_mov_b32 v3, 0xff800000
    v_mov_b32 v{MB}, 0xff800000
    s_waitcnt lgkmcnt(0)
    """)
    o.lab("K2_MAXL")
    o(f"""
    ds_read_b128 {vr(KF[0],4)}, v{AD}
    v_add_u32 v{AD}, 2048, v{AD}
    s_waitcnt lgkmcnt(0)
    v_mfma_f32_32x32x16_bf16 {vr(SX,16)}, {vr(KF[0],4)}, {vr(QA,4)}, 0
    v_mfma_f32_32x32x16_bf16 {vr(SY,16)}, {vr(KF[0],4)}, {vr(QB,4)}, 0
    s_nop 15
    """)
    for i in range(0, 16, 2): o(f"v_max3_f32 v3, v3, v{SX+i}, v{SX+i+1}")
    for i in range(0, 16, 2): o(f"v_max3_f32 v{MB}, v{MB}, v{SY+i}, v{SY+i+1}")
    o(f"""
    s_add_u32 s32, s32, 1
    s_cmp_lt_u32 s32, 64
    s_cbranch_scc1 K2_MAXL
    """)
    vinit()
    o(f"""
    ds_read_b128 {vr(KF[0],4)}, v1
    ds_read_b128 {vr(KF[1],4)}, v1 offset:2048
    s_mov_b64 exec, s[40:41]
    ds_read_b128 {vr(V0[0],4)}, v1 offset:1024
    ds_read_b128 {vr(V1[0],4)}, v1 offset:1280
    s_mov_b64 exec, -1
    """)
    for i in range(16): o(f"v_mov_b32 v{OA+i}, 0")
    o("s_waitcnt lgkmcnt(0)")
    o("s_branch K2_PASS")
    o.lab("K2_OUT")
    o(f"""
    v_rcp_f32 v3, v{OA+8}
    v_rcp_f32 v{MB}, v{OB+8}
    s_lshl_b32 s30, s27, 3
    s_lshl_b32 s31, s3, 1
    s_add_u32 s30, s30, s31
    s_lshl_b32 s30, s30, 5
    s_add_u32 s30, s30, s26
    s_lshl_b32 s30, s30, 10
    s_add_u32 s30, s30, {OF_OFF:#x}
    s_add_u32 s31, s30, 32768
    """)
    for i in range(8): o(f"v_mul_f32 v{OA+i}, v{OA+i}, v3")
    for i in range(4): o(f"v_cvt_pk_bf16_f32 v{SX+i}, v{OA+2*i}, v{OA+2*i+1}")
    o(f"buffer_store_dwordx4 {vr(SX,4)}, v1, s[20:23], s30 offen")
    for i in range(8): o(f"v_mul_f32 v{OB+i}, v{OB+i}, v{MB}")
    for i in range(4): o(f"v_cvt_pk_bf16_f32 v{SX+4+i}, v{OB+2*i}, v{OB+2*i+1}")
    o(f"buffer_store_dwordx4 {vr(SX+4,4)}, v1, s[20:23], s31 offen")
    phase3(o)
    stamp_out(o, 0)
    o("s_endpgm")

    o.lab("P2_AUX")
    kgen(o)
    srd(o, 16, 10, 2048*2048)
    o(f"""
    s_mov_b32 s30, s36
    s_mov_b32 m0, s31
    s_sub_u32 s3, s3, 4             ; w'
    s_lshl_b32 s31, s3, 10
    s_waitcnt lgkmcnt(0)
    """)
    stamp(o, 5)
    o(f"""
    s_barrier
    buffer_load_dwordx4 v1, s[20:23], s30 offen sc1 lds
    s_add_u32 m0, m0, 8192
    s_add_u32 s30, s30, 8192
    buffer_load_dwordx4 v1, s[20:23], s30 offen sc1 lds
    s_add_u32 s30, s30, 4096
    s_add_u32 m0, m0, 4096
    """)
    def kvdma(n):
        for i in range(n):
            o("s_nop 0")
            o("buffer_load_dwordx4 v1, s[20:23], s30 offen sc1 lds")
            o("s_add_u32 s30, s30, 4096")
            o("s_add_u32 m0, m0, 4096")
    kvdma(8)
    o(f"""
    s_lshl_b32 s26, s24, 5
    s_add_u32 s26, s26, s25
    s_lshl_b32 s32, s26, 2
    s_lshr_b32 s33, s3, 1           ; ch'
    s_and_b32 s34, s3, 1
    v_mov_b32 v8, s32
    s_waitcnt vmcnt(8)
    s_barrier
    global_load_dword v16, v8, s[8:9]
    """)
    kvdma(K2_EARLY)
    gsum(o)
    o(f"""
    s_waitcnt vmcnt({1 + K2_EARLY}) lgkmcnt(0)
    s_barrier
    s_mul_i32 s35, s33, 1536
    s_add_u32 s35, s35, {CHL + L_GC}
    v_lshl_add_u32 v5, v0, 3, s35
    v_lshl_add_u32 v6, v0, 2, s35
    v_mov_b32 v7, s35
    ds_read_b64 v[50:51], v5
    ds_read_b32 v52, v5 offset:8
    ds_read2_b32 v[54:55], v6 offset0:128 offset1:129
    ds_read2_b32 v[56:57], v6 offset0:192 offset1:193
    v_add_u32 v6, 1024, v6
    ds_read2_b32 v[58:59], v6 offset0:0 offset1:1
    ds_read_u16 v60, v7
    v_lshlrev_b32 v5, 3, v0
    """)
    kvdma(20 - K2_EARLY)
    srd(o, 48, 6, 2048*1024)
    o(f"""
    v_lshlrev_b32 v9, 10, v0
    s_lshl_b32 s36, s3, 19
    s_add_u32 s36, s36, s32
    """)
    G1 = OPT.get("G1", 5)
    o("v_mov_b32 v106, v9")
    o("s_lshl_b32 s46, s3, 3")
    o("s_add_u32 s46, s46, s25")
    def gath(a_, b_):
        for i in range(a_, b_):
            o(f"s_add_u32 s47, s46, {i}")
            o("s_and_b32 s47, s47, 31")
            o(f"s_lshl_b32 s{52+i}, s47, 7")
            o("s_lshl_b32 s47, s47, 16")
            o("s_add_u32 s47, s47, s32")
            o(f"buffer_load_dword v{96+i}, v106, s[48:51], s47 offen")
    srd(o, 12, 4, 512*1024)
    gath(0, G1)
    o(f"""
    v_lshlrev_b32 v105, 1, v0
    v_sub_u32 v105, {CHL + L_UT + 4094}, v105
    v_and_b32 v2, 15, v0
    v_lshrrev_b32 v3, 4, v0
    s_sub_u32 s27, 7, s3            ; iH
    v_lshlrev_b32 v4, 2, v3
    v_lshl_add_u32 v4, v2, 4, v4    ; 16a+4g
    v_lshlrev_b32 v9, 1, v4
    v_sub_u32 v9, {CHL + L_UT + 4088}, v9
    v_lshlrev_b32 v4, 11, v4        ; *2048 (out)
    ; A addresses
    v_and_b32 v10, 1, v2
    v_mul_u32_u24 v17, {L_E}, v10
    v_add_u32 v11, v2, v10
    v_lshl_add_u32 v17, v11, 1, v17
    v_lshl_add_u32 v17, v3, 4, v17
    v_add_u32 v17, {CHL}, v17       ; A ch0
    v_add_u32 v18, {L_C1}, v17      ; A ch1
    v_lshlrev_b32 v10, 5, v2
    v_lshlrev_b32 v11, 4, v3
    v_sub_u32 v11, v11, v10
    v_add_u32 v11, {CHL + L_UT + 4064}, v11
    s_lshl_b32 s35, s27, 9
    s_lshl_b32 s36, s3, 9
    v_subrev_u32 v19, s35, v11      ; B H
    v_subrev_u32 v20, s36, v11      ; B L
    v_subrev_u32 v21, s35, v9       ; skip H
    v_subrev_u32 v22, s36, v9       ; skip L
    s_mul_i32 s38, s33, {L_C1}
    s_xor_b32 s39, s34, 1
    s_mul_i32 s39, s39, {L_E}
    s_add_u32 s38, s38, s39
    s_add_u32 s38, s38, {CHL}
    v_add_u32 v5, s38, v5           ; +8t
    v_lshl_add_u32 v6, v0, 4, s38   ; +16t
    v_lshl_add_u32 v7, v0, 5, s38   ; +32t
    v_lshl_add_u32 v8, v0, 2, s38   ; +4t
    s_mul_i32 s39, s33, {L_U1}
    s_add_u32 s39, s39, {CHL + L_UT + 4096}
    v_lshl_add_u32 v10, v0, 3, s39
    s_mov_b32 s40, 0x01000100
    s_mov_b32 s41, 0x03020302
    v_mov_b32 v92, 0
    v_mov_b32 v93, 0
    v_cmp_eq_u32 s[42:43], 7, v0
    s_waitcnt lgkmcnt(0)
    s_cmp_eq_u32 s34, 0
    s_cbranch_scc0 K2_XO
    v_perm_b32 v64, v54, v54, s40
    v_alignbit_b32 v65, v55, v54, 16
    v_perm_b32 v68, v56, v56, s40
    v_mov_b32 v69, v56
    v_perm_b32 v70, v56, v56, s41
    v_perm_b32 v71, v57, v57, s40
    v_perm_b32 v76, v58, v58, s40
    v_mov_b32 v77, v76
    v_mov_b32 v78, v58
    v_perm_b32 v79, v58, v58, s41
    v_mov_b32 v80, v79
    v_mov_b32 v81, v79
    v_perm_b32 v82, v59, v59, s40
    v_mov_b32 v83, v82
    v_mov_b32 v60, 0
    ds_write_b64 v10, v[92:93]
    s_branch K2_XW
    """)
    o.lab("K2_XO")
    o(f"""
    v_alignbit_b32 v50, v51, v50, 16
    v_alignbit_b32 v51, v52, v51, 16
    v_mov_b32 v64, v54
    v_perm_b32 v65, v55, v55, s40
    v_perm_b32 v68, v56, v56, s40
    v_perm_b32 v69, v56, v56, s41
    v_alignbit_b32 v70, v57, v56, 16
    v_perm_b32 v71, v57, v57, s40
    v_perm_b32 v76, v58, v58, s40
    v_mov_b32 v77, v76
    v_perm_b32 v78, v58, v58, s41
    v_mov_b32 v79, v78
    v_mov_b32 v80, v78
    v_alignbit_b32 v81, v59, v58, 16
    v_perm_b32 v82, v59, v59, s40
    v_mov_b32 v83, v82
    v_lshlrev_b32 v60, 16, v60
    v_cndmask_b32 v60, 0, v60, s[42:43]
    """)
    o.lab("K2_XW")
    o(f"""
    ds_write_b64 v5, v[50:51] offset:32
    ds_write_b64 v5, v[64:65] offset:544
    ds_write_b128 v6, v[68:71] offset:1056
    ds_write_b128 v7, v[76:79] offset:2080
    ds_write_b128 v7, v[80:83] offset:2096
    s_mov_b64 exec, 0xff
    ds_write_b32 v8, v60
    s_mov_b64 exec, -1
    """)
    CA = 24
    for i in range(16): o(f"v_mov_b32 v{CA+i}, 0")
    FB = 40
    def creads(st, both):
        b = FB + (st & 1) * 24
        k = st % 8 if st < 8 else 8
        return b
    def issue(buf, k, both):
        if OPT.get("CNOLDS"): return
        b = FB + buf * 24
        o(f"ds_read2_b32 {vr(b,2)}, v17 offset0:{16*k} offset1:{16*k+1}")
        o(f"ds_read2_b32 {vr(b+2,2)}, v17 offset0:{16*k+2} offset1:{16*k+3}")
        o(f"ds_read2_b32 {vr(b+4,2)}, v18 offset0:{16*k} offset1:{16*k+1}")
        o(f"ds_read2_b32 {vr(b+6,2)}, v18 offset0:{16*k+2} offset1:{16*k+3}")
        o(f"ds_read_b128 {vr(b+8,4)}, v19 offset:{64*k}")
        o(f"ds_read_b128 {vr(b+12,4)}, v19 offset:{64*k+L_U1}")
        if both:
            o(f"ds_read_b128 {vr(b+16,4)}, v20 offset:{64*k}")
            o(f"ds_read_b128 {vr(b+20,4)}, v20 offset:{64*k+L_U1}")
    def cloop(lab, both):
        o.lab(lab)
        for k in range(8):
            issue((k + 1) & 1, k + 1, both)
            o(f"s_waitcnt lgkmcnt({8 if both else 6})")
            b = FB + (k & 1) * 24
            if OPT.get("CNOMF"): continue
            o(f"v_mfma_f32_16x16x32_bf16 {vr(CA,4)}, {vr(b,4)}, {vr(b+8,4)}, {vr(CA,4)}")
            o(f"v_mfma_f32_16x16x32_bf16 {vr(CA+4,4)}, {vr(b+4,4)}, {vr(b+12,4)}, {vr(CA+4,4)}")
            if both:
                o(f"v_mfma_f32_16x16x32_bf16 {vr(CA+8,4)}, {vr(b,4)}, {vr(b+16,4)}, {vr(CA+8,4)}")
                o(f"v_mfma_f32_16x16x32_bf16 {vr(CA+12,4)}, {vr(b+4,4)}, {vr(b+20,4)}, {vr(CA+12,4)}")
        for r in (17, 18, 19, 20): o(f"v_add_u32 v{r}, 512, v{r}")
        o("s_add_u32 s37, s37, 1")
    o(f"""
    s_waitcnt vmcnt({G1})
    s_barrier
    """)
    xstamp(o, 0)
    gath(G1, 8)
    for i in range(8):
        o(f"v_subrev_u32 v{107 + (i & 1)}, s{52+i}, v105")
        o(f"s_waitcnt vmcnt({7 - i})")
        o(f"ds_write_b16 v{107 + (i & 1)}, v{96+i}")
        o(f"ds_write_b16_d16_hi v{107 + (i & 1)}, v{96+i} offset:{L_U1}")
    xstamp(o, 1)
    if True:
        o(f"""
        s_cmp_ge_u32 s3, 1
        s_cbranch_scc1 K2_NWU
        s_lshr_b32 s36, s25, 2
        s_lshl_b32 s36, s36, 16
        s_lshr_b32 s45, s24, 2
        s_lshl_b32 s45, s45, 2
        s_and_b32 s44, s25, 3
        s_add_u32 s45, s45, s44
        s_lshl_b32 s45, s45, 7
        s_add_u32 s36, s36, s45
        buffer_load_dword v110, v106, s[12:15], s36 offen
        """)
        o.lab("K2_NWU")

    o(f"""
    s_waitcnt lgkmcnt(0)
    s_barrier
    s_mov_b32 s37, 0
    """)
    xstamp(o, 2)
    if OPT.get("NOCONV"):
        stamp_out(o, 0, wadd=4)
        o("s_endpgm")
    if OPT.get("CPRIO"): o(f"s_setprio {OPT['CPRIO']}")
    issue(0, 0, True)
    def fin(blk):
        ad = 21 + blk
        o(f"""
        ds_read_b64 v[8:9], v{ad}
        ds_read_b64 v[10:11], v{ad} offset:{L_U1}
        v_lshlrev_b32 v6, 16, v16
        v_and_b32 v7, 0xffff0000, v16
        s_lshl_b32 s33, s{27 if blk == 0 else 3}, 19
        s_add_u32 s33, s33, s32
        s_add_u32 s33, s33, 1024
        s_add_u32 s35, s33, 4096
        s_waitcnt lgkmcnt(0)
        """)
        for r in range(4):
            y0, y1 = CA + 8 * blk + r, CA + 8 * blk + 4 + r
            for c, y, dd in ((0, y0, 6), (1, y1, 7)):
                src = 8 + 2 * c + (1 - (r >> 1))
                if r & 1: o(f"v_lshlrev_b32 v{12+c}, 16, v{src}")
                else:     o(f"v_and_b32 v{12+c}, 0xffff0000, v{src}")
                o(f"v_fma_f32 v{y}, v{12+c}, v{dd}, v{y}")
            o(f"v_cvt_pk_bf16_f32 v{88+4*blk+r}, v{y0}, v{y1}")
            o(f"buffer_store_dword v{88+4*blk+r}, v4, s[16:19], s{(33, 35)[r >> 1]} offen offset:{2048*(r&1)}")
    cloop("K2_CA", True)
    o("s_cmp_le_u32 s37, s3")
    o("s_cbranch_scc1 K2_CA")
    fin(1)
    cloop("K2_CB", False)
    o("s_cmp_le_u32 s37, s27")
    o("s_cbranch_scc1 K2_CB")
    xstamp(o, 3)
    fin(0)
    stamp_out(o, 0, wadd=4)
    o.lab("K_END")
    o("s_endpgm")


K2_EARLY = 6
def main(out):
    hdr = open(f"cdna_kernels/{NAME}.s.ref").read().split("; @launch")[0]
    o = A()
    o.raw(hdr.rstrip())
    o.raw(f"; @launch grid=(256,1,1) block=(512,1,1) lds={LDS_ALL}")
    o.raw('.amdgcn_target "amdgcn-amd-amdhsa--gfx950"\n.text')
    kstart(o, NAME + "_kernel")
    rstamp(o, 0); stamp(o, 1)
    o("s_cmp_ge_u32 s2, 256")
    o("s_cbranch_scc1 K_END")
    phase1(o)
    phase2(o)
    o.raw('.section .rodata,"a"')
    o.raw(kdesc(NAME + "_kernel", 256))
    txt = o.text()
    txt = "\n".join((l + " sc1") if l.strip().startswith("buffer_store") and "s80" not in l and "s[16:19]" not in l else l for l in txt.split("\n"))
    open(out, "w").write(txt)

if __name__ == "__main__":
    if "--stamp" in sys.argv:
        STAMP = True; sys.argv.remove("--stamp")
    for a_ in list(sys.argv):
        if a_.startswith("-D"):
            kk, _, vv = a_[2:].partition("="); OPT[kk] = int(vv or 1); sys.argv.remove(a_)
    main(sys.argv[1] if len(sys.argv) > 1 else f"cdna_kernels/{NAME}.s")
```

```python
import sys, math, struct

NAME = "concat_heads__softmax_full_mha__ssm_conv_s4__prompt"

QF_OFF  = 0
KV_OFF  = 2 << 20
OF_OFF  = 6 << 20
WOF_OFF = 8 << 20
UT_OFF  = 9 << 20
GC_OFF  = 11 << 20
GC_SZ   = 1536
FL2_OFF = 12 << 20
FL1_OFF = (12 << 20) + (1 << 17)
EP_OFF  = 13 << 20
SPIN_MAX = 400000
ST1 = ""
WS_USED = 32 << 20

def f2u(x): return struct.unpack('<I', struct.pack('<f', x))[0]
LOG2E = 1.4426950408889634

class A:
    def __init__(s): s.l = []
    def __call__(s, t):
        for x in t.split("\n"):
            x = x.strip()
            if x: s.l.append("    " + x)
    def lab(s, n): s.l.append(n + ":")
    def raw(s, t): s.l.append(t)
    def text(s): return "\n".join(s.l) + "\n"

def vr(a, n): return f"v[{a}:{a+n-1}]" if n > 1 else f"v{a}"
def sr(a, n): return f"s[{a}:{a+n-1}]" if n > 1 else f"s{a}"

def srd(o, d, b, size, add=0):
    if add:
        o(f"s_add_u32 s{d}, s{b}, {add:#x}")
        o(f"s_addc_u32 s{d+1}, s{b+1}, 0")
    else:
        o(f"s_mov_b32 s{d}, s{b}")
        o(f"s_mov_b32 s{d+1}, s{b+1}")
    o(f"s_mov_b32 s{d+2}, {size:#x}")
    o(f"s_mov_b32 s{d+3}, 0x00020000")

class Sched:
    def __init__(s, pace=14): s.ops = []; s.pace = pace
    def add(s, text, defs, uses, lat=8, cost=4, trans=False):
        s.ops.append(dict(t=text, d=set(defs), u=set(uses), lat=lat, cost=cost, tr=trans))
    def emit(s, o, hook=None):
        ops = s.ops; n = len(ops)
        pred = [[] for _ in ops]
        lastw, readers = {}, {}
        for i, op in enumerate(ops):
            for r in op['u']:
                if r in lastw: pred[i].append((lastw[r], ops[lastw[r]]['lat']))
            for r in op['d']:
                if r in lastw: pred[i].append((lastw[r], 4))
                for j in readers.get(r, []):
                    if j != i: pred[i].append((j, 8))
            for r in op['u']: readers.setdefault(r, []).append(i)
            for r in op['d']: lastw[r] = i; readers[r] = []
        succ = [[] for _ in ops]
        for i in range(n):
            for j, l in pred[i]: succ[j].append((i, l))
        cp = [0] * n
        for i in reversed(range(n)):
            cp[i] = ops[i]['cost'] + max([l + cp[k] for k, l in succ[i]], default=0)
        done, when, t, last, lastwr = set(), {}, 0, None, -99
        while len(done) < n:
            cand = [i for i in range(n) if i not in done and all(j in done for j, _ in pred[i])]
            rdy = {i: max([when[j] + l for j, l in pred[i]], default=0) for i in cand}
            now = [i for i in cand if rdy[i] <= t]
            wr = [k for k in now if ops[k]['t'].startswith('ds_write')]
            cv = [k for k in now if ops[k]['t'].startswith('v_cvt_pk') and any(ops[z]['t'].startswith('ds_write') for z, _ in succ[k])]
            oth = [k for k in now if k not in wr]
            if wr and (t - lastwr >= s.pace or not oth): i = wr[0]; lastwr = t
            elif cv and len(wr) < 2: i = cv[0]
            elif oth: i = max(oth, key=lambda k: cp[k])
            else: i = min(cand, key=lambda k: (rdy[k], -cp[k]))
            if last is not None and ops[last]['tr'] and not ops[i]['tr'] and (ops[last]['d'] & ops[i]['u']): o("s_nop 0")
            t = max(t, rdy[i]); when[i] = t; t += ops[i]['cost']; done.add(i); last = i
            o(ops[i]['t'])
            if hook and t >= hook[0] and not ops[i]['tr']: hook[1](); hook = None
        return t

STAMP = False
FINE = False
FINE2 = False
FUSE23 = False
OPT = {}
STFLAG = 'sc1'
ST_OFF = 16 << 20
def stamp(o, i):
    if OPT.get("DBG"): o(f"s_memrealtime s[{64+2*i}:{65+2*i}]"); return
    if STAMP: o(f"s_memtime s[{64+2*i}:{65+2*i}]")
def xstamp(o, i):
    if STAMP: o(f"s_memtime s[{84+2*i}:{85+2*i}]")
def rstamp(o, i):
    if STAMP: o(f"s_memrealtime s[{64+2*i}:{65+2*i}]")
def stamp_out(o, kid, wave_sgpr="s3", wadd=0):
    if OPT.get("DBG"):
        lab = f"DBG_{kid}_{len(o.l)}"
        o("s_load_dwordx2 s[82:83], s[0:1], 104")
        o("s_waitcnt vmcnt(0)")
        o("s_memrealtime s[78:79]")
        o("s_and_b32 s80, s2, 7")
        o(f"s_add_u32 s80, s80, {wave_sgpr}")
        o("s_waitcnt lgkmcnt(0)")
        o("s_cmp_lg_u32 s80, 0")
        o(f"s_cbranch_scc1 {lab}")
        o(f"s_add_u32 s82, s82, {(2-kid)*512}")
        o("s_addc_u32 s83, s83, 0")
        o("s_mov_b64 exec, 1")
        o("s_not_b32 s66, s66")
        o("v_mov_b32 v2, 0")
        sl = {0: [(66, 0), (78, 1), (68, 6), (70, 7)], 1: [(66, 2), (78, 3), (68, 8), (74, 9)], 2: [(66, 4), (78, 5), (68, 10), (70, 11)]}[kid]
        if wadd: sl = [(78, 12), (70, 13)]
        for q, (sg, slot) in enumerate(sl):
            o(f"v_mov_b32 v{4+q}, s{sg}")
            o(f"global_atomic_umax v2, v{4+q}, s[82:83] offset:{4*slot}")
        o.lab(lab)
        return
    if not STAMP: return
    o("s_memrealtime s[78:79]")
    o("s_waitcnt lgkmcnt(0)")
    o("s_mov_b64 exec, 1")
    o(f"s_lshl_b32 s80, s2, 4")
    o(f"s_add_u32 s80, s80, {wave_sgpr}")
    o(f"s_add_u32 s80, s80, {kid*8192 + wadd}")
    o(f"s_lshl_b32 s80, s80, 7")
    o(f"s_add_u32 s80, s80, {ST_OFF:#x}")
    o("s_waitcnt vmcnt(0)")
    o("s_memtime s[76:77]")
    o("s_waitcnt lgkmcnt(0)")
    for i in range(16): o(f"v_mov_b32 v{4+i}, s{64+i}")
    for i in range(16): o(f"v_mov_b32 v{20+i}, s{84+i}")
    o("v_mov_b32 v2, 0")
    for q in range(8): o(f"buffer_store_dwordx4 v[{4+4*q}:{7+4*q}], v2, s[20:23], s80 offen offset:{16*q}")

def kstart(o, name):
    o.raw(f".globl {name}\n.p2align 8\n.type {name},@function")
    o.lab(name)

def kdesc(name, nv, ns=102):
    return f""".p2align 6
.amdhsa_kernel {name}
  .amdhsa_next_free_vgpr {nv}
  .amdhsa_next_free_sgpr {ns}
  .amdhsa_accum_offset {(nv+3)//4*4}
  .amdhsa_group_segment_fixed_size 0
  .amdhsa_kernarg_size 120
  .amdhsa_user_sgpr_count 2
  .amdhsa_user_sgpr_kernarg_segment_ptr 1
  .amdhsa_system_sgpr_workgroup_id_x 1
.end_amdhsa_kernel
"""


STG = 32768
CHL = 131072
L_E, L_C1, L_UT, L_U1 = 4160, 8320, 16640, 4608
L_GC = 26624
L_CNT = L_GC + 3072
LDS_ALL = CHL + L_CNT + 64
KB = 16384
KS = 15504

def poll(o, name, vaddr, soff, nonce, tmp, first=None):
    o("s_mov_b32 s39, 0")
    if first:
        o(f"buffer_load_dwordx2 {vr(tmp,2)}, v{vaddr}, s[20:23], s{soff} offen sc1")
        o("s_waitcnt vmcnt(0)")
        first()
        o(f"s_branch {name}_C")
    o.lab(name)
    o(f"""
    s_sleep {OPT.get('PSL', 2)}
    buffer_load_dwordx2 {vr(tmp,2)}, v{vaddr}, s[20:23], s{soff} offen sc1
    s_waitcnt vmcnt(0)
    """)
    o.lab(name + "_C")
    o(f"""
    v_cmp_ne_u64 vcc, {vr(tmp,2)}, {vr(nonce,2)}
    s_add_u32 s39, s39, 1
    s_cmp_ge_u32 s39, {SPIN_MAX}
    s_cbranch_scc1 {name}_D
    s_cbranch_vccnz {name}
    """)
    o.lab(name + "_D")

def sw_arrive(o, off, va, vt, base=CHL + L_CNT, restore="-1"):
    o(f"""
    v_mov_b32 v{va}, {base}
    v_mov_b32 v{vt}, 1
    s_mov_b64 exec, 1
    s_waitcnt lgkmcnt(0)
    ds_add_u32 v{va}, v{vt} offset:{off}
    s_mov_b64 exec, {restore}
    """)
def sw_wait(o, name, off, va, vt, cnt=4):
    o("s_mov_b64 exec, 1")
    o("s_mov_b32 s39, 0")
    o.lab(name)
    o(f"""
    ds_read_b32 v{vt}, v{va} offset:{off}
    s_add_u32 s39, s39, 1
    s_waitcnt lgkmcnt(0)
    v_cmp_gt_u32 vcc, {cnt}, v{vt}
    s_cmp_ge_u32 s39, {SPIN_MAX*8}
    s_cbranch_scc1 {name}_D
    s_cbranch_vccnz {name}
    """)
    o.lab(name + "_D")
    o("s_mov_b64 exec, -1")
def swsync(o, name, off, va, vt, cnt=4, base=CHL + L_CNT):
    sw_arrive(o, off, va, vt, base, "1")
    sw_wait(o, name, off, va, vt, cnt)

def phase1(o):
    o(f"""
    s_load_dwordx4 s[4:7], s[0:1], 0
    s_load_dwordx2 s[28:29], s[0:1], 112
    s_load_dwordx16 s[32:47], s[0:1], 32
    v_lshrrev_b32 v1, 6, v0
    v_and_b32 v0, 63, v0
    s_nop 0
    v_readfirstlane_b32 s3, v1
    v_and_b32 v2, 15, v0
    v_lshrrev_b32 v3, 4, v0
    s_and_b32 s24, s2, 7
    s_lshr_b32 s25, s2, 3
    s_lshr_b32 s26, s24, 1
    s_lshl_b32 s26, s26, 3
    s_and_b32 s31, s25, 7
    s_add_u32 s26, s26, s31         ; mt (0..31)
    s_and_b32 s27, s24, 1
    s_lshl_b32 s27, s27, 2
    s_lshr_b32 s30, s25, 3
    s_add_u32 s27, s27, s30         ; hg (0..7)
    s_lshl_b32 s30, s30, 1
    s_add_u32 s31, s31, s30
    s_and_b32 s31, s31, 7
    s_and_b32 s30, s3, 1            ; tg
    s_lshr_b32 s48, s3, 1           ; hq
    s_lshl_b32 s53, s3, 12
    v_lshrrev_b32 v10, 3, v0
    v_and_b32 v11, 7, v0
    s_cmp_ge_u32 s3, 2
    s_cbranch_scc1 P1_SW
    v_xor_b32 v76, v11, v3
    v_lshlrev_b32 v76, 4, v76
    v_lshl_add_u32 v76, v10, 10, v76
    s_lshl_b32 s50, s26, 6
    s_lshl_b32 s51, s3, 5
    s_add_u32 s50, s50, s51
    s_lshl_b32 s50, s50, 10
    s_mov_b32 s51, 8192
    s_mov_b32 s52, 128
    s_waitcnt lgkmcnt(0)
    """)
    srd(o, 12, 4, 2048*1024)
    o("s_branch P1_SD")
    o.lab("P1_SW")
    o(f"""
    v_and_b32 v76, 1, v3
    v_lshlrev_b32 v76, 1, v76
    v_xor_b32 v76, v76, v11
    v_lshlrev_b32 v76, 4, v76
    v_mul_u32_u24 v77, 3072, v10
    v_add_u32 v76, v76, v77
    s_sub_u32 s50, s3, 2
    s_lshr_b32 s51, s50, 1
    s_lshl_b32 s51, s51, 10
    s_and_b32 s50, s50, 1
    s_mul_i32 s50, s50, {32*3072}
    s_add_u32 s50, s50, s51
    s_lshl_b32 s51, s27, 7
    s_add_u32 s50, s50, s51
    s_mov_b32 s51, {8*3072}
    s_mov_b32 s52, {64*3072}
    s_waitcnt lgkmcnt(0)
    """)
    srd(o, 12, 6, 512*3072)
    o.lab("P1_SD")
    o("v_xor_b32 v77, 64, v76")
    ACC, FR, FR1 = 12, 36, 180
    def dma_l(n):
        L = []
        for q in range(4):
            if q == 0:
                t = f"s_add_u32 m0, s53, {(n & 3) * STG}\ns_add_u32 s54, s31, {n}\ns_and_b32 s54, s54, 7\ns_mul_i32 s54, s54, s52\ns_add_u32 s54, s54, s50\n"
            else:
                t = "s_add_u32 m0, m0, 1024\ns_add_u32 s54, s54, s51\n"
            L.append(t + f"buffer_load_dwordx4 v{76 + (q & 1)}, s[12:15], s54 offen lds")
        return L
    def dma(n):
        for t in dma_l(n): o(t)
    PRE, LOOK = OPT.get("K1PRE", 2), OPT.get("K1LOOK", 3)
    P = 80
    o(f"""
    s_cmp_lt_u32 s3, 4
    s_cbranch_scc1 P1_NP
    s_lshl_b32 s56, s24, 5
    s_add_u32 s56, s56, s25
    s_lshl_b32 s56, s56, 1
    s_and_b32 s55, s48, 1
    s_add_u32 s56, s56, s55
    s_lshl_b32 s58, s56, 8
    s_lshl_b32 s59, s30, 7
    s_add_u32 s58, s58, s59
    v_lshl_add_u32 v10, v0, 1, s58
    s_lshl_b32 s59, s56, 1
    v_mov_b32 v11, s59
    global_load_ushort v{P+6}, v11, s[44:45]
    global_load_ushort v{P}, v10, s[32:33]
    global_load_ushort v{P+1}, v10, s[34:35]
    global_load_ushort v{P+2}, v10, s[36:37]
    global_load_ushort v{P+3}, v10, s[38:39]
    global_load_ushort v{P+4}, v10, s[40:41]
    global_load_ushort v{P+5}, v10, s[42:43]
    """)
    o.lab("P1_NP")
    for n in range(PRE): dma(n)
    if OPT.get("WSB"):
        o(f"s_add_u32 s28, s28, {OPT['WSB'] << 20:#x}")
        o("s_addc_u32 s29, s29, 0")
    srd(o, 20, 28, WS_USED)
    o(f"""
    s_add_u32 s8, s28, {EP_OFF:#x}
    s_addc_u32 s9, s29, 0
    s_load_dwordx2 s[100:101], s[8:9], 0
    v_lshlrev_b32 v1, 4, v0
    v_lshrrev_b32 v78, 1, v2
    v_xor_b32 v78, v78, v3
    v_lshlrev_b32 v78, 4, v78
    v_lshl_add_u32 v4, v2, 7, v78
    s_lshl_b32 s49, s30, 12
    v_add_u32 v4, s49, v4
    v_xor_b32 v5, 64, v4
    v_add_u32 v6, {2*STG}, v4
    v_add_u32 v7, {2*STG}, v5
    v_bfe_u32 v78, v0, 2, 2
    v_lshl_add_u32 v78, v3, 3, v78
    v_lshlrev_b32 v78, 7, v78
    v_bfe_u32 v79, v0, 3, 2
    v_xor_b32 v79, s48, v79
    v_lshl_add_u32 v78, v79, 5, v78
    v_and_b32 v79, 3, v0
    v_lshl_add_u32 v8, v79, 3, v78
    v_add_u32 v8, 8192, v8
    v_add_u32 v9, {2*STG}, v8
    s_cmp_lt_u32 s3, {7 if OPT.get('PFC', 1) else 8}
    s_cbranch_scc1 P1_NW
    s_getpc_b64 s[8:9]
    """)
    o.lab("P1_PC")
    o(f"""
    v_lshlrev_b32 v78, 7, v0
    global_load_dword v87, v78, s[8:9]
    v_add_u32 v78, 8192, v78
    v_min_u32 v78, K_END-P1_PC, v78
    global_load_dword v87, v78, s[8:9]
    """)
    o.lab("P1_NW")
    for i in range(24): o(f"v_mov_b32 v{ACC+i}, 0")
    def reads_l(n):
        xa = (4, 5) if (n & 3) < 2 else (6, 7)
        wa = 8 if (n & 3) < 2 else 9
        so = (n & 1) * STG
        L = []
        for ks in range(2):
            b = (FR1 if n & 1 else FR) + 20 * ks
            L.append(f"ds_read_b128 {vr(b,4)}, v{xa[ks]} offset:{so}")
            L.append(f"ds_read_b128 {vr(b+4,4)}, v{xa[ks]} offset:{so + 2048}")
            for p in range(3):
                L.append(f"ds_read_b64_tr_b16 {vr(b+8+4*p,2)}, v{wa} offset:{so + p*8192 + ks*4096}")
                L.append(f"ds_read_b64_tr_b16 {vr(b+10+4*p,2)}, v{wa} offset:{so + p*8192 + ks*4096 + 512}")
        return L
    o(f"s_waitcnt vmcnt({4*(PRE-1)}) lgkmcnt(0)")
    o("s_barrier")
    o("s_add_u32 s100, s100, 0x7f4a7c15")
    o("s_addc_u32 s101, s101, 0x9e3779b9")
    stamp(o, 2)
    for t in reads_l(0): o(t)
    for n in range(PRE, LOOK): dma(n)
    P = 80
    for n in range(8):
        if n < 7:
            o(f"s_waitcnt vmcnt({4*(min(n+LOOK-1,7)-(n+1))}) lgkmcnt(0)")
            o("s_barrier")
        else:
            o("s_waitcnt lgkmcnt(0)")
        R = reads_l(n + 1) if n < 7 else []
        Dm = dma_l(n + LOOK) if n + LOOK <= 7 else []
        M = []
        for ks in range(2):
            b = (FR1 if n & 1 else FR) + 20 * ks
            for tt in range(2):
                M.append(f"v_mfma_f32_16x16x32_bf16 {vr(ACC+8+4*tt,4)}, {vr(b+12,4)}, {vr(b+4*tt,4)}, {vr(ACC+8+4*tt,4)}")
            for tt in range(2):
                M.append(f"v_mfma_f32_16x16x32_bf16 {vr(ACC+16+4*tt,4)}, {vr(b+4*tt,4)}, {vr(b+16,4)}, {vr(ACC+16+4*tt,4)}")
            for tt in range(2):
                M.append(f"v_mfma_f32_16x16x32_bf16 {vr(ACC+4*tt,4)}, {vr(b+8,4)}, {vr(b+4*tt,4)}, {vr(ACC+4*tt,4)}")
        for i, m in enumerate(M):
            o(m)
            if i < 8:
                for t in R[2*i:2*i+2]: o(t)
            elif Dm: o(Dm[i - 8])
    stamp(o, 3)
    o(f"""
    s_lshl_b32 s49, s27, 2
    s_add_u32 s49, s49, s48         ; head
    s_lshl_b32 s52, s49, 12
    s_lshl_b32 s49, s49, 6
    s_lshl_b32 s50, s26, 1
    s_add_u32 s50, s50, s30
    s_add_u32 s49, s49, s50
    s_lshl_b32 s53, s50, 3
    s_add_u32 s52, s52, s53
    s_add_u32 s52, s52, {FL1_OFF:#x}
    s_lshl_b32 s50, s49, 11
    s_lshl_b32 s49, s49, 10
    s_add_u32 s50, s50, {KV_OFF:#x}
    s_mov_b32 s51, {f2u(0.25*LOG2E):#x}
    """)
    def cv(a):
        b = ACC + 4 * a
        o(f"v_cvt_pk_bf16_f32 v{FR+2*a}, v{b}, v{b+1}")
        o(f"v_cvt_pk_bf16_f32 v{FR+1+2*a}, v{b+2}, v{b+3}")
    def sw(a):
        o(f"v_permlane16_swap_b32 v{FR+4*a}, v{FR+4*a+2}")
        o(f"v_permlane16_swap_b32 v{FR+4*a+1}, v{FR+4*a+3}")
    cv(2); cv(3); cv(4); cv(5)
    sw(1)
    for i in range(4): o(f"v_mul_f32 v{ACC+i}, s51, v{ACC+i}")
    o(f"buffer_store_dwordx4 {vr(FR+4,4)}, v1, s[20:23], s50 offen")
    sw(2)
    for i in range(4, 8): o(f"v_mul_f32 v{ACC+i}, s51, v{ACC+i}")
    o(f"buffer_store_dwordx4 {vr(FR+8,4)}, v1, s[20:23], s50 offen offset:1024")
    cv(0); cv(1)
    o("s_nop 1")
    sw(0)
    o("s_nop 1")
    o(f"""
    buffer_store_dwordx4 {vr(FR,4)}, v1, s[20:23], s49 offen
    s_load_dwordx4 s[4:7], s[0:1], 16
    s_load_dwordx4 s[8:11], s[0:1], 88
    v_lshlrev_b32 v4, 9, v0
    v_mov_b32 v6, s100
    v_mov_b32 v7, s101
    s_lshl_b32 s26, s24, 2
    s_and_b32 s27, s25, 3
    s_add_u32 s26, s26, s27
    s_lshr_b32 s27, s25, 2          ; qb
    """)

def flag1(o):
    o(f"""
    s_mov_b64 exec, 0xff
    s_waitcnt vmcnt(0)
    buffer_store_dwordx2 v[6:7], v4, s[20:23], s52 offen
    s_mov_b64 exec, -1
    """)
    stamp(o, 4)

def kgen(o):
    P, T, GA, WA, RA = 80, 88, 168, 78, 79
    o(f"""
    s_and_b32 s58, s3, 3
    s_mul_i32 s58, s58, {KS}
    s_add_u32 s58, s58, {KB}
    v_lshl_add_u32 v{WA}, v0, 2, s58
    v_mul_u32_u24 v{RA}, 272, v2
    v_lshl_add_u32 v{RA}, v3, 4, v{RA}
    v_add_u32 v{RA}, s58, v{RA}
    s_mul_i32 s58, s55, {L_C1}
    s_add_u32 s58, s58, {CHL}
    v_add_u32 v{T}, s58, v1
    """)
    for i in range(12): o(f"v_mov_b32 v{GA+i}, 0")
    sc = Sched()
    pairs = [r for r in range(36, 76, 2)] + [r for r in range(90, 168, 2)] + [r for r in range(180, 236, 2)]
    tpool = list(range(236, 256)); tix = [0]
    def newp(): return pairs.pop(0)
    def tmp():
        t = tpool[tix[0] % len(tpool)]; tix[0] += 1; return t
    def op(text, d, u, **k): sc.add(text, d, u, **k)
    for r in range(P, P + 7): op(f"v_lshlrev_b32 v{r}, 16, v{r}", [r], [r])
    D = P + 6
    op(f"v_mul_f32 v{D}, {f2u(LOG2E):#x}, v{D}", [D], [D])
    op(f"v_exp_f32 v{D}, v{D}", [D], [D], lat=16, cost=8, trans=True)
    op(f"v_cvt_pk_bf16_f32 v{D}, v{D}, v{D}", [D], [D])
    op(f"v_lshlrev_b32 v{D}, 16, v{D}", [D], [D])
    for k in range(4): op(f"v_mul_f32 v{P+k}, v{D}, v{P+k}", [P+k], [D, P+k])
    op(f"v_mul_f32 v{P}, {f2u(LOG2E):#x}, v{P}", [P], [P])
    op(f"v_mul_f32 v{P+1}, {f2u(1/(2*math.pi)):#x}, v{P+1}", [P+1], [P+1])
    C = newp()
    op(f"v_mul_f32 v{C}, v{P+4}, v{P+2}", [C], [P+4, P+2])
    op(f"v_mul_f32 v{C+1}, v{P+4}, v{P+3}", [C+1], [P+4, P+3])
    op(f"v_fma_f32 v{C}, -v{P+5}, v{P+3}, v{C}", [C], [P+5, P+3, C])
    op(f"v_fma_f32 v{C+1}, v{P+5}, v{P+2}, v{C+1}", [C+1], [P+5, P+2, C+1])
    def anchor(t):
        d = newp(); a_, b_, c_, e_ = tmp(), tmp(), tmp(), tmp()
        op(f"v_mul_f32 v{a_}, {f2u(float(t)):#x}, v{P}", [a_], [P])
        op(f"v_mul_f32 v{b_}, {f2u(float(t)):#x}, v{P+1}", [b_], [P+1])
        op(f"v_exp_f32 v{a_}, v{a_}", [a_], [a_], lat=16, cost=8, trans=True)
        op(f"v_fract_f32 v{b_}, v{b_}", [b_], [b_])
        op(f"v_cos_f32 v{c_}, v{b_}", [c_], [b_], lat=16, cost=8, trans=True)
        op(f"v_sin_f32 v{e_}, v{b_}", [e_], [b_], lat=16, cost=8, trans=True)
        op(f"v_mul_f32 v{d}, v{a_}, v{c_}", [d], [a_, c_])
        op(f"v_mul_f32 v{d+1}, v{a_}, v{e_}", [d+1], [a_, e_])
        return d
    def cmul(x, w):
        d = newp()
        op(f"v_pk_mul_f32 {vr(d,2)}, {vr(x,2)}, {vr(w,2)} op_sel:[0,0] op_sel_hi:[1,0]", [d, d+1], [x, x+1, w], lat=12)
        op(f"v_pk_fma_f32 {vr(d,2)}, {vr(x,2)}, {vr(w,2)}, {vr(d,2)} op_sel:[1,1,0] op_sel_hi:[0,1,1] neg_lo:[1,0,0]", [d, d+1], [x, x+1, w+1, d, d+1], lat=12)
        return d
    def put(e, x, neg=False):
        t = tmp()
        op(f"v_cvt_pk_bf16_f32 v{t}, v{x}, {'-' if neg else ''}v{x+1}", [t], [x, x+1])
        if not OPT.get("KNOW"): op(f"ds_write_b32 v{WA}, v{t} offset:{e*272}", [], [t])
    Z8, Z1, Z128 = anchor(8), anchor(1), anchor(128)
    t_ = tmp()
    op(f"v_mov_b32 v{t_}, 0x3f80", [t_], [])
    op(f"ds_write_b32 v{WA}, v{t_}", [], [t_])
    e = {1: Z8}
    e[2] = cmul(e[1], e[1]); e[3] = cmul(e[2], e[1]); e[4] = cmul(e[2], e[2])
    for j in (5, 6, 7): e[j] = cmul(e[4], e[j-4])
    e[8] = cmul(e[4], e[4])
    for j in range(9, 16): e[j] = cmul(e[8], e[j-8])
    for j in range(1, 16): put(j, e[j], True)
    x = {0: C}
    x[1] = cmul(C, Z1); Z2 = cmul(Z1, Z1); x[2] = cmul(x[0], Z2); x[3] = cmul(x[1], Z2); Z4 = cmul(Z2, Z2)
    for r in range(4, 8): x[r] = cmul(x[r-4], Z4)
    y = {r: cmul(x[r], Z128) for r in range(8)}
    Z256 = cmul(Z128, Z128)
    pp = {r: cmul(x[2*r], Z256) for r in range(4)}
    qq = {r: cmul(y[2*r], Z256) for r in range(4)}
    Z512 = cmul(Z256, Z256)
    rr = [cmul(v_, Z512) for v_ in (x[0], x[4], y[0], y[4], pp[0], pp[2], qq[0], qq[2])]
    Z1024 = cmul(Z512, Z512)
    ss = [cmul(v_, Z1024) for v_ in (x[0], y[0], pp[0], qq[0], rr[0], rr[2], rr[4], rr[6])]
    s2048 = cmul(ss[0], Z1024)
    for r in range(8): put(16 + r, x[r]); put(24 + r, y[r])
    for r in range(4): put(32 + r, pp[r]); put(36 + r, qq[r])
    for r in range(8): put(40 + r, rr[r])
    for r in range(8): put(48 + r, ss[r])
    put(56, s2048)
    sc.emit(o, (OPT.get('FLT', 300), lambda: flag1(o)))
    FB_ = 90
    for t in range(4):
        for s_ in range(4): o(f"ds_read_b128 {vr(FB_+16*t+4*s_,4)}, v{RA} offset:{t*4352 + 64*s_}")
    for t in range(3):
        o(f"s_waitcnt lgkmcnt({8 - 4*t})")
        for s_ in range(4):
            o(f"v_mfma_f32_16x16x32_bf16 {vr(GA+4*t,4)}, {vr(FB_+16+16*t+4*s_,4)}, {vr(FB_+4*s_,4)}, {vr(GA+4*t,4)}")
    o(f"""
    s_cmp_eq_u32 s30, 0
    s_cbranch_scc1 KG_EV
    s_nop 7
    ds_write_b128 v{T}, {vr(GA,4)}
    ds_write_b128 v{T}, {vr(GA+4,4)} offset:1024
    ds_write_b128 v{T}, {vr(GA+8,4)} offset:2048
    """)
    o.lab("KG_EV")

def gsum(o):
    T, GA, X0 = 88, 168, 104
    Y = [120, 122, 124, 126, 128]
    o(f"""
    s_cmp_lg_u32 s34, 0
    s_cbranch_scc1 GS_END
    ds_read_b128 {vr(X0,4)}, v{T}
    ds_read_b128 {vr(X0+4,4)}, v{T} offset:1024
    ds_read_b128 {vr(X0+8,4)}, v{T} offset:2048
    s_mul_i32 s58, s33, 1536
    s_add_u32 s58, s58, {CHL + L_GC}
    v_lshrrev_b32 v{Y[0]}, 1, v3
    v_lshlrev_b32 v{Y[0]}, 8, v{Y[0]}
    v_lshl_add_u32 v{Y[0]}, v2, 4, v{Y[0]}
    v_and_b32 v{Y[0]+1}, 1, v3
    v_lshl_add_u32 v{Y[0]}, v{Y[0]+1}, 3, v{Y[0]}
    v_cmp_gt_u32 s[60:61], 2, v3
    v_lshlrev_b32 v{Y[1]}, 2, v2
    v_lshlrev_b32 v{Y[1]+1}, 3, v2
    v_cndmask_b32 v{Y[1]}, v{Y[1]}, v{Y[1]+1}, s[60:61]
    v_lshl_add_u32 v{Y[1]}, v3, 7, v{Y[1]}
    v_mov_b32 v{Y[1]+1}, 64
    v_cndmask_b32 v{Y[1]+1}, v{Y[1]+1}, 4, s[60:61]
    v_add_u32 v{Y[1]+1}, v{Y[1]}, v{Y[1]+1}
    v_lshlrev_b32 v{Y[2]}, 7, v3
    v_lshl_add_u32 v{Y[2]}, v2, 1, v{Y[2]}
    v_add_u32 v{Y[0]}, s58, v{Y[0]}
    v_add_u32 v{Y[1]}, s58, v{Y[1]}
    v_add_u32 v{Y[1]+1}, s58, v{Y[1]+1}
    v_add_u32 v{Y[2]}, s58, v{Y[2]}
    s_waitcnt lgkmcnt(0)
    """)
    for i in range(12): o(f"v_add_f32 v{GA+i}, v{GA+i}, v{X0+i}")
    g = Y[4]
    for i in range(6): o(f"v_cvt_pk_bf16_f32 v{g+i}, v{GA+2*i}, v{GA+2*i+1}")
    o(f"""
    ds_write_b64 v{Y[0]}, {vr(g,2)}
    ds_write_b32 v{Y[1]}, v{g+2} offset:512
    ds_write_b32 v{Y[1]+1}, v{g+3} offset:512
    ds_write_b16 v{Y[2]}, v{g+4} offset:1024
    ds_write_b16_d16_hi v{Y[2]}, v{g+4} offset:1056
    ds_write_b16 v{Y[2]}, v{g+5} offset:1088
    ds_write_b16_d16_hi v{Y[2]}, v{g+5} offset:1120
    """)
    o.lab("GS_END")

def phase3(o):
    if OPT.get("B4", 7) == 16: o("s_barrier")
    srd(o, 12, 4, 512*1024)
    srd(o, 16, 10, 2048*2048)
    o(f"""
    s_and_b32 s30, s3, 1            ; tt
    s_lshr_b32 s31, s3, 1
    s_lshl_b32 s32, s27, 2
    s_bfe_u32 s33, s26, 0x20002
    s_add_u32 s32, s32, s33         ; tb
    s_lshl_b32 s32, s32, 1
    s_add_u32 s32, s32, s30
    s_lshr_b32 s35, s26, 4
    s_lshl_b32 s35, s35, 2
    s_and_b32 s34, s26, 3
    s_add_u32 s35, s35, s34         ; nb
    s_lshl_b32 s34, s35, 1
    s_add_u32 s34, s34, s31
    s_lshl_b32 s42, s31, 14
    s_lshl_b32 s43, s32, 15
    s_add_u32 s42, s42, s43
    s_add_u32 s42, s42, {OF_OFF:#x}
    s_add_u32 s43, s42, 4096
    s_add_u32 s44, s42, 8192
    s_add_u32 s45, s42, 12288
    v_lshrrev_b32 v2, 3, v0
    v_and_b32 v3, 7, v0
    v_bfe_u32 v4, v0, 4, 1
    v_lshlrev_b32 v4, 2, v4
    v_xor_b32 v3, v3, v4
    v_lshlrev_b32 v3, 4, v3
    v_lshl_add_u32 v2, v2, 10, v3
    s_lshl_b32 s36, s3, 17
    s_lshl_b32 s37, s35, 7
    s_add_u32 s36, s36, s37
    s_lshl_b32 s37, s3, 14
    s_mov_b32 m0, s37
    v_lshrrev_b32 v3, 5, v0
    v_bfe_u32 v4, v0, 2, 2
    v_lshl_add_u32 v3, v3, 2, v4
    v_lshlrev_b32 v3, 7, v3
    v_bfe_u32 v4, v0, 3, 1
    v_xor_b32 v4, s31, v4
    v_lshl_add_u32 v3, v4, 6, v3
    v_bfe_u32 v4, v0, 4, 1
    v_lshl_add_u32 v3, v4, 5, v3
    v_and_b32 v4, 3, v0
    v_lshl_add_u32 v3, v4, 3, v3
    s_lshl_b32 s37, s31, 15
    v_add_u32 v250, s37, v3
    v_xor_b32 v251, 64, v250
    v_mov_b32 v252, s100
    v_mov_b32 v253, s101
    v_lshrrev_b32 v5, 2, v0
    v_lshlrev_b32 v5, 4, v5
    v_and_b32 v8, 3, v0
    v_add_u32 v5, v5, v8
    v_lshlrev_b32 v5, 8, v5
    s_lshl_b32 s38, s27, 13
    s_lshl_b32 s39, s26, 3
    s_add_u32 s38, s38, s39
    s_lshl_b32 s39, s3, 10
    s_add_u32 s38, s38, s39
    s_add_u32 s38, s38, {FL2_OFF:#x}
    """)
    sw_arrive(o, 0, 8, 9, restore="0xff")
    o(f"""
    s_waitcnt vmcnt(0)
    buffer_store_dwordx2 v[252:253], v5, s[20:23], s38 offen
    """)
    xstamp(o, 0)
    sw_wait(o, "P3_S1", 0, 8, 9)
    for i in range(16):
        o("buffer_load_dwordx4 v2, s[12:15], s36 offen lds")
        if i < 15:
            o("s_add_u32 m0, m0, 1024")
            o("s_add_u32 s36, s36, 8192")
    AC, FA, FBb = 4, 36, 164
    xstamp(o, 1)
    o(f"""
    s_lshl_b32 s38, s27, 5
    s_add_u32 s38, s38, s26
    s_lshl_b32 s38, s38, 8
    s_lshl_b32 s39, s31, 7
    s_add_u32 s38, s38, s39
    s_add_u32 s38, s38, {FL2_OFF:#x}
    v_lshlrev_b32 v5, 3, v0
    s_mov_b64 exec, 0xffff
    """)
    poll(o, "P3_POLL", 5, 38, 252, 232, first=lambda: sw_arrive(o, 4, 8, 9, restore="0xffff"))
    o("s_mov_b64 exec, -1")
    xstamp(o, 2)
    for h in range(16):
        o(f"buffer_load_dwordx4 {vr(FBb+4*h,4)}, v1, s[20:23], s{42 + (h >> 2)} offen offset:{1024*(h&3)} sc1")
    sw_wait(o, "P3_S2", 4, 8, 9)
    for h in range(16):
        for k in range(2):
            o(f"ds_read_b64_tr_b16 {vr(FA+8*h+4*k,2)}, v{250+k} offset:{2048*h}")
            o(f"ds_read_b64_tr_b16 {vr(FA+8*h+4*k+2,2)}, v{250+k} offset:{2048*h+1024}")
    XB = 65536
    o(f"""
    s_xor_b32 s36, s3, 2
    s_lshl_b32 s36, s36, 12
    s_add_u32 s36, s36, {XB}
    v_add_u32 v240, s36, v1
    s_lshl_b32 s36, s3, 12
    s_add_u32 s36, s36, {XB}
    v_add_u32 v241, s36, v1
    v_and_b32 v2, 31, v0
    v_lshlrev_b32 v2, 11, v2
    v_lshrrev_b32 v3, 5, v0
    v_lshl_add_u32 v2, v3, 4, v2
    s_lshl_b32 s36, s32, 16
    s_lshl_b32 s37, s34, 6
    s_add_u32 s36, s36, s37
    s_lshl_b32 s37, s30, 2
    s_add_u32 s37, s37, {CHL + L_CNT + 8}
    s_waitcnt lgkmcnt(0)
    """)
    for h in range(16):
        o(f"s_waitcnt vmcnt({15-h})")
        if h == 0: xstamp(o, 3)
        for k in (1, 0):
            c = vr(AC + 16 * k, 16)
            o(f"v_mfma_f32_32x32x16_bf16 {c}, {vr(FA+8*h+4*k,4)}, {vr(FBb+4*h,4)}, {c if h else 0}")
    xstamp(o, 4)
    o("s_nop 10")
    for q in range(4):
        o(f"ds_write_b128 v240, {vr(AC+16+4*q,4)} offset:{q*1024}")
    swsync(o, "P3_S3", 0, 242, 243, cnt=2, base="s37")
    for q in range(4):
        o(f"ds_read_b128 {vr(FA+4*q,4)}, v241 offset:{q*1024}")
    for q in range(4):
        o(f"s_waitcnt lgkmcnt({3-q})")
        for i in range(4): o(f"v_add_f32 v{AC+4*q+i}, v{AC+4*q+i}, v{FA+4*q+i}")
        for i in range(2): o(f"v_cvt_pk_bf16_f32 v{24+2*q+i}, v{AC+4*q+2*i}, v{AC+4*q+2*i+1}")
    o(f"""
    s_nop 1
    v_permlane32_swap_b32 v24, v26
    v_permlane32_swap_b32 v25, v27
    v_permlane32_swap_b32 v28, v30
    v_permlane32_swap_b32 v29, v31
    s_nop 1
    buffer_store_dwordx4 v[24:27], v2, s[16:19], s36 offen
    buffer_store_dwordx4 v[28:31], v2, s[16:19], s36 offen offset:32
    s_add_u32 s38, s2, s3
    s_cmp_lg_u32 s38, 0
    s_cbranch_scc1 P3_NE
    s_mov_b32 s38, {EP_OFF:#x}
    v_mov_b32 v5, 0
    s_mov_b64 exec, 1
    buffer_store_dwordx2 v[252:253], v5, s[20:23], s38 offen
    """)
    o.lab("P3_NE")
    xstamp(o, 5)

def kvpiece(o, step):
    o("s_add_u32 s38, s30, s37")
    o("buffer_load_dwordx4 v1, s[20:23], s38 offen sc1 lds")
    o(f"s_add_u32 m0, m0, {step}")
    o(f"s_add_u32 s30, s30, {step}")
    o("s_and_b32 s30, s30, 0x1ffff")

def phase2(o):
    o(f"""
    s_lshl_b32 s37, s26, 17
    s_add_u32 s37, s37, {KV_OFF:#x}
    s_lshl_b32 s36, s26, 3
    s_add_u32 s36, s36, s27
    s_lshl_b32 s36, s36, 9
    s_add_u32 s36, s36, {FL1_OFF:#x}
    s_cmp_ge_u32 s3, 4
    s_cbranch_scc1 P2_AUX
    """)
    flag1(o)
    QA, QB, NMA, NMB, OA, OB, SX, SY = 4, 8, 12, 28, 44, 60, 76, 92
    KF, V0, V1, IDX, AD, MB = (108, 112), (116, 120), (124, 128), 132, 2, 133
    o(f"""
    s_lshl_b32 s35, s26, 6
    s_lshl_b32 s31, s27, 3
    s_add_u32 s35, s35, s31
    s_lshl_b32 s31, s3, 1
    s_add_u32 s35, s35, s31
    s_lshl_b32 s35, s35, 10
    s_lshl_b32 s31, s3, 10
    s_lshl_b32 s30, s27, 14
    s_add_u32 s30, s30, s31
    s_lshl_b32 s38, s27, 6
    s_add_u32 s36, s36, s38
    """)
    def vinit():
        o("s_mov_b64 exec, s[42:43]")
        for r in range(V0[0], V0[0] + 16): o(f"v_mov_b32 v{r}, 0x3f803f80")
        o("s_not_b64 exec, exec")
        for r in range(V0[0], V0[0] + 16): o(f"v_mov_b32 v{r}, 0")
        o("s_mov_b64 exec, -1")
    o(f"""
    s_mov_b32 s40, 0xffff
    s_mov_b32 s41, 0xffff
    s_mov_b32 s42, 0x110000
    s_mov_b32 s43, 0x110000
    s_mov_b32 s34, 0
    v_mov_b32 v{IDX}, 0xdddd
    """)
    vinit()
    o(f"""
    s_mov_b32 m0, s31
    v_lshlrev_b32 v2, 3, v0
    s_mov_b64 exec, 0xff
    """)
    poll(o, "P2_POLL", 2, 36, 6, 140)
    o("s_mov_b64 exec, -1")
    stamp(o, 5)
    kvpiece(o, 4096)
    o(f"buffer_load_dwordx4 {vr(QA,4)}, v1, s[20:23], s35 offen sc1")
    o(f"buffer_load_dwordx4 {vr(QB,4)}, v1, s[20:23], s35 offen offset:1024 sc1")
    for i in range(3): kvpiece(o, 4096)
    o("s_waitcnt vmcnt(0)")
    o("s_barrier")
    xstamp(o, 6)
    o(f"""
    ds_read_b128 {vr(KF[0],4)}, v1
    ds_read_b128 {vr(KF[1],4)}, v1 offset:2048
    s_mov_b64 exec, s[40:41]
    ds_read_b128 {vr(V0[0],4)}, v1 offset:1024
    ds_read_b128 {vr(V1[0],4)}, v1 offset:1280
    s_mov_b64 exec, -1
    s_waitcnt lgkmcnt(3)
    v_mfma_f32_32x32x16_bf16 {vr(SX,16)}, {vr(KF[0],4)}, {vr(QA,4)}, 0
    v_mfma_f32_32x32x16_bf16 {vr(SY,16)}, {vr(KF[0],4)}, {vr(QB,4)}, 0
    """)
    for i in range(16): o(f"v_mov_b32 v{OA+i}, 0")
    def maxred(src, dst):
        o(f"v_max3_f32 v{dst}, v{src}, v{src+1}, v{src+2}")
        for i in range(3, 15, 2): o(f"v_max3_f32 v{dst}, v{dst}, v{src+i}, v{src+i+1}")
        o(f"v_max_f32 v{dst}, v{dst}, v{src+15}")
    maxred(SX, 3)
    maxred(SY, MB)
    o.lab("K2_PASS")
    o(f"""
    v_mov_b32 v{AD}, v3
    v_mov_b32 v{MB+1}, v{MB}
    s_nop 1
    v_permlane32_swap_b32 v3, v{AD}
    v_permlane32_swap_b32 v{MB}, v{MB+1}
    s_nop 1
    v_max_f32 v3, v3, v{AD}
    v_max_f32 v{MB}, v{MB}, v{MB+1}
    v_mov_b32 v{AD}, v1
    """)
    for i in range(16): o(f"v_sub_f32 v{NMA+i}, 0, v3")
    o("s_nop 1")
    o(f"v_mfma_f32_32x32x16_bf16 {vr(SX,16)}, {vr(KF[0],4)}, {vr(QA,4)}, {vr(NMA,16)}")
    for i in range(16): o(f"v_sub_f32 v{NMB+i}, 0, v{MB}")
    for i in range(16): o(f"v_mov_b32 v{OB+i}, 0")
    for i in range(8, 16): o(f"v_mov_b32 v{SY+i}, 0")
    o(f"""
    s_mov_b32 s32, 0                ; iteration
    s_cmp_eq_u32 s34, 0
    s_cselect_b32 s33, 1, 16        ; limit
    """)
    o.raw(".p2align 6")
    o.lab("K2_LOOP")
    def ex(X, a, b):
        for i in range(a, b): o(f"v_exp_f32 v{X+i}, v{X+i}")
    for u in range(4):
        p = u & 1
        ex(SX, 0, 3)
        o("s_waitcnt lgkmcnt(0)")
        o(f"v_smfmac_f32_32x32x32_bf16 {vr(OB,16)}, {vr(V1[p^1],4)}, {vr(SY+8,8)}, v{IDX}")
        o("s_mov_b64 exec, s[40:41]")
        o(f"ds_read_b128 {vr(V0[p^1],4)}, v{AD} offset:{(u+1)*2048+1024}")
        o(f"ds_read_b128 {vr(V1[p^1],4)}, v{AD} offset:{(u+1)*2048+1280}")
        o("s_mov_b64 exec, -1")
        ex(SX, 3, 8)
        o(f"v_mfma_f32_32x32x16_bf16 {vr(SY,16)}, {vr(KF[p],4)}, {vr(QB,4)}, {vr(NMB,16)}")
        o(f"ds_read_b128 {vr(KF[p],4)}, v{AD} offset:{(u+2)*2048}")
        ex(SX, 8, 13)
        o(f"v_smfmac_f32_32x32x32_bf16 {vr(OA,16)}, {vr(V0[p],4)}, {vr(SX,8)}, v{IDX}")
        ex(SX, 13, 16)
        if u == 3:
            o(f"v_add_u32 v{AD}, 8192, v{AD}")
            o("s_add_u32 s32, s32, 1")
            o("s_cmp_lt_u32 s32, s33")
        ex(SY, 0, 3)
        o(f"v_smfmac_f32_32x32x32_bf16 {vr(OA,16)}, {vr(V1[p],4)}, {vr(SX+8,8)}, v{IDX}")
        ex(SY, 3, 8)
        o(f"v_mfma_f32_32x32x16_bf16 {vr(SX,16)}, {vr(KF[p^1],4)}, {vr(QA,4)}, {vr(NMA,16)}")
        ex(SY, 8, 13)
        o(f"v_smfmac_f32_32x32x32_bf16 {vr(OB,16)}, {vr(V0[p],4)}, {vr(SY,8)}, v{IDX}")
        ex(SY, 13, 16)
    o(f"""
    s_cbranch_scc1 K2_LOOP
    s_cmp_ge_u32 s32, 16
    s_cbranch_scc1 K2_FIN
    s_barrier
    """)
    o(f"""
    s_cmp_eq_u32 s32, {OPT.get("B3", 5)}
    s_cselect_b32 s33, {OPT.get("B4", 7)}, 16
    s_cmp_eq_u32 s32, 1
    s_cselect_b32 s33, {OPT.get("B3", 5)}, s33
    s_branch K2_LOOP
    """)
    o.lab("K2_FIN")
    xstamp(o, 7)
    o(f"""
    v_smfmac_f32_32x32x32_bf16 {vr(OB,16)}, {vr(V1[1],4)}, {vr(SY+8,8)}, v{IDX}
    v_mul_f32 v3, 0, v{OA+8}
    """)
    for i in range(8): o(f"v_fma_f32 v3, v{OA+i}, 0, v3")
    o("s_nop 3")
    for i in range(9): o(f"v_fma_f32 v3, v{OB+i}, 0, v3")
    o(f"""
    s_cmp_lg_u32 s34, 0
    s_cbranch_scc1 K2_OUT
    v_cmp_u_f32 vcc, v3, v3
    s_nop 1
    s_cbranch_vccz K2_OUT
    s_mov_b32 s34, 1
    s_mov_b32 s32, 0
    v_mov_b32 v{AD}, v1
    v_mov_b32 v3, 0xff800000
    v_mov_b32 v{MB}, 0xff800000
    s_waitcnt lgkmcnt(0)
    """)
    o.lab("K2_MAXL")
    o(f"""
    ds_read_b128 {vr(KF[0],4)}, v{AD}
    v_add_u32 v{AD}, 2048, v{AD}
    s_waitcnt lgkmcnt(0)
    v_mfma_f32_32x32x16_bf16 {vr(SX,16)}, {vr(KF[0],4)}, {vr(QA,4)}, 0
    v_mfma_f32_32x32x16_bf16 {vr(SY,16)}, {vr(KF[0],4)}, {vr(QB,4)}, 0
    s_nop 15
    """)
    for i in range(0, 16, 2): o(f"v_max3_f32 v3, v3, v{SX+i}, v{SX+i+1}")
    for i in range(0, 16, 2): o(f"v_max3_f32 v{MB}, v{MB}, v{SY+i}, v{SY+i+1}")
    o(f"""
    s_add_u32 s32, s32, 1
    s_cmp_lt_u32 s32, 64
    s_cbranch_scc1 K2_MAXL
    """)
    vinit()
    o(f"""
    ds_read_b128 {vr(KF[0],4)}, v1
    ds_read_b128 {vr(KF[1],4)}, v1 offset:2048
    s_mov_b64 exec, s[40:41]
    ds_read_b128 {vr(V0[0],4)}, v1 offset:1024
    ds_read_b128 {vr(V1[0],4)}, v1 offset:1280
    s_mov_b64 exec, -1
    """)
    for i in range(16): o(f"v_mov_b32 v{OA+i}, 0")
    o("s_waitcnt lgkmcnt(0)")
    o("s_branch K2_PASS")
    o.lab("K2_OUT")
    o(f"""
    v_rcp_f32 v3, v{OA+8}
    v_rcp_f32 v{MB}, v{OB+8}
    s_lshl_b32 s30, s27, 3
    s_lshl_b32 s31, s3, 1
    s_add_u32 s30, s30, s31
    s_lshl_b32 s30, s30, 5
    s_add_u32 s30, s30, s26
    s_lshl_b32 s30, s30, 10
    s_add_u32 s30, s30, {OF_OFF:#x}
    s_add_u32 s31, s30, 32768
    """)
    for i in range(8): o(f"v_mul_f32 v{OA+i}, v{OA+i}, v3")
    for i in range(4): o(f"v_cvt_pk_bf16_f32 v{SX+i}, v{OA+2*i}, v{OA+2*i+1}")
    o(f"buffer_store_dwordx4 {vr(SX,4)}, v1, s[20:23], s30 offen")
    for i in range(8): o(f"v_mul_f32 v{OB+i}, v{OB+i}, v{MB}")
    for i in range(4): o(f"v_cvt_pk_bf16_f32 v{SX+4+i}, v{OB+2*i}, v{OB+2*i+1}")
    o(f"buffer_store_dwordx4 {vr(SX+4,4)}, v1, s[20:23], s31 offen")
    phase3(o)
    stamp_out(o, 0)
    o("s_endpgm")

    o.lab("P2_AUX")
    kgen(o)
    srd(o, 16, 10, 2048*2048)
    o(f"""
    s_sub_u32 s3, s3, 4             ; w'
    s_lshl_b32 s31, s3, 10
    s_add_u32 m0, s31, 16384
    s_lshl_b32 s30, s27, 14
    s_add_u32 s30, s30, s31
    s_add_u32 s30, s30, 16384
    s_and_b32 s30, s30, 0x1ffff
    v_mov_b32 v8, {CHL + L_CNT}
    v_mov_b32 v12, 0
    v_mov_b32 v13, 0
    v_mov_b32 v14, 0
    v_mov_b32 v15, 0
    ds_write_b128 v8, v[12:15]
    v_lshlrev_b32 v5, 3, v0
    s_waitcnt lgkmcnt(0)
    """)
    stamp(o, 5)
    o("s_barrier")
    poll(o, "P2_POLA", 5, 36, 6, 140)
    xstamp(o, 4)
    def kvdma(n):
        for i in range(n): kvpiece(o, 4096)
    kvdma(8)
    o(f"""
    s_lshl_b32 s26, s24, 5
    s_add_u32 s26, s26, s25
    s_lshl_b32 s32, s26, 2
    s_lshr_b32 s33, s3, 1           ; ch'
    s_and_b32 s34, s3, 1
    v_mov_b32 v8, s32
    global_load_dword v16, v8, s[8:9]
    """)
    kvdma(K2_EARLY)
    gsum(o)
    o(f"""
    s_waitcnt vmcnt({1 + K2_EARLY}) lgkmcnt(0)
    s_barrier
    s_mul_i32 s35, s33, 1536
    s_add_u32 s35, s35, {CHL + L_GC}
    v_lshl_add_u32 v5, v0, 3, s35
    v_lshl_add_u32 v6, v0, 2, s35
    v_mov_b32 v7, s35
    ds_read_b64 v[50:51], v5
    ds_read_b32 v52, v5 offset:8
    ds_read2_b32 v[54:55], v6 offset0:128 offset1:129
    ds_read2_b32 v[56:57], v6 offset0:192 offset1:193
    v_add_u32 v6, 1024, v6
    ds_read2_b32 v[58:59], v6 offset0:0 offset1:1
    ds_read_u16 v60, v7
    v_lshlrev_b32 v5, 3, v0
    """)
    kvdma(20 - K2_EARLY)
    srd(o, 48, 6, 2048*1024)
    o(f"""
    v_lshlrev_b32 v9, 10, v0
    s_lshl_b32 s36, s3, 19
    s_add_u32 s36, s36, s32
    """)
    G1 = OPT.get("G1", 5)
    o("v_mov_b32 v106, v9")
    o("s_lshl_b32 s46, s3, 3")
    o("s_add_u32 s46, s46, s25")
    def gath(a_, b_):
        for i in range(a_, b_):
            o(f"s_add_u32 s47, s46, {i}")
            o("s_and_b32 s47, s47, 31")
            o(f"s_lshl_b32 s{52+i}, s47, 7")
            o("s_lshl_b32 s47, s47, 16")
            o("s_add_u32 s47, s47, s32")
            o(f"buffer_load_dword v{96+i}, v106, s[48:51], s47 offen")
    srd(o, 12, 4, 512*1024)
    gath(0, G1)
    o(f"""
    v_lshlrev_b32 v105, 1, v0
    v_sub_u32 v105, {CHL + L_UT + 4094}, v105
    v_and_b32 v2, 15, v0
    v_lshrrev_b32 v3, 4, v0
    s_sub_u32 s27, 7, s3            ; iH
    v_lshlrev_b32 v4, 2, v3
    v_lshl_add_u32 v4, v2, 4, v4    ; 16a+4g
    v_lshlrev_b32 v9, 1, v4
    v_sub_u32 v9, {CHL + L_UT + 4088}, v9
    v_lshlrev_b32 v4, 11, v4        ; *2048 (out)
    ; A addresses
    v_and_b32 v10, 1, v2
    v_mul_u32_u24 v17, {L_E}, v10
    v_add_u32 v11, v2, v10
    v_lshl_add_u32 v17, v11, 1, v17
    v_lshl_add_u32 v17, v3, 4, v17
    v_add_u32 v17, {CHL}, v17       ; A ch0
    v_add_u32 v18, {L_C1}, v17      ; A ch1
    v_lshlrev_b32 v10, 5, v2
    v_lshlrev_b32 v11, 4, v3
    v_sub_u32 v11, v11, v10
    v_add_u32 v11, {CHL + L_UT + 4064}, v11
    s_lshl_b32 s35, s27, 9
    s_lshl_b32 s36, s3, 9
    v_subrev_u32 v19, s35, v11      ; B H
    v_subrev_u32 v20, s36, v11      ; B L
    v_subrev_u32 v21, s35, v9       ; skip H
    v_subrev_u32 v22, s36, v9       ; skip L
    s_mul_i32 s38, s33, {L_C1}
    s_xor_b32 s39, s34, 1
    s_mul_i32 s39, s39, {L_E}
    s_add_u32 s38, s38, s39
    s_add_u32 s38, s38, {CHL}
    v_add_u32 v5, s38, v5           ; +8t
    v_lshl_add_u32 v6, v0, 4, s38   ; +16t
    v_lshl_add_u32 v7, v0, 5, s38   ; +32t
    v_lshl_add_u32 v8, v0, 2, s38   ; +4t
    s_mul_i32 s39, s33, {L_U1}
    s_add_u32 s39, s39, {CHL + L_UT + 4096}
    v_lshl_add_u32 v10, v0, 3, s39
    s_mov_b32 s40, 0x01000100
    s_mov_b32 s41, 0x03020302
    v_mov_b32 v92, 0
    v_mov_b32 v93, 0
    v_cmp_eq_u32 s[42:43], 7, v0
    s_waitcnt lgkmcnt(0)
    s_cmp_eq_u32 s34, 0
    s_cbranch_scc0 K2_XO
    v_perm_b32 v64, v54, v54, s40
    v_alignbit_b32 v65, v55, v54, 16
    v_perm_b32 v68, v56, v56, s40
    v_mov_b32 v69, v56
    v_perm_b32 v70, v56, v56, s41
    v_perm_b32 v71, v57, v57, s40
    v_perm_b32 v76, v58, v58, s40
    v_mov_b32 v77, v76
    v_mov_b32 v78, v58
    v_perm_b32 v79, v58, v58, s41
    v_mov_b32 v80, v79
    v_mov_b32 v81, v79
    v_perm_b32 v82, v59, v59, s40
    v_mov_b32 v83, v82
    v_mov_b32 v60, 0
    ds_write_b64 v10, v[92:93]
    s_branch K2_XW
    """)
    o.lab("K2_XO")
    o(f"""
    v_alignbit_b32 v50, v51, v50, 16
    v_alignbit_b32 v51, v52, v51, 16
    v_mov_b32 v64, v54
    v_perm_b32 v65, v55, v55, s40
    v_perm_b32 v68, v56, v56, s40
    v_perm_b32 v69, v56, v56, s41
    v_alignbit_b32 v70, v57, v56, 16
    v_perm_b32 v71, v57, v57, s40
    v_perm_b32 v76, v58, v58, s40
    v_mov_b32 v77, v76
    v_perm_b32 v78, v58, v58, s41
    v_mov_b32 v79, v78
    v_mov_b32 v80, v78
    v_alignbit_b32 v81, v59, v58, 16
    v_perm_b32 v82, v59, v59, s40
    v_mov_b32 v83, v82
    v_lshlrev_b32 v60, 16, v60
    v_cndmask_b32 v60, 0, v60, s[42:43]
    """)
    o.lab("K2_XW")
    o(f"""
    ds_write_b64 v5, v[50:51] offset:32
    ds_write_b64 v5, v[64:65] offset:544
    ds_write_b128 v6, v[68:71] offset:1056
    ds_write_b128 v7, v[76:79] offset:2080
    ds_write_b128 v7, v[80:83] offset:2096
    s_mov_b64 exec, 0xff
    ds_write_b32 v8, v60
    s_mov_b64 exec, -1
    """)
    CA = 24
    for i in range(16): o(f"v_mov_b32 v{CA+i}, 0")
    FB = 40
    def creads(st, both):
        b = FB + (st & 1) * 24
        k = st % 8 if st < 8 else 8
        return b
    def issue(buf, k, both):
        if OPT.get("CNOLDS"): return
        b = FB + buf * 24
        o(f"ds_read2_b32 {vr(b,2)}, v17 offset0:{16*k} offset1:{16*k+1}")
        o(f"ds_read2_b32 {vr(b+2,2)}, v17 offset0:{16*k+2} offset1:{16*k+3}")
        o(f"ds_read2_b32 {vr(b+4,2)}, v18 offset0:{16*k} offset1:{16*k+1}")
        o(f"ds_read2_b32 {vr(b+6,2)}, v18 offset0:{16*k+2} offset1:{16*k+3}")
        o(f"ds_read_b128 {vr(b+8,4)}, v19 offset:{64*k}")
        o(f"ds_read_b128 {vr(b+12,4)}, v19 offset:{64*k+L_U1}")
        if both:
            o(f"ds_read_b128 {vr(b+16,4)}, v20 offset:{64*k}")
            o(f"ds_read_b128 {vr(b+20,4)}, v20 offset:{64*k+L_U1}")
    def cloop(lab, both):
        o.lab(lab)
        for k in range(8):
            issue((k + 1) & 1, k + 1, both)
            o(f"s_waitcnt lgkmcnt({8 if both else 6})")
            b = FB + (k & 1) * 24
            if OPT.get("CNOMF"): continue
            o(f"v_mfma_f32_16x16x32_bf16 {vr(CA,4)}, {vr(b,4)}, {vr(b+8,4)}, {vr(CA,4)}")
            o(f"v_mfma_f32_16x16x32_bf16 {vr(CA+4,4)}, {vr(b+4,4)}, {vr(b+12,4)}, {vr(CA+4,4)}")
            if both:
                o(f"v_mfma_f32_16x16x32_bf16 {vr(CA+8,4)}, {vr(b,4)}, {vr(b+16,4)}, {vr(CA+8,4)}")
                o(f"v_mfma_f32_16x16x32_bf16 {vr(CA+12,4)}, {vr(b+4,4)}, {vr(b+20,4)}, {vr(CA+12,4)}")
        for r in (17, 18, 19, 20): o(f"v_add_u32 v{r}, 512, v{r}")
        o("s_add_u32 s37, s37, 1")
    o(f"""
    s_waitcnt vmcnt({G1})
    s_barrier
    """)
    xstamp(o, 0)
    gath(G1, 8)
    for i in range(8):
        o(f"v_subrev_u32 v{107 + (i & 1)}, s{52+i}, v105")
        o(f"s_waitcnt vmcnt({7 - i})")
        o(f"ds_write_b16 v{107 + (i & 1)}, v{96+i}")
        o(f"ds_write_b16_d16_hi v{107 + (i & 1)}, v{96+i} offset:{L_U1}")
    xstamp(o, 1)
    if True:
        o(f"""
        s_cmp_ge_u32 s3, 1
        s_cbranch_scc1 K2_NWU
        s_lshr_b32 s36, s25, 2
        s_lshl_b32 s36, s36, 16
        s_lshr_b32 s45, s24, 2
        s_lshl_b32 s45, s45, 2
        s_and_b32 s44, s25, 3
        s_add_u32 s45, s45, s44
        s_lshl_b32 s45, s45, 7
        s_add_u32 s36, s36, s45
        buffer_load_dword v110, v106, s[12:15], s36 offen
        """)
        o.lab("K2_NWU")

    o(f"""
    s_waitcnt lgkmcnt(0)
    s_barrier
    s_mov_b32 s37, 0
    """)
    xstamp(o, 2)
    if OPT.get("NOCONV"):
        stamp_out(o, 0, wadd=4)
        o("s_endpgm")
    if OPT.get("CPRIO"): o(f"s_setprio {OPT['CPRIO']}")
    issue(0, 0, True)
    def fin(blk):
        ad = 21 + blk
        o(f"""
        ds_read_b64 v[8:9], v{ad}
        ds_read_b64 v[10:11], v{ad} offset:{L_U1}
        v_lshlrev_b32 v6, 16, v16
        v_and_b32 v7, 0xffff0000, v16
        s_lshl_b32 s33, s{27 if blk == 0 else 3}, 19
        s_add_u32 s33, s33, s32
        s_add_u32 s33, s33, 1024
        s_add_u32 s35, s33, 4096
        s_waitcnt lgkmcnt(0)
        """)
        for r in range(4):
            y0, y1 = CA + 8 * blk + r, CA + 8 * blk + 4 + r
            for c, y, dd in ((0, y0, 6), (1, y1, 7)):
                src = 8 + 2 * c + (1 - (r >> 1))
                if r & 1: o(f"v_lshlrev_b32 v{12+c}, 16, v{src}")
                else:     o(f"v_and_b32 v{12+c}, 0xffff0000, v{src}")
                o(f"v_fma_f32 v{y}, v{12+c}, v{dd}, v{y}")
            o(f"v_cvt_pk_bf16_f32 v{88+4*blk+r}, v{y0}, v{y1}")
            o(f"buffer_store_dword v{88+4*blk+r}, v4, s[16:19], s{(33, 35)[r >> 1]} offen offset:{2048*(r&1)}")
    cloop("K2_CA", True)
    o("s_cmp_le_u32 s37, s3")
    o("s_cbranch_scc1 K2_CA")
    fin(1)
    cloop("K2_CB", False)
    o("s_cmp_le_u32 s37, s27")
    o("s_cbranch_scc1 K2_CB")
    xstamp(o, 3)
    fin(0)
    stamp_out(o, 0, wadd=4)
    o.lab("K_END")
    o("s_endpgm")


K2_EARLY = 6
def main(out):
    hdr = open(f"cdna_kernels/{NAME}.s.ref").read().split("; @launch")[0]
    o = A()
    o.raw(hdr.rstrip())
    o.raw(f"; @launch grid=(256,1,1) block=(512,1,1) lds={LDS_ALL}")
    o.raw('.amdgcn_target "amdgcn-amd-amdhsa--gfx950"\n.text')
    kstart(o, NAME + "_kernel")
    rstamp(o, 0); stamp(o, 1)
    o("s_cmp_ge_u32 s2, 256")
    o("s_cbranch_scc1 K_END")
    phase1(o)
    phase2(o)
    o.raw('.section .rodata,"a"')
    o.raw(kdesc(NAME + "_kernel", 256))
    txt = o.text()
    txt = "\n".join((l + " sc1") if l.strip().startswith("buffer_store") and "s80" not in l and "s[16:19]" not in l else l for l in txt.split("\n"))
    open(out, "w").write(txt)

if __name__ == "__main__":
    if "--stamp" in sys.argv:
        STAMP = True; sys.argv.remove("--stamp")
    for a_ in list(sys.argv):
        if a_.startswith("-D"):
            kk, _, vv = a_[2:].partition("="); OPT[kk] = int(vv or 1); sys.argv.remove(a_)
    main(sys.argv[1] if len(sys.argv) > 1 else f"cdna_kernels/{NAME}.s")
```

```python
import sys, math, struct

NAME = "concat_heads__softmax_full_mha__ssm_conv_s4__prompt"

QF_OFF  = 0
KV_OFF  = 2 << 20
OF_OFF  = 6 << 20
WOF_OFF = 8 << 20
UT_OFF  = 9 << 20
GC_OFF  = 11 << 20
GC_SZ   = 1536
FL2_OFF = 12 << 20
FL1_OFF = (12 << 20) + (1 << 17)
EP_OFF  = 13 << 20
SPIN_MAX = 400000
ST1 = ""
WS_USED = 32 << 20

def f2u(x): return struct.unpack('<I', struct.pack('<f', x))[0]
LOG2E = 1.4426950408889634

class A:
    def __init__(s): s.l = []
    def __call__(s, t):
        for x in t.split("\n"):
            x = x.strip()
            if x: s.l.append("    " + x)
    def lab(s, n): s.l.append(n + ":")
    def raw(s, t): s.l.append(t)
    def text(s): return "\n".join(s.l) + "\n"

def vr(a, n): return f"v[{a}:{a+n-1}]" if n > 1 else f"v{a}"
def sr(a, n): return f"s[{a}:{a+n-1}]" if n > 1 else f"s{a}"

def srd(o, d, b, size, add=0):
    if add:
        o(f"s_add_u32 s{d}, s{b}, {add:#x}")
        o(f"s_addc_u32 s{d+1}, s{b+1}, 0")
    else:
        o(f"s_mov_b32 s{d}, s{b}")
        o(f"s_mov_b32 s{d+1}, s{b+1}")
    o(f"s_mov_b32 s{d+2}, {size:#x}")
    o(f"s_mov_b32 s{d+3}, 0x00020000")

class Sched:
    def __init__(s, pace=14): s.ops = []; s.pace = pace
    def add(s, text, defs, uses, lat=8, cost=4, trans=False):
        s.ops.append(dict(t=text, d=set(defs), u=set(uses), lat=lat, cost=cost, tr=trans))
    def emit(s, o, hook=None):
        ops = s.ops; n = len(ops)
        pred = [[] for _ in ops]
        lastw, readers = {}, {}
        for i, op in enumerate(ops):
            for r in op['u']:
                if r in lastw: pred[i].append((lastw[r], ops[lastw[r]]['lat']))
            for r in op['d']:
                if r in lastw: pred[i].append((lastw[r], 4))
                for j in readers.get(r, []):
                    if j != i: pred[i].append((j, 8))
            for r in op['u']: readers.setdefault(r, []).append(i)
            for r in op['d']: lastw[r] = i; readers[r] = []
        succ = [[] for _ in ops]
        for i in range(n):
            for j, l in pred[i]: succ[j].append((i, l))
        cp = [0] * n
        for i in reversed(range(n)):
            cp[i] = ops[i]['cost'] + max([l + cp[k] for k, l in succ[i]], default=0)
        done, when, t, last, lastwr = set(), {}, 0, None, -99
        while len(done) < n:
            cand = [i for i in range(n) if i not in done and all(j in done for j, _ in pred[i])]
            rdy = {i: max([when[j] + l for j, l in pred[i]], default=0) for i in cand}
            now = [i for i in cand if rdy[i] <= t]
            wr = [k for k in now if ops[k]['t'].startswith('ds_write')]
            cv = [k for k in now if ops[k]['t'].startswith('v_cvt_pk') and any(ops[z]['t'].startswith('ds_write') for z, _ in succ[k])]
            oth = [k for k in now if k not in wr]
            if wr and (t - lastwr >= s.pace or not oth): i = wr[0]; lastwr = t
            elif cv and len(wr) < 2: i = cv[0]
            elif oth: i = max(oth, key=lambda k: cp[k])
            else: i = min(cand, key=lambda k: (rdy[k], -cp[k]))
            if last is not None and ops[last]['tr'] and not ops[i]['tr'] and (ops[last]['d'] & ops[i]['u']): o("s_nop 0")
            t = max(t, rdy[i]); when[i] = t; t += ops[i]['cost']; done.add(i); last = i
            o(ops[i]['t'])
            if hook and t >= hook[0] and not ops[i]['tr']: hook[1](); hook = None
        return t

STAMP = False
FINE = False
FINE2 = False
FUSE23 = False
OPT = {}
STFLAG = 'sc1'
ST_OFF = 16 << 20
def stamp(o, i):
    if OPT.get("DBG"): o(f"s_memrealtime s[{64+2*i}:{65+2*i}]"); return
    if STAMP: o(f"s_memtime s[{64+2*i}:{65+2*i}]")
def xstamp(o, i):
    if STAMP: o(f"s_memtime s[{84+2*i}:{85+2*i}]")
def rstamp(o, i):
    if STAMP: o(f"s_memrealtime s[{64+2*i}:{65+2*i}]")
def stamp_out(o, kid, wave_sgpr="s3", wadd=0):
    if OPT.get("DBG"):
        lab = f"DBG_{kid}_{len(o.l)}"
        o("s_load_dwordx2 s[82:83], s[0:1], 104")
        o("s_waitcnt vmcnt(0)")
        o("s_memrealtime s[78:79]")
        o("s_and_b32 s80, s2, 7")
        o(f"s_add_u32 s80, s80, {wave_sgpr}")
        o("s_waitcnt lgkmcnt(0)")
        o("s_cmp_lg_u32 s80, 0")
        o(f"s_cbranch_scc1 {lab}")
        o(f"s_add_u32 s82, s82, {(2-kid)*512}")
        o("s_addc_u32 s83, s83, 0")
        o("s_mov_b64 exec, 1")
        o("s_not_b32 s66, s66")
        o("v_mov_b32 v2, 0")
        sl = {0: [(66, 0), (78, 1), (68, 6), (70, 7)], 1: [(66, 2), (78, 3), (68, 8), (74, 9)], 2: [(66, 4), (78, 5), (68, 10), (70, 11)]}[kid]
        if wadd: sl = [(78, 12), (70, 13)]
        for q, (sg, slot) in enumerate(sl):
            o(f"v_mov_b32 v{4+q}, s{sg}")
            o(f"global_atomic_umax v2, v{4+q}, s[82:83] offset:{4*slot}")
        o.lab(lab)
        return
    if not STAMP: return
    o("s_memrealtime s[78:79]")
    o("s_waitcnt lgkmcnt(0)")
    o("s_mov_b64 exec, 1")
    o(f"s_lshl_b32 s80, s2, 4")
    o(f"s_add_u32 s80, s80, {wave_sgpr}")
    o(f"s_add_u32 s80, s80, {kid*8192 + wadd}")
    o(f"s_lshl_b32 s80, s80, 7")
    o(f"s_add_u32 s80, s80, {ST_OFF:#x}")
    o("s_waitcnt vmcnt(0)")
    o("s_memtime s[76:77]")
    o("s_waitcnt lgkmcnt(0)")
    for i in range(16): o(f"v_mov_b32 v{4+i}, s{64+i}")
    for i in range(16): o(f"v_mov_b32 v{20+i}, s{84+i}")
    o("v_mov_b32 v2, 0")
    for q in range(8): o(f"buffer_store_dwordx4 v[{4+4*q}:{7+4*q}], v2, s[20:23], s80 offen offset:{16*q}")

def kstart(o, name):
    o.raw(f".globl {name}\n.p2align 8\n.type {name},@function")
    o.lab(name)

def kdesc(name, nv, ns=102):
    return f""".p2align 6
.amdhsa_kernel {name}
  .amdhsa_next_free_vgpr {nv}
  .amdhsa_next_free_sgpr {ns}
  .amdhsa_accum_offset {(nv+3)//4*4}
  .amdhsa_group_segment_fixed_size 0
  .amdhsa_kernarg_size 120
  .amdhsa_user_sgpr_count 2
  .amdhsa_user_sgpr_kernarg_segment_ptr 1
  .amdhsa_system_sgpr_workgroup_id_x 1
.end_amdhsa_kernel
"""


STG = 32768
CHL = 131072
L_E, L_C1, L_UT, L_U1 = 4160, 8320, 16640, 4608
L_GC = 26624
L_CNT = L_GC + 3072
LDS_ALL = CHL + L_CNT + 64
KB = 16384
KS = 15504

def poll(o, name, vaddr, soff, nonce, tmp, first=None):
    o("s_mov_b32 s39, 0")
    if first:
        o(f"buffer_load_dwordx2 {vr(tmp,2)}, v{vaddr}, s[20:23], s{soff} offen sc1")
        o("s_waitcnt vmcnt(0)")
        first()
        o(f"s_branch {name}_C")
    o.lab(name)
    o(f"""
    s_sleep {OPT.get('PSL', 2)}
    buffer_load_dwordx2 {vr(tmp,2)}, v{vaddr}, s[20:23], s{soff} offen sc1
    s_waitcnt vmcnt(0)
    """)
    o.lab(name + "_C")
    o(f"""
    v_cmp_ne_u64 vcc, {vr(tmp,2)}, {vr(nonce,2)}
    s_add_u32 s39, s39, 1
    s_cmp_ge_u32 s39, {SPIN_MAX}
    s_cbranch_scc1 {name}_D
    s_cbranch_vccnz {name}
    """)
    o.lab(name + "_D")

def sw_arrive(o, off, va, vt, base=CHL + L_CNT, restore="-1"):
    o(f"""
    v_mov_b32 v{va}, {base}
    v_mov_b32 v{vt}, 1
    s_mov_b64 exec, 1
    s_waitcnt lgkmcnt(0)
    ds_add_u32 v{va}, v{vt} offset:{off}
    s_mov_b64 exec, {restore}
    """)
def sw_wait(o, name, off, va, vt, cnt=4):
    o("s_mov_b64 exec, 1")
    o("s_mov_b32 s39, 0")
    o.lab(name)
    o(f"""
    ds_read_b32 v{vt}, v{va} offset:{off}
    s_add_u32 s39, s39, 1
    s_waitcnt lgkmcnt(0)
    v_cmp_gt_u32 vcc, {cnt}, v{vt}
    s_cmp_ge_u32 s39, {SPIN_MAX*8}
    s_cbranch_scc1 {name}_D
    s_cbranch_vccz {name}_D
    s_sleep {1 if name.startswith("CV") else 0}
    s_branch {name}
    """)
    o.lab(name + "_D")
    o("s_mov_b64 exec, -1")
def swsync(o, name, off, va, vt, cnt=4, base=CHL + L_CNT):
    sw_arrive(o, off, va, vt, base, "1")
    sw_wait(o, name, off, va, vt, cnt)

def phase1(o):
    o(f"""
    s_load_dwordx4 s[4:7], s[0:1], 0
    v_readfirstlane_b32 s3, v0
    v_and_b32 v0, 63, v0
    s_and_b32 s24, s2, 7
    s_lshr_b32 s25, s2, 3
    s_lshr_b32 s3, s3, 6
    s_and_b32 s26, s2, 6
    s_lshl_b32 s26, s26, 2
    s_and_b32 s31, s25, 7
    s_add_u32 s26, s26, s31         ; mt (0..31)
    s_lshr_b32 s30, s2, 6
    s_and_b32 s27, s2, 1
    s_lshl_b32 s27, s27, 2
    s_add_u32 s27, s27, s30         ; hg (0..7)
    s_lshl_b32 s30, s30, 1
    s_add_u32 s31, s31, s30
    s_lshl_b32 s53, s3, 12
    s_lshl_b32 s50, s26, 16
    s_lshl_b32 s51, s3, 15
    s_add_u32 s50, s50, s51
    s_sub_u32 s48, s3, 2
    s_lshr_b32 s49, s48, 1
    s_lshl_b32 s49, s49, 10
    s_and_b32 s48, s48, 1
    s_mul_i32 s48, s48, {32*3072}
    s_add_u32 s48, s48, s49
    s_lshl_b32 s49, s27, 7
    s_add_u32 s48, s48, s49
    s_cmp_lt_u32 s3, 2
    s_cselect_b32 s50, s50, s48
    s_cselect_b32 s55, 1, 3
    s_mul_i32 s55, s55, 1024
    s_mul_i32 s51, s55, 8
    s_mul_i32 s52, s55, 64
    s_mul_i32 s14, s55, 512
    s_cselect_b32 s52, 128, s52
    s_cselect_b32 s14, {2048*1024}, s14
    s_cselect_b32 s48, 3, 1
    s_cselect_b32 s49, 0, 1
    v_lshrrev_b32 v3, 4, v0
    v_lshrrev_b32 v10, 3, v0
    v_and_b32 v76, s48, v3
    v_lshlrev_b32 v76, s49, v76
    v_and_b32 v11, 7, v0
    v_xor_b32 v76, v76, v11
    v_mul_u32_u24 v77, s55, v10
    v_lshl_add_u32 v76, v76, 4, v77
    v_xor_b32 v77, 64, v76
    s_mov_b32 s15, 0x00020000
    s_waitcnt lgkmcnt(0)
    s_cselect_b32 s12, s4, s6
    s_cselect_b32 s13, s5, s7
    """)
    ACC, FR, FR1 = 12, 36, 180
    def dma_l(n):
        L = []
        for q in range(4):
            if q == 0:
                t = f"s_add_u32 m0, s53, {(n & 3) * STG}\ns_add_u32 s54, s31, {n}\ns_and_b32 s54, s54, 7\ns_mul_i32 s54, s54, s52\ns_add_u32 s54, s54, s50\n"
            else:
                t = "s_add_u32 m0, m0, 1024\ns_add_u32 s54, s54, s51\n"
            L.append(t + f"buffer_load_dwordx4 v{76 + (q & 1)}, s[12:15], s54 offen lds")
        return L
    def dma(n):
        for t in dma_l(n): o(t)
    PRE, LOOK = OPT.get("K1PRE", 2), OPT.get("K1LOOK", 3)
    P = 80
    if OPT.get("ST0"): xstamp(o, 5)
    dma(0)
    o(f"""
    s_load_dwordx2 s[28:29], s[0:1], 112
    s_load_dwordx16 s[32:47], s[0:1], 32
    v_and_b32 v2, 15, v0
    s_and_b32 s30, s3, 1            ; tg
    s_lshr_b32 s48, s3, 1           ; hq
    s_barrier
    s_cmp_lt_u32 s3, 4
    s_cbranch_scc1 P1_NP
    s_getpc_b64 s[8:9]
    """)
    o.lab("P1_PC")
    o(f"""
    s_and_b32 s55, s3, 3
    s_lshl_b32 s55, s55, 12
    v_lshl_add_u32 v78, v0, 6, s55
    v_min_u32 v78, K_END-P1_PC, v78
    global_load_dword v87, v78, s[8:9]
    s_lshl_b32 s56, s24, 5
    s_add_u32 s56, s56, s25
    s_lshl_b32 s56, s56, 1
    s_and_b32 s55, s48, 1
    s_add_u32 s56, s56, s55
    s_lshl_b32 s58, s56, 8
    s_lshl_b32 s59, s30, 7
    s_add_u32 s58, s58, s59
    v_lshl_add_u32 v10, v0, 1, s58
    s_lshl_b32 s59, s56, 1
    v_mov_b32 v11, s59
    s_waitcnt lgkmcnt(0)
    global_load_ushort v{P+6}, v11, s[44:45]
    global_load_ushort v{P}, v10, s[32:33]
    global_load_ushort v{P+1}, v10, s[34:35]
    global_load_ushort v{P+2}, v10, s[36:37]
    global_load_ushort v{P+3}, v10, s[38:39]
    global_load_ushort v{P+4}, v10, s[40:41]
    global_load_ushort v{P+5}, v10, s[42:43]
    """)
    o.lab("P1_NP")
    for n in range(1, PRE): dma(n)
    if OPT.get("ST0"): xstamp(o, 6)
    o("s_waitcnt lgkmcnt(0)")
    if OPT.get("WSB"):
        o(f"s_add_u32 s28, s28, {OPT['WSB'] << 20:#x}")
        o("s_addc_u32 s29, s29, 0")
    srd(o, 20, 28, WS_USED)
    o(f"""
    s_add_u32 s8, s28, {EP_OFF:#x}
    s_addc_u32 s9, s29, 0
    s_load_dwordx2 s[100:101], s[8:9], 0
    v_lshlrev_b32 v1, 4, v0
    v_lshrrev_b32 v78, 1, v2
    v_xor_b32 v78, v78, v3
    v_lshlrev_b32 v78, 4, v78
    v_lshl_add_u32 v4, v2, 7, v78
    s_lshl_b32 s49, s30, 12
    v_add_u32 v4, s49, v4
    v_xor_b32 v5, 64, v4
    v_add_u32 v6, {2*STG}, v4
    v_add_u32 v7, {2*STG}, v5
    v_bfe_u32 v78, v0, 2, 2
    v_lshl_add_u32 v78, v3, 3, v78
    v_lshlrev_b32 v78, 7, v78
    v_bfe_u32 v79, v0, 3, 2
    v_xor_b32 v79, s48, v79
    v_lshl_add_u32 v78, v79, 5, v78
    v_and_b32 v79, 3, v0
    v_lshl_add_u32 v8, v79, 3, v78
    v_add_u32 v8, 8192, v8
    v_add_u32 v9, {2*STG}, v8
    """)
    o.lab("P1_NW")
    if OPT.get("PT"):
        o(f"""
        s_cmp_lg_u32 s3, {OPT.get("PTW", 3)}
        s_cbranch_scc1 P1_NT
        s_load_dwordx4 s[60:63], s[0:1], 16
        s_load_dwordx2 s[10:11], s[0:1], 96
        v_lshlrev_b32 v78, 21, v0
        v_add_u32 v78, 0x1fff80, v78
        s_mov_b64 exec, 0x7f
        buffer_load_dword v87, v78, s[20:23], 0 offen
        v_lshlrev_b32 v78, 21, v0
        s_waitcnt lgkmcnt(0)
        s_mov_b64 exec, 3
        global_load_dword v87, v78, s[10:11]
        s_mov_b64 exec, 1
        global_load_dword v87, v78, s[60:61]
        global_load_dword v87, v78, s[62:63]
        global_load_dword v87, v78, s[46:47]
        s_mov_b64 exec, -1
        """)
        o.lab("P1_NT")
    for i in range(24): o(f"v_mov_b32 v{ACC+i}, 0")
    def reads_l(n):
        xa = (4, 5) if (n & 3) < 2 else (6, 7)
        wa = 8 if (n & 3) < 2 else 9
        so = (n & 1) * STG
        L = []
        for ks in range(2):
            b = (FR1 if n & 1 else FR) + 20 * ks
            L.append(f"ds_read_b128 {vr(b,4)}, v{xa[ks]} offset:{so}")
            L.append(f"ds_read_b128 {vr(b+4,4)}, v{xa[ks]} offset:{so + 2048}")
            for p in range(3):
                L.append(f"ds_read_b64_tr_b16 {vr(b+8+4*p,2)}, v{wa} offset:{so + p*8192 + ks*4096}")
                L.append(f"ds_read_b64_tr_b16 {vr(b+10+4*p,2)}, v{wa} offset:{so + p*8192 + ks*4096 + 512}")
        return L
    o(f"""
    s_cmp_lt_u32 s3, 4
    s_cbranch_scc1 P1_W0
    s_waitcnt vmcnt({4*(PRE-1) + 8}) lgkmcnt(0)
    s_branch P1_W1
    """)
    o.lab("P1_W0")
    o(f"s_waitcnt vmcnt({4*(PRE-1)}) lgkmcnt(0)")
    o.lab("P1_W1")
    o("s_barrier")
    o("s_add_u32 s100, s100, 0x7f4a7c15")
    o("s_addc_u32 s101, s101, 0x9e3779b9")
    stamp(o, 2)
    for t in reads_l(0): o(t)
    for n in range(PRE, LOOK): dma(n)
    P = 80
    for n in range(8):
        if n < 7:
            o(f"s_waitcnt vmcnt({4*(min(n+LOOK-1,7)-(n+1))}) lgkmcnt(0)")
            o("s_barrier")
        else:
            o("s_waitcnt lgkmcnt(0)")
        R = reads_l(n + 1) if n < 7 else []
        Dm = dma_l(n + LOOK) if n + LOOK <= 7 else []
        M = []
        for ks in range(2):
            b = (FR1 if n & 1 else FR) + 20 * ks
            for tt in range(2):
                M.append(f"v_mfma_f32_16x16x32_bf16 {vr(ACC+8+4*tt,4)}, {vr(b+12,4)}, {vr(b+4*tt,4)}, {vr(ACC+8+4*tt,4)}")
            for tt in range(2):
                M.append(f"v_mfma_f32_16x16x32_bf16 {vr(ACC+16+4*tt,4)}, {vr(b+4*tt,4)}, {vr(b+16,4)}, {vr(ACC+16+4*tt,4)}")
            for tt in range(2):
                M.append(f"v_mfma_f32_16x16x32_bf16 {vr(ACC+4*tt,4)}, {vr(b+8,4)}, {vr(b+4*tt,4)}, {vr(ACC+4*tt,4)}")
        for i, m in enumerate(M):
            o(m)
            if i < 8:
                for t in R[2*i:2*i+2]: o(t)
            elif Dm: o(Dm[i - 8])
    stamp(o, 3)
    o(f"""
    s_lshl_b32 s49, s27, 2
    s_add_u32 s49, s49, s48         ; head
    s_lshl_b32 s52, s49, 12
    s_lshl_b32 s49, s49, 6
    s_lshl_b32 s50, s26, 1
    s_add_u32 s50, s50, s30
    s_add_u32 s49, s49, s50
    s_lshl_b32 s53, s50, 3
    s_add_u32 s52, s52, s53
    s_add_u32 s52, s52, {FL1_OFF:#x}
    s_lshl_b32 s50, s49, 11
    s_lshl_b32 s49, s49, 10
    s_add_u32 s50, s50, {KV_OFF:#x}
    s_mov_b32 s51, {f2u(0.25*LOG2E):#x}
    """)
    def cv(a):
        b = ACC + 4 * a
        o(f"v_cvt_pk_bf16_f32 v{FR+2*a}, v{b}, v{b+1}")
        o(f"v_cvt_pk_bf16_f32 v{FR+1+2*a}, v{b+2}, v{b+3}")
    def sw(a):
        o(f"v_permlane16_swap_b32 v{FR+4*a}, v{FR+4*a+2}")
        o(f"v_permlane16_swap_b32 v{FR+4*a+1}, v{FR+4*a+3}")
    cv(2); cv(3); cv(4); cv(5)
    sw(1)
    for i in range(4): o(f"v_mul_f32 v{ACC+i}, s51, v{ACC+i}")
    o(f"buffer_store_dwordx4 {vr(FR+4,4)}, v1, s[20:23], s50 offen")
    sw(2)
    for i in range(4, 8): o(f"v_mul_f32 v{ACC+i}, s51, v{ACC+i}")
    o(f"buffer_store_dwordx4 {vr(FR+8,4)}, v1, s[20:23], s50 offen offset:1024")
    cv(0); cv(1)
    o("s_nop 1")
    sw(0)
    o("s_nop 1")
    o(f"""
    buffer_store_dwordx4 {vr(FR,4)}, v1, s[20:23], s49 offen
    s_load_dwordx4 s[4:7], s[0:1], 16
    s_load_dwordx4 s[8:11], s[0:1], 88
    v_lshlrev_b32 v4, 9, v0
    v_mov_b32 v6, s100
    v_mov_b32 v7, s101
    s_lshl_b32 s26, s24, 2
    s_and_b32 s27, s25, 3
    s_add_u32 s26, s26, s27
    s_lshr_b32 s27, s25, 2          ; qb
    """)

def flag1(o):
    o(f"""
    s_mov_b64 exec, 0xff
    s_waitcnt vmcnt(0)
    buffer_store_dwordx2 v[6:7], v4, s[20:23], s52 offen
    s_mov_b64 exec, -1
    """)
    stamp(o, 4)

def kgen(o):
    P, T, GA, WA, RA = 80, 88, 168, 78, 79
    o(f"""
    s_and_b32 s58, s3, 3
    s_mul_i32 s58, s58, {KS}
    s_add_u32 s58, s58, {KB}
    v_lshl_add_u32 v{WA}, v0, 2, s58
    v_mul_u32_u24 v{RA}, 272, v2
    v_lshl_add_u32 v{RA}, v3, 4, v{RA}
    v_add_u32 v{RA}, s58, v{RA}
    s_mul_i32 s58, s55, {L_C1}
    s_add_u32 s58, s58, {CHL}
    v_add_u32 v{T}, s58, v1
    """)
    for i in range(12): o(f"v_mov_b32 v{GA+i}, 0")
    sc = Sched()
    pairs = [r for r in range(36, 76, 2)] + [r for r in range(90, 168, 2)] + [r for r in range(180, 236, 2)]
    tpool = list(range(236, 256)); tix = [0]
    def newp(): return pairs.pop(0)
    def tmp():
        t = tpool[tix[0] % len(tpool)]; tix[0] += 1; return t
    def op(text, d, u, **k): sc.add(text, d, u, **k)
    for r in range(P, P + 7): op(f"v_lshlrev_b32 v{r}, 16, v{r}", [r], [r])
    D = P + 6
    op(f"v_mul_f32 v{D}, {f2u(LOG2E):#x}, v{D}", [D], [D])
    op(f"v_exp_f32 v{D}, v{D}", [D], [D], lat=16, cost=8, trans=True)
    op(f"v_cvt_pk_bf16_f32 v{D}, v{D}, v{D}", [D], [D])
    op(f"v_lshlrev_b32 v{D}, 16, v{D}", [D], [D])
    for k in range(4): op(f"v_mul_f32 v{P+k}, v{D}, v{P+k}", [P+k], [D, P+k])
    op(f"v_mul_f32 v{P}, {f2u(LOG2E):#x}, v{P}", [P], [P])
    op(f"v_mul_f32 v{P+1}, {f2u(1/(2*math.pi)):#x}, v{P+1}", [P+1], [P+1])
    C = newp()
    op(f"v_mul_f32 v{C}, v{P+4}, v{P+2}", [C], [P+4, P+2])
    op(f"v_mul_f32 v{C+1}, v{P+4}, v{P+3}", [C+1], [P+4, P+3])
    op(f"v_fma_f32 v{C}, -v{P+5}, v{P+3}, v{C}", [C], [P+5, P+3, C])
    op(f"v_fma_f32 v{C+1}, v{P+5}, v{P+2}, v{C+1}", [C+1], [P+5, P+2, C+1])
    def anchor(t):
        d = newp(); a_, b_, c_, e_ = tmp(), tmp(), tmp(), tmp()
        op(f"v_mul_f32 v{a_}, {f2u(float(t)):#x}, v{P}", [a_], [P])
        op(f"v_mul_f32 v{b_}, {f2u(float(t)):#x}, v{P+1}", [b_], [P+1])
        op(f"v_exp_f32 v{a_}, v{a_}", [a_], [a_], lat=16, cost=8, trans=True)
        op(f"v_fract_f32 v{b_}, v{b_}", [b_], [b_])
        op(f"v_cos_f32 v{c_}, v{b_}", [c_], [b_], lat=16, cost=8, trans=True)
        op(f"v_sin_f32 v{e_}, v{b_}", [e_], [b_], lat=16, cost=8, trans=True)
        op(f"v_mul_f32 v{d}, v{a_}, v{c_}", [d], [a_, c_])
        op(f"v_mul_f32 v{d+1}, v{a_}, v{e_}", [d+1], [a_, e_])
        return d
    def cmul(x, w):
        d = newp()
        op(f"v_pk_mul_f32 {vr(d,2)}, {vr(x,2)}, {vr(w,2)} op_sel:[0,0] op_sel_hi:[1,0]", [d, d+1], [x, x+1, w], lat=12)
        op(f"v_pk_fma_f32 {vr(d,2)}, {vr(x,2)}, {vr(w,2)}, {vr(d,2)} op_sel:[1,1,0] op_sel_hi:[0,1,1] neg_lo:[1,0,0]", [d, d+1], [x, x+1, w+1, d, d+1], lat=12)
        return d
    def put(e, x, neg=False):
        t = tmp()
        op(f"v_cvt_pk_bf16_f32 v{t}, v{x}, {'-' if neg else ''}v{x+1}", [t], [x, x+1])
        if not OPT.get("KNOW"): op(f"ds_write_b32 v{WA}, v{t} offset:{e*272}", [], [t])
    Z8, Z1, Z128 = anchor(8), anchor(1), anchor(128)
    t_ = tmp()
    op(f"v_mov_b32 v{t_}, 0x3f80", [t_], [])
    op(f"ds_write_b32 v{WA}, v{t_}", [], [t_])
    e = {1: Z8}
    e[2] = cmul(e[1], e[1]); e[3] = cmul(e[2], e[1]); e[4] = cmul(e[2], e[2])
    for j in (5, 6, 7): e[j] = cmul(e[4], e[j-4])
    e[8] = cmul(e[4], e[4])
    for j in range(9, 16): e[j] = cmul(e[8], e[j-8])
    for j in range(1, 16): put(j, e[j], True)
    x = {0: C}
    x[1] = cmul(C, Z1); Z2 = cmul(Z1, Z1); x[2] = cmul(x[0], Z2); x[3] = cmul(x[1], Z2); Z4 = cmul(Z2, Z2)
    for r in range(4, 8): x[r] = cmul(x[r-4], Z4)
    y = {r: cmul(x[r], Z128) for r in range(8)}
    Z256 = cmul(Z128, Z128)
    pp = {r: cmul(x[2*r], Z256) for r in range(4)}
    qq = {r: cmul(y[2*r], Z256) for r in range(4)}
    Z512 = cmul(Z256, Z256)
    rr = [cmul(v_, Z512) for v_ in (x[0], x[4], y[0], y[4], pp[0], pp[2], qq[0], qq[2])]
    Z1024 = cmul(Z512, Z512)
    ss = [cmul(v_, Z1024) for v_ in (x[0], y[0], pp[0], qq[0], rr[0], rr[2], rr[4], rr[6])]
    s2048 = cmul(ss[0], Z1024)
    for r in range(8): put(16 + r, x[r]); put(24 + r, y[r])
    for r in range(4): put(32 + r, pp[r]); put(36 + r, qq[r])
    for r in range(8): put(40 + r, rr[r])
    for r in range(8): put(48 + r, ss[r])
    put(56, s2048)
    sc.emit(o, (OPT.get('FLT', 300), lambda: flag1(o)))
    FB_ = 90
    for t in range(4):
        for s_ in range(4): o(f"ds_read_b128 {vr(FB_+16*t+4*s_,4)}, v{RA} offset:{t*4352 + 64*s_}")
    for t in range(3):
        o(f"s_waitcnt lgkmcnt({8 - 4*t})")
        for s_ in range(4):
            o(f"v_mfma_f32_16x16x32_bf16 {vr(GA+4*t,4)}, {vr(FB_+16+16*t+4*s_,4)}, {vr(FB_+4*s_,4)}, {vr(GA+4*t,4)}")
    o(f"""
    s_cmp_eq_u32 s30, 0
    s_cbranch_scc1 KG_EV
    s_nop 7
    ds_write_b128 v{T}, {vr(GA,4)}
    ds_write_b128 v{T}, {vr(GA+4,4)} offset:1024
    ds_write_b128 v{T}, {vr(GA+8,4)} offset:2048
    """)
    o.lab("KG_EV")

def gsum(o):
    T, GA, X0 = 88, 168, 104
    Y = [120, 122, 124, 126, 128]
    o(f"""
    s_cmp_lg_u32 s34, 0
    s_cbranch_scc1 GS_END
    ds_read_b128 {vr(X0,4)}, v{T}
    ds_read_b128 {vr(X0+4,4)}, v{T} offset:1024
    ds_read_b128 {vr(X0+8,4)}, v{T} offset:2048
    s_mul_i32 s58, s33, 1536
    s_add_u32 s58, s58, {CHL + L_GC}
    v_lshrrev_b32 v{Y[0]}, 1, v3
    v_lshlrev_b32 v{Y[0]}, 8, v{Y[0]}
    v_lshl_add_u32 v{Y[0]}, v2, 4, v{Y[0]}
    v_and_b32 v{Y[0]+1}, 1, v3
    v_lshl_add_u32 v{Y[0]}, v{Y[0]+1}, 3, v{Y[0]}
    v_cmp_gt_u32 s[60:61], 2, v3
    v_lshlrev_b32 v{Y[1]}, 2, v2
    v_lshlrev_b32 v{Y[1]+1}, 3, v2
    v_cndmask_b32 v{Y[1]}, v{Y[1]}, v{Y[1]+1}, s[60:61]
    v_lshl_add_u32 v{Y[1]}, v3, 7, v{Y[1]}
    v_mov_b32 v{Y[1]+1}, 64
    v_cndmask_b32 v{Y[1]+1}, v{Y[1]+1}, 4, s[60:61]
    v_add_u32 v{Y[1]+1}, v{Y[1]}, v{Y[1]+1}
    v_lshlrev_b32 v{Y[2]}, 7, v3
    v_lshl_add_u32 v{Y[2]}, v2, 1, v{Y[2]}
    v_add_u32 v{Y[0]}, s58, v{Y[0]}
    v_add_u32 v{Y[1]}, s58, v{Y[1]}
    v_add_u32 v{Y[1]+1}, s58, v{Y[1]+1}
    v_add_u32 v{Y[2]}, s58, v{Y[2]}
    s_waitcnt lgkmcnt(0)
    """)
    for i in range(12): o(f"v_add_f32 v{GA+i}, v{GA+i}, v{X0+i}")
    g = Y[4]
    for i in range(6): o(f"v_cvt_pk_bf16_f32 v{g+i}, v{GA+2*i}, v{GA+2*i+1}")
    o(f"""
    ds_write_b64 v{Y[0]}, {vr(g,2)}
    ds_write_b32 v{Y[1]}, v{g+2} offset:512
    ds_write_b32 v{Y[1]+1}, v{g+3} offset:512
    ds_write_b16 v{Y[2]}, v{g+4} offset:1024
    ds_write_b16_d16_hi v{Y[2]}, v{g+4} offset:1056
    ds_write_b16 v{Y[2]}, v{g+5} offset:1088
    ds_write_b16_d16_hi v{Y[2]}, v{g+5} offset:1120
    """)
    o.lab("GS_END")

def phase3(o):
    if OPT.get("B4", 6) == 16: o("s_barrier")
    srd(o, 12, 4, 512*1024)
    srd(o, 16, 10, 2048*2048)
    o(f"""
    s_and_b32 s30, s3, 1            ; tt
    s_lshr_b32 s31, s3, 1
    s_lshl_b32 s32, s27, 2
    s_bfe_u32 s33, s26, 0x20002
    s_add_u32 s32, s32, s33         ; tb
    s_lshl_b32 s32, s32, 1
    s_add_u32 s32, s32, s30
    s_lshr_b32 s35, s26, 4
    s_lshl_b32 s35, s35, 2
    s_and_b32 s34, s26, 3
    s_add_u32 s35, s35, s34         ; nb
    s_lshl_b32 s34, s35, 1
    s_add_u32 s34, s34, s31
    s_lshl_b32 s42, s31, 14
    s_lshl_b32 s43, s32, 15
    s_add_u32 s42, s42, s43
    s_add_u32 s42, s42, {OF_OFF:#x}
    s_add_u32 s43, s42, 4096
    s_add_u32 s44, s42, 8192
    s_add_u32 s45, s42, 12288
    v_lshrrev_b32 v2, 3, v0
    v_and_b32 v3, 7, v0
    v_bfe_u32 v4, v0, 4, 1
    v_lshlrev_b32 v4, 2, v4
    v_xor_b32 v3, v3, v4
    v_lshlrev_b32 v3, 4, v3
    v_lshl_add_u32 v2, v2, 10, v3
    s_lshl_b32 s36, s3, 17
    s_lshl_b32 s37, s35, 7
    s_add_u32 s36, s36, s37
    s_lshl_b32 s37, s3, 14
    s_mov_b32 m0, s37
    v_lshrrev_b32 v3, 5, v0
    v_bfe_u32 v4, v0, 2, 2
    v_lshl_add_u32 v3, v3, 2, v4
    v_lshlrev_b32 v3, 7, v3
    v_bfe_u32 v4, v0, 3, 1
    v_xor_b32 v4, s31, v4
    v_lshl_add_u32 v3, v4, 6, v3
    v_bfe_u32 v4, v0, 4, 1
    v_lshl_add_u32 v3, v4, 5, v3
    v_and_b32 v4, 3, v0
    v_lshl_add_u32 v3, v4, 3, v3
    s_lshl_b32 s37, s31, 15
    v_add_u32 v250, s37, v3
    v_xor_b32 v251, 64, v250
    v_mov_b32 v252, s100
    v_mov_b32 v253, s101
    v_lshrrev_b32 v5, 2, v0
    v_lshlrev_b32 v5, 4, v5
    v_and_b32 v8, 3, v0
    v_add_u32 v5, v5, v8
    v_lshlrev_b32 v5, 8, v5
    s_lshl_b32 s38, s27, 13
    s_lshl_b32 s39, s26, 3
    s_add_u32 s38, s38, s39
    s_lshl_b32 s39, s3, 10
    s_add_u32 s38, s38, s39
    s_add_u32 s38, s38, {FL2_OFF:#x}
    """)
    sw_arrive(o, 0, 8, 9, restore="0xff")
    o(f"""
    s_waitcnt vmcnt(0)
    buffer_store_dwordx2 v[252:253], v5, s[20:23], s38 offen
    """)
    xstamp(o, 0)
    sw_wait(o, "P3_S1", 0, 8, 9)
    for i in range(16):
        o("buffer_load_dwordx4 v2, s[12:15], s36 offen lds")
        if i < 15:
            o("s_add_u32 m0, m0, 1024")
            o("s_add_u32 s36, s36, 8192")
    AC, FA, FBb = 4, 36, 164
    xstamp(o, 1)
    o(f"""
    s_lshl_b32 s38, s27, 5
    s_add_u32 s38, s38, s26
    s_lshl_b32 s38, s38, 8
    s_lshl_b32 s39, s31, 7
    s_add_u32 s38, s38, s39
    s_add_u32 s38, s38, {FL2_OFF:#x}
    v_lshlrev_b32 v5, 3, v0
    s_mov_b64 exec, 0xffff
    """)
    poll(o, "P3_POLL", 5, 38, 252, 232, first=lambda: sw_arrive(o, 4, 8, 9, restore="0xffff"))
    o("s_mov_b64 exec, -1")
    xstamp(o, 2)
    for h in range(16):
        o(f"buffer_load_dwordx4 {vr(FBb+4*h,4)}, v1, s[20:23], s{42 + (h >> 2)} offen offset:{1024*(h&3)} sc1")
    sw_wait(o, "P3_S2", 4, 8, 9)
    for h in range(16):
        for k in range(2):
            o(f"ds_read_b64_tr_b16 {vr(FA+8*h+4*k,2)}, v{250+k} offset:{2048*h}")
            o(f"ds_read_b64_tr_b16 {vr(FA+8*h+4*k+2,2)}, v{250+k} offset:{2048*h+1024}")
    XB = 65536
    o(f"""
    s_xor_b32 s36, s3, 2
    s_lshl_b32 s36, s36, 12
    s_add_u32 s36, s36, {XB}
    v_add_u32 v240, s36, v1
    s_lshl_b32 s36, s3, 12
    s_add_u32 s36, s36, {XB}
    v_add_u32 v241, s36, v1
    v_and_b32 v2, 31, v0
    v_lshlrev_b32 v2, 11, v2
    v_lshrrev_b32 v3, 5, v0
    v_lshl_add_u32 v2, v3, 4, v2
    s_lshl_b32 s36, s32, 16
    s_lshl_b32 s37, s34, 6
    s_add_u32 s36, s36, s37
    s_lshl_b32 s37, s30, 2
    s_add_u32 s37, s37, {CHL + L_CNT + 8}
    s_waitcnt lgkmcnt(0)
    """)
    for h in range(16):
        o(f"s_waitcnt vmcnt({15-h})")
        if h == 0: xstamp(o, 3)
        for k in (1, 0):
            c = vr(AC + 16 * k, 16)
            o(f"v_mfma_f32_32x32x16_bf16 {c}, {vr(FA+8*h+4*k,4)}, {vr(FBb+4*h,4)}, {c if h else 0}")
    xstamp(o, 4)
    o("s_nop 10")
    for q in range(4):
        o(f"ds_write_b128 v240, {vr(AC+16+4*q,4)} offset:{q*1024}")
    swsync(o, "P3_S3", 0, 242, 243, cnt=2, base="s37")
    for q in range(4):
        o(f"ds_read_b128 {vr(FA+4*q,4)}, v241 offset:{q*1024}")
    for q in range(4):
        o(f"s_waitcnt lgkmcnt({3-q})")
        for i in range(4): o(f"v_add_f32 v{AC+4*q+i}, v{AC+4*q+i}, v{FA+4*q+i}")
        for i in range(2): o(f"v_cvt_pk_bf16_f32 v{24+2*q+i}, v{AC+4*q+2*i}, v{AC+4*q+2*i+1}")
    o(f"""
    s_nop 1
    v_permlane32_swap_b32 v24, v26
    v_permlane32_swap_b32 v25, v27
    v_permlane32_swap_b32 v28, v30
    v_permlane32_swap_b32 v29, v31
    s_nop 1
    buffer_store_dwordx4 v[24:27], v2, s[16:19], s36 offen{['',' sc1',' nt',' sc0 sc1'][OPT.get('OSF',0)]}
    buffer_store_dwordx4 v[28:31], v2, s[16:19], s36 offen offset:32{['',' sc1',' nt',' sc0 sc1'][OPT.get('OSF',0)]}
    s_add_u32 s38, s2, s3
    s_cmp_lg_u32 s38, 0
    s_cbranch_scc1 P3_NE
    s_mov_b32 s38, {EP_OFF:#x}
    v_mov_b32 v5, 0
    s_mov_b64 exec, 1
    buffer_store_dwordx2 v[252:253], v5, s[20:23], s38 offen
    """)
    o.lab("P3_NE")
    if not OPT.get("ST0"): xstamp(o, 5)

def kvpiece(o, step):
    o("s_add_u32 s38, s30, s37")
    o("buffer_load_dwordx4 v1, s[20:23], s38 offen sc1 lds")
    o(f"s_add_u32 m0, m0, {step}")
    o(f"s_add_u32 s30, s30, {step}")
    o("s_and_b32 s30, s30, 0x1ffff")

def phase2(o):
    o(f"""
    s_lshl_b32 s37, s26, 17
    s_add_u32 s37, s37, {KV_OFF:#x}
    s_lshl_b32 s36, s26, 3
    s_add_u32 s36, s36, s27
    s_lshl_b32 s36, s36, 9
    s_add_u32 s36, s36, {FL1_OFF:#x}
    s_cmp_ge_u32 s3, 4
    s_cbranch_scc1 P2_AUX
    """)
    flag1(o)
    QA, QB, NMA, NMB, OA, OB, SX, SY = 4, 8, 12, 28, 44, 60, 76, 92
    KF, V0, V1, IDX, AD, MB = (108, 112), (116, 120), (124, 128), 132, 2, 133
    o(f"""
    s_lshl_b32 s35, s26, 6
    s_lshl_b32 s31, s27, 3
    s_add_u32 s35, s35, s31
    s_lshl_b32 s31, s3, 1
    s_add_u32 s35, s35, s31
    s_lshl_b32 s35, s35, 10
    s_lshl_b32 s31, s3, 10
    s_lshl_b32 s30, s27, 14
    s_add_u32 s30, s30, s31
    s_lshl_b32 s38, s27, 6
    s_add_u32 s36, s36, s38
    """)
    def vinit():
        o("s_mov_b64 exec, s[42:43]")
        for r in range(V0[0], V0[0] + 16): o(f"v_mov_b32 v{r}, 0x3f803f80")
        o("s_not_b64 exec, exec")
        for r in range(V0[0], V0[0] + 16): o(f"v_mov_b32 v{r}, 0")
        o("s_mov_b64 exec, -1")
    o(f"""
    s_mov_b32 s40, 0xffff
    s_mov_b32 s41, 0xffff
    s_mov_b32 s42, 0x110000
    s_mov_b32 s43, 0x110000
    s_mov_b32 s34, 0
    v_mov_b32 v{IDX}, 0xdddd
    """)
    vinit()
    def zinit():
        for i in range(16): o(f"v_mov_b32 v{OA+i}, 0")
        for i in range(16): o(f"v_mov_b32 v{OB+i}, 0")
    zinit()
    if OPT.get("APRIO"): o(f"s_setprio {OPT['APRIO']}")
    o(f"""
    s_mov_b32 m0, s31
    v_lshlrev_b32 v2, 3, v0
    s_mov_b64 exec, 0xff
    """)
    poll(o, "P2_POLL", 2, 36, 6, 140)
    o("s_mov_b64 exec, -1")
    stamp(o, 5)
    kvpiece(o, 4096)
    o(f"buffer_load_dwordx4 {vr(QA,4)}, v1, s[20:23], s35 offen sc1")
    o(f"buffer_load_dwordx4 {vr(QB,4)}, v1, s[20:23], s35 offen offset:1024 sc1")
    for i in range(3): kvpiece(o, 4096)
    o("s_waitcnt vmcnt(0)")
    o("s_barrier")
    if not OPT.get("ST0"): xstamp(o, 6)
    o(f"""
    ds_read_b128 {vr(KF[0],4)}, v1
    ds_read_b128 {vr(KF[1],4)}, v1 offset:2048
    s_mov_b64 exec, s[40:41]
    ds_read_b128 {vr(V0[0],4)}, v1 offset:1024
    ds_read_b128 {vr(V1[0],4)}, v1 offset:1280
    s_mov_b64 exec, -1
    s_waitcnt lgkmcnt(3)
    v_mfma_f32_32x32x16_bf16 {vr(SX,16)}, {vr(KF[0],4)}, {vr(QA,4)}, 0
    v_mfma_f32_32x32x16_bf16 {vr(SY,16)}, {vr(KF[0],4)}, {vr(QB,4)}, 0
    s_nop 10
    """)
    def maxred(src, dst):
        o(f"v_max3_f32 v{dst}, v{src}, v{src+1}, v{src+2}")
        for i in range(3, 15, 2): o(f"v_max3_f32 v{dst}, v{dst}, v{src+i}, v{src+i+1}")
        o(f"v_max_f32 v{dst}, v{dst}, v{src+15}")
    maxred(SX, 3)
    maxred(SY, MB)
    o.lab("K2_PASS")
    o(f"""
    v_mov_b32 v{AD}, v3
    v_mov_b32 v{MB+1}, v{MB}
    s_nop 1
    v_permlane32_swap_b32 v3, v{AD}
    v_permlane32_swap_b32 v{MB}, v{MB+1}
    s_nop 1
    v_max_f32 v3, v3, v{AD}
    v_max_f32 v{MB}, v{MB}, v{MB+1}
    v_mov_b32 v{AD}, v1
    """)
    for i in range(16): o(f"v_sub_f32 v{NMA+i}, 0, v3")
    o("s_nop 1")
    o(f"v_mfma_f32_32x32x16_bf16 {vr(SX,16)}, {vr(KF[0],4)}, {vr(QA,4)}, {vr(NMA,16)}")
    for i in range(16): o(f"v_sub_f32 v{NMB+i}, 0, v{MB}")
    for i in range(8, 16): o(f"v_mov_b32 v{SY+i}, 0")
    o(f"""
    s_mov_b32 s32, 0                ; iteration
    s_cmp_eq_u32 s34, 0
    s_cselect_b32 s33, 1, 16        ; limit
    """)
    o.raw(".p2align 6")
    o.lab("K2_LOOP")
    SP = [(3,8,13),(2,8,13),(4,9,14),(3,8,14),(5,10,15),(2,7,12),(2,5,11),(2,5,10)][OPT.get('SP',6)]
    def ex(X, a, b):
        for i in range(a, b): o(f"v_exp_f32 v{X+i}, v{X+i}")
    for u in range(4):
        p = u & 1
        ex(SX, 0, SP[0])
        o("s_waitcnt lgkmcnt(0)")
        o(f"v_smfmac_f32_32x32x32_bf16 {vr(OB,16)}, {vr(V1[p^1],4)}, {vr(SY+8,8)}, v{IDX}")
        o("s_mov_b64 exec, s[40:41]")
        o(f"ds_read_b128 {vr(V0[p^1],4)}, v{AD} offset:{(u+1)*2048+1024}")
        o(f"ds_read_b128 {vr(V1[p^1],4)}, v{AD} offset:{(u+1)*2048+1280}")
        o("s_mov_b64 exec, -1")
        ex(SX, SP[0], SP[1])
        o(f"v_mfma_f32_32x32x16_bf16 {vr(SY,16)}, {vr(KF[p],4)}, {vr(QB,4)}, {vr(NMB,16)}")
        o(f"ds_read_b128 {vr(KF[p],4)}, v{AD} offset:{(u+2)*2048}")
        ex(SX, SP[1], SP[2])
        o(f"v_smfmac_f32_32x32x32_bf16 {vr(OA,16)}, {vr(V0[p],4)}, {vr(SX,8)}, v{IDX}")
        ex(SX, SP[2], 16)
        if u == 3:
            o(f"v_add_u32 v{AD}, 8192, v{AD}")
            o("s_add_u32 s32, s32, 1")
            o("s_cmp_lt_u32 s32, s33")
        ex(SY, 0, SP[0])
        o(f"v_smfmac_f32_32x32x32_bf16 {vr(OA,16)}, {vr(V1[p],4)}, {vr(SX+8,8)}, v{IDX}")
        ex(SY, SP[0], SP[1])
        o(f"v_mfma_f32_32x32x16_bf16 {vr(SX,16)}, {vr(KF[p^1],4)}, {vr(QA,4)}, {vr(NMA,16)}")
        ex(SY, SP[1], SP[2])
        o(f"v_smfmac_f32_32x32x32_bf16 {vr(OB,16)}, {vr(V0[p],4)}, {vr(SY,8)}, v{IDX}")
        ex(SY, SP[2], 16)
    o(f"""
    s_cbranch_scc1 K2_LOOP
    s_cmp_ge_u32 s32, 16
    s_cbranch_scc1 K2_FIN
    """)
    if OPT.get("STB"):
        o(f"s_cmp_lg_u32 s32, {OPT['STB']}")
        o("s_cbranch_scc1 K2_SB0")
        stamp(o, 2)
        o("s_barrier")
        stamp(o, 3)
        o("s_branch K2_SB1")
        o.lab("K2_SB0")
    o("s_barrier")
    if OPT.get("STB"): o.lab("K2_SB1")
    o(f"""
    s_cmp_eq_u32 s32, {OPT.get("B3", 5)}
    s_cselect_b32 s33, {OPT.get("B4", 6)}, 16
    s_cmp_eq_u32 s32, 1
    s_cselect_b32 s33, {OPT.get("B3", 5)}, s33
    s_branch K2_LOOP
    """)
    o.lab("K2_FIN")
    xstamp(o, 7)
    o(f"""
    v_smfmac_f32_32x32x32_bf16 {vr(OB,16)}, {vr(V1[1],4)}, {vr(SY+8,8)}, v{IDX}
    v_mul_f32 v3, 0, v{OA+8}
    """)
    for i in range(8): o(f"v_fma_f32 v3, v{OA+i}, 0, v3")
    o("s_nop 3")
    for i in range(9): o(f"v_fma_f32 v3, v{OB+i}, 0, v3")
    o(f"""
    s_cmp_lg_u32 s34, 0
    s_cbranch_scc1 K2_OUT
    v_cmp_u_f32 vcc, v3, v3
    s_nop 1
    s_cbranch_vccz K2_OUT
    s_mov_b32 s34, 1
    s_mov_b32 s32, 0
    v_mov_b32 v{AD}, v1
    v_mov_b32 v3, 0xff800000
    v_mov_b32 v{MB}, 0xff800000
    s_waitcnt lgkmcnt(0)
    """)
    o.lab("K2_MAXL")
    o(f"""
    ds_read_b128 {vr(KF[0],4)}, v{AD}
    v_add_u32 v{AD}, 2048, v{AD}
    s_waitcnt lgkmcnt(0)
    v_mfma_f32_32x32x16_bf16 {vr(SX,16)}, {vr(KF[0],4)}, {vr(QA,4)}, 0
    v_mfma_f32_32x32x16_bf16 {vr(SY,16)}, {vr(KF[0],4)}, {vr(QB,4)}, 0
    s_nop 15
    """)
    for i in range(0, 16, 2): o(f"v_max3_f32 v3, v3, v{SX+i}, v{SX+i+1}")
    for i in range(0, 16, 2): o(f"v_max3_f32 v{MB}, v{MB}, v{SY+i}, v{SY+i+1}")
    o(f"""
    s_add_u32 s32, s32, 1
    s_cmp_lt_u32 s32, 64
    s_cbranch_scc1 K2_MAXL
    """)
    vinit()
    o(f"""
    ds_read_b128 {vr(KF[0],4)}, v1
    ds_read_b128 {vr(KF[1],4)}, v1 offset:2048
    s_mov_b64 exec, s[40:41]
    ds_read_b128 {vr(V0[0],4)}, v1 offset:1024
    ds_read_b128 {vr(V1[0],4)}, v1 offset:1280
    s_mov_b64 exec, -1
    """)
    zinit()
    o("s_waitcnt lgkmcnt(0)")
    o("s_branch K2_PASS")
    o.lab("K2_OUT")
    o(f"""
    v_rcp_f32 v3, v{OA+8}
    v_rcp_f32 v{MB}, v{OB+8}
    s_lshl_b32 s30, s27, 3
    s_lshl_b32 s31, s3, 1
    s_add_u32 s30, s30, s31
    s_lshl_b32 s30, s30, 5
    s_add_u32 s30, s30, s26
    s_lshl_b32 s30, s30, 10
    s_add_u32 s30, s30, {OF_OFF:#x}
    s_add_u32 s31, s30, 32768
    """)
    for i in range(8): o(f"v_mul_f32 v{OA+i}, v{OA+i}, v3")
    for i in range(4): o(f"v_cvt_pk_bf16_f32 v{SX+i}, v{OA+2*i}, v{OA+2*i+1}")
    o(f"buffer_store_dwordx4 {vr(SX,4)}, v1, s[20:23], s30 offen")
    for i in range(8): o(f"v_mul_f32 v{OB+i}, v{OB+i}, v{MB}")
    for i in range(4): o(f"v_cvt_pk_bf16_f32 v{SX+4+i}, v{OB+2*i}, v{OB+2*i+1}")
    o(f"buffer_store_dwordx4 {vr(SX+4,4)}, v1, s[20:23], s31 offen")
    phase3(o)
    stamp_out(o, 0)
    o("s_endpgm")

    o.lab("P2_AUX")
    kgen(o)
    srd(o, 16, 10, 2048*2048)
    o(f"""
    s_sub_u32 s3, s3, 4             ; w'
    s_lshl_b32 s31, s3, 10
    s_add_u32 m0, s31, 16384
    s_lshl_b32 s30, s27, 14
    s_add_u32 s30, s30, s31
    s_add_u32 s30, s30, 16384
    s_and_b32 s30, s30, 0x1ffff
    v_mov_b32 v8, {CHL + L_CNT}
    v_mov_b32 v12, 0
    v_mov_b32 v13, 0
    v_mov_b32 v14, 0
    v_mov_b32 v15, 0
    ds_write_b128 v8, v[12:15]
    ds_write_b128 v8, v[12:15] offset:16
    ds_write_b128 v8, v[12:15] offset:32
    v_lshlrev_b32 v5, 3, v0
    s_waitcnt lgkmcnt(0)
    """)
    stamp(o, 5)
    o("s_barrier")
    poll(o, "P2_POLA", 5, 36, 6, 140)
    xstamp(o, 4)
    def kvdma(n):
        for i in range(n): kvpiece(o, 4096)
    kvdma(8)
    o(f"""
    s_lshl_b32 s26, s24, 5
    s_add_u32 s26, s26, s25
    s_lshl_b32 s32, s26, 2
    s_lshr_b32 s33, s3, 1           ; ch'
    s_and_b32 s34, s3, 1
    v_mov_b32 v8, s32
    global_load_dword v16, v8, s[8:9]
    """)
    kvdma(K2_EARLY)
    gsum(o)
    o(f"""
    s_waitcnt vmcnt({1 + K2_EARLY}) lgkmcnt(0)
    s_barrier
    s_mul_i32 s35, s33, 1536
    s_add_u32 s35, s35, {CHL + L_GC}
    v_lshl_add_u32 v5, v0, 3, s35
    v_lshl_add_u32 v6, v0, 2, s35
    v_mov_b32 v7, s35
    ds_read_b64 v[50:51], v5
    ds_read_b32 v52, v5 offset:8
    ds_read2_b32 v[54:55], v6 offset0:128 offset1:129
    ds_read2_b32 v[56:57], v6 offset0:192 offset1:193
    v_add_u32 v6, 1024, v6
    ds_read2_b32 v[58:59], v6 offset0:0 offset1:1
    ds_read_u16 v60, v7
    v_lshlrev_b32 v5, 3, v0
    """)
    kvdma(20 - K2_EARLY)
    srd(o, 48, 6, 2048*1024)
    o(f"""
    v_lshlrev_b32 v9, 10, v0
    s_lshl_b32 s36, s3, 19
    s_add_u32 s36, s36, s32
    """)
    G1 = OPT.get("G1", 7)
    o("v_mov_b32 v106, v9")
    o("s_lshl_b32 s46, s3, 3")
    o("s_add_u32 s46, s46, s25")
    def gath(a_, b_):
        for i in range(a_, b_):
            o(f"s_add_u32 s47, s46, {i}")
            o("s_and_b32 s47, s47, 31")
            o(f"s_lshl_b32 s{52+i}, s47, 7")
            o("s_lshl_b32 s47, s47, 16")
            o("s_add_u32 s47, s47, s32")
            o(f"buffer_load_dword v{96+i}, v106, s[48:51], s47 offen")
    srd(o, 12, 4, 512*1024)
    gath(0, G1)
    o(f"""
    v_lshlrev_b32 v105, 1, v0
    v_sub_u32 v105, {CHL + L_UT + 4094}, v105
    v_and_b32 v2, 15, v0
    v_lshrrev_b32 v3, 4, v0
    s_lshl_b32 s27, s34, 1
    s_add_u32 s27, s27, s33
    s_lshl_b32 s27, s27, 1
    v_lshlrev_b32 v4, 2, v3
    v_lshl_add_u32 v4, v2, 4, v4    ; 16a+4g
    v_lshlrev_b32 v9, 1, v4
    v_sub_u32 v9, {CHL + L_UT + 4088}, v9
    v_lshlrev_b32 v4, 11, v4        ; *2048 (out)
    v_and_b32 v10, 1, v2
    v_mul_u32_u24 v17, {L_E}, v10
    v_add_u32 v11, v2, v10
    v_lshl_add_u32 v17, v11, 1, v17
    v_lshl_add_u32 v17, v3, 4, v17
    s_mul_i32 s35, s33, {L_C1}
    s_lshl_b32 s36, s34, 8
    s_add_u32 s35, s35, s36
    s_add_u32 s35, s35, {CHL}
    v_add_u32 v17, s35, v17
    v_add_u32 v18, 1024, v17
    v_add_u32 v19, 2048, v17
    v_add_u32 v20, 3072, v17
    v_lshlrev_b32 v10, 5, v2
    v_lshlrev_b32 v11, 4, v3
    v_sub_u32 v11, v11, v10
    s_mul_i32 s35, s33, {L_U1}
    s_add_u32 s35, s35, s36
    s_add_u32 s35, s35, {CHL + L_UT + 480}
    v_add_u32 v23, s35, v11
    s_lshl_b32 s35, s27, 9
    v_subrev_u32 v22, s35, v9
    v_subrev_u32 v21, 512, v22
    s_mul_i32 s38, s33, {L_C1}
    s_xor_b32 s39, s34, 1
    s_mul_i32 s39, s39, {L_E}
    s_add_u32 s38, s38, s39
    s_add_u32 s38, s38, {CHL}
    v_add_u32 v5, s38, v5           ; +8t
    v_lshl_add_u32 v6, v0, 4, s38   ; +16t
    v_lshl_add_u32 v7, v0, 5, s38   ; +32t
    v_lshl_add_u32 v8, v0, 2, s38   ; +4t
    s_mul_i32 s39, s33, {L_U1}
    s_add_u32 s39, s39, {CHL + L_UT + 4096}
    v_lshl_add_u32 v10, v0, 3, s39
    s_mov_b32 s40, 0x01000100
    s_mov_b32 s41, 0x03020302
    v_mov_b32 v92, 0
    v_mov_b32 v93, 0
    v_cmp_eq_u32 s[42:43], 7, v0
    s_waitcnt lgkmcnt(0)
    s_cmp_eq_u32 s34, 0
    s_cbranch_scc0 K2_XO
    v_perm_b32 v64, v54, v54, s40
    v_alignbit_b32 v65, v55, v54, 16
    v_perm_b32 v68, v56, v56, s40
    v_mov_b32 v69, v56
    v_perm_b32 v70, v56, v56, s41
    v_perm_b32 v71, v57, v57, s40
    v_perm_b32 v76, v58, v58, s40
    v_mov_b32 v77, v76
    v_mov_b32 v78, v58
    v_perm_b32 v79, v58, v58, s41
    v_mov_b32 v80, v79
    v_mov_b32 v81, v79
    v_perm_b32 v82, v59, v59, s40
    v_mov_b32 v83, v82
    v_mov_b32 v60, 0
    ds_write_b64 v10, v[92:93]
    s_branch K2_XW
    """)
    o.lab("K2_XO")
    o(f"""
    v_alignbit_b32 v50, v51, v50, 16
    v_alignbit_b32 v51, v52, v51, 16
    v_mov_b32 v64, v54
    v_perm_b32 v65, v55, v55, s40
    v_perm_b32 v68, v56, v56, s40
    v_perm_b32 v69, v56, v56, s41
    v_alignbit_b32 v70, v57, v56, 16
    v_perm_b32 v71, v57, v57, s40
    v_perm_b32 v76, v58, v58, s40
    v_mov_b32 v77, v76
    v_perm_b32 v78, v58, v58, s41
    v_mov_b32 v79, v78
    v_mov_b32 v80, v78
    v_alignbit_b32 v81, v59, v58, 16
    v_perm_b32 v82, v59, v59, s40
    v_mov_b32 v83, v82
    v_lshlrev_b32 v60, 16, v60
    v_cndmask_b32 v60, 0, v60, s[42:43]
    """)
    o.lab("K2_XW")
    o(f"""
    ds_write_b64 v5, v[50:51] offset:32
    ds_write_b64 v5, v[64:65] offset:544
    ds_write_b128 v6, v[68:71] offset:1056
    ds_write_b128 v7, v[76:79] offset:2080
    ds_write_b128 v7, v[80:83] offset:2096
    s_mov_b64 exec, 0xff
    ds_write_b32 v8, v60
    s_mov_b64 exec, -1
    """)
    o(f"""
    s_waitcnt vmcnt({G1})
    s_barrier
    """)
    xstamp(o, 0)
    gath(G1, 8)
    for i in range(8):
        o(f"v_subrev_u32 v{107 + (i & 1)}, s{52+i}, v105")
        o(f"s_waitcnt vmcnt({7 - i})")
        o(f"ds_write_b16 v{107 + (i & 1)}, v{96+i}")
        o(f"ds_write_b16_d16_hi v{107 + (i & 1)}, v{96+i} offset:{L_U1}")
    xstamp(o, 1)
    if True:
        o(f"""
        s_cmp_ge_u32 s3, 1
        s_cbranch_scc1 K2_NWU
        s_lshr_b32 s36, s25, 2
        s_lshl_b32 s36, s36, 16
        s_lshr_b32 s45, s24, 2
        s_lshl_b32 s45, s45, 2
        s_and_b32 s44, s25, 3
        s_add_u32 s45, s45, s44
        s_lshl_b32 s45, s45, 7
        s_add_u32 s36, s36, s45
        buffer_load_dword v110, v106, s[12:15], s36 offen
        """)
        o.lab("K2_NWU")

    o(f"""
    s_waitcnt lgkmcnt(0)
    s_barrier
    s_waitcnt vmcnt(0)
    """)
    xstamp(o, 2)
    if OPT.get("CPRIO"): o(f"s_setprio {OPT['CPRIO']}")
    FB, CA = 24, 152
    def creads(ph):
        b = FB + 64 * (ph & 1)
        L = []
        for p in range(8):
            off = 16 * ph + 128 * (p & 1)
            L.append(f"ds_read2_b32 {vr(b+4*p,2)}, v{17 + (p >> 1)} offset0:{off} offset1:{off+1}")
            L.append(f"ds_read2_b32 {vr(b+4*p+2,2)}, v{17 + (p >> 1)} offset0:{off+2} offset1:{off+3}")
            L.append(f"ds_read_b128 {vr(b+32+4*p,4)}, v23 offset:{512*(7-p) + 64*ph}")
        return L
    for t in creads(0): o(t)
    o(f"""
    s_lshl_b32 s35, s3, 12
    s_add_u32 s35, s35, {CHL}
    v_add_u32 v184, s35, v1
    v_xor_b32 v185, 4096, v184
    s_lshl_b32 s35, s3, 11
    s_add_u32 s35, s35, {CHL + 16384}
    v_add_u32 v190, s35, v1
    v_xor_b32 v191, 4096, v190
    v_lshlrev_b32 v6, 16, v16
    v_and_b32 v7, 0xffff0000, v16
    s_lshl_b32 s44, s33, 2
    s_add_u32 s44, s44, {CHL + L_CNT + 20}
    s_lshl_b32 s45, s34, 2
    s_add_u32 s45, s45, {CHL + L_CNT + 28}
    s_lshl_b32 s40, s27, 19
    s_add_u32 s40, s40, s32
    s_add_u32 s40, s40, 1024
    s_add_u32 s41, s40, 4096
    s_add_u32 s42, s40, {1 << 19}
    s_add_u32 s43, s41, {1 << 19}
    ds_read_b64 v[8:9], v22
    ds_read_b64 v[10:11], v22 offset:{L_U1}
    ds_read_b64 v[12:13], v21
    ds_read_b64 v[14:15], v21 offset:{L_U1}
    s_waitcnt lgkmcnt(0)
    """)
    for ph in range(4):
        b = FB + 64 * (ph & 1)
        R = creads(ph + 1) if ph < 3 else []
        M = [(p, q) for q in range(8) for p in range(8 - q)]
        for i, (p, q) in enumerate(M):
            c = vr(CA + 4 * (p + q), 4)
            first = (ph == 0 and q == 0)
            o(f"v_mfma_f32_16x16x32_bf16 {c}, {vr(b+4*p,4)}, {vr(b+32+4*q,4)}, {0 if first else c}")
            if i < len(R): o(R[i])
        if ph < 3: o("s_waitcnt lgkmcnt(0)")
    xstamp(o, 3)
    swsync(o, "CV_SA", 16, 186, 187)
    RR, TT, FF = 24, 40, 56
    o("s_cmp_eq_u32 s34, 0")
    o("s_cbranch_scc0 CV_H1")
    for j in range(4): o(f"ds_write_b128 v184, {vr(CA+16+4*j,4)} offset:{1024*j}")
    for i in range(16): o(f"v_mov_b32 v{RR+i}, v{CA+i}")
    o("s_branch CV_H2")
    o.lab("CV_H1")
    for j in range(4): o(f"ds_write_b128 v184, {vr(CA+4*j,4)} offset:{1024*j}")
    for i in range(16): o(f"v_mov_b32 v{RR+i}, v{CA+16+i}")
    o.lab("CV_H2")
    swsync(o, "CV_SB", 0, 186, 187, cnt=2, base="s44")
    for j in range(4): o(f"ds_read_b128 {vr(TT+4*j,4)}, v185 offset:{1024*j}")
    o("s_waitcnt lgkmcnt(0)")
    o("s_cmp_eq_u32 s33, 0")
    o("s_cbranch_scc0 CV_C1")
    for i in range(8): o(f"v_add_f32 v{RR+8+i}, v{RR+8+i}, v{TT+8+i}")
    for j in range(2): o(f"ds_write_b128 v190, {vr(RR+8+4*j,4)} offset:{1024*j}")
    for i in range(8): o(f"v_add_f32 v{FF+i}, v{RR+i}, v{TT+i}")
    swsync(o, "CV_SC0", 0, 186, 187, cnt=2, base="s45")
    for j in range(2): o(f"ds_read_b128 {vr(FF+8+4*j,4)}, v191 offset:{1024*j}")
    o("s_branch CV_C2")
    o.lab("CV_C1")
    for i in range(8): o(f"v_add_f32 v{RR+i}, v{RR+i}, v{TT+i}")
    for j in range(2): o(f"ds_write_b128 v190, {vr(RR+4*j,4)} offset:{1024*j}")
    for i in range(8): o(f"v_add_f32 v{FF+8+i}, v{RR+8+i}, v{TT+8+i}")
    swsync(o, "CV_SC1", 0, 186, 187, cnt=2, base="s45")
    for j in range(2): o(f"ds_read_b128 {vr(FF+4*j,4)}, v191 offset:{1024*j}")
    o.lab("CV_C2")
    o("s_waitcnt lgkmcnt(0)")
    for blk in range(2):
        for r in range(4):
            for c, dd in ((0, 6), (1, 7)):
                src = 8 + 4 * blk + 2 * c + (1 - (r >> 1))
                y = FF + 8 * c + 4 * blk + r
                if r & 1: o(f"v_lshlrev_b32 v{188+c}, 16, v{src}")
                else:     o(f"v_and_b32 v{188+c}, 0xffff0000, v{src}")
                o(f"v_fma_f32 v{y}, v{188+c}, v{dd}, v{y}")
            o(f"v_cvt_pk_bf16_f32 v{192+4*blk+r}, v{FF+4*blk+r}, v{FF+8+4*blk+r}")
            o(f"buffer_store_dword v{192+4*blk+r}, v4, s[16:19], s{40 + (r >> 1) + 2*blk} offen offset:{2048*(r&1)}")
    if OPT.get("WBL2"):
        o(f"""
        s_cmp_lg_u32 s3, 0
        s_cbranch_scc1 K_END
        s_and_b32 s38, s25, {OPT['WBL2'] - 1}
        s_cmp_lg_u32 s38, 0
        s_cbranch_scc1 K_END
        s_waitcnt vmcnt(0)
        buffer_wbl2 sc1
        s_waitcnt vmcnt(0)
        """)
    stamp_out(o, 0, wadd=4)
    o.lab("K_END")
    o("s_endpgm")


K2_EARLY = 6
def main(out):
    hdr = open(f"cdna_kernels/{NAME}.s.ref").read().split("; @launch")[0]
    o = A()
    o.raw(hdr.rstrip())
    o.raw(f"; @launch grid=(256,1,1) block=(512,1,1) lds={LDS_ALL}")
    o.raw('.amdgcn_target "amdgcn-amd-amdhsa--gfx950"\n.text')
    kstart(o, NAME + "_kernel")
    rstamp(o, 0); stamp(o, 1)
    o("s_cmp_ge_u32 s2, 256")
    o("s_cbranch_scc1 K_END")
    phase1(o)
    phase2(o)
    o.raw('.section .rodata,"a"')
    o.raw(kdesc(NAME + "_kernel", 256))
    txt = o.text()
    txt = "\n".join((l + " sc1") if l.strip().startswith("buffer_store") and "s80" not in l and "s[16:19]" not in l else l for l in txt.split("\n"))
    open(out, "w").write(txt)

if __name__ == "__main__":
    if "--stamp" in sys.argv:
        STAMP = True; sys.argv.remove("--stamp")
    for a_ in list(sys.argv):
        if a_.startswith("-D"):
            kk, _, vv = a_[2:].partition("="); OPT[kk] = int(vv or 1); sys.argv.remove(a_)
    main(sys.argv[1] if len(sys.argv) > 1 else f"cdna_kernels/{NAME}.s")
```

```python
import sys, math, struct

NAME = "concat_heads__softmax_full_mha__ssm_conv_s4__prompt"

QF_OFF  = 0
KV_OFF  = 2 << 20
OF_OFF  = 6 << 20
WOF_OFF = 8 << 20
UT_OFF  = 9 << 20
GC_OFF  = 11 << 20
GC_SZ   = 1536
FL2_OFF = 12 << 20
FL1_OFF = (12 << 20) + (1 << 17)
EP_OFF  = 13 << 20
SPIN_MAX = 400000
ST1 = ""
WS_USED = 32 << 20

def f2u(x): return struct.unpack('<I', struct.pack('<f', x))[0]
LOG2E = 1.4426950408889634

class A:
    def __init__(s): s.l = []
    def __call__(s, t):
        for x in t.split("\n"):
            x = x.strip()
            if x: s.l.append("    " + x)
    def lab(s, n): s.l.append(n + ":")
    def raw(s, t): s.l.append(t)
    def text(s): return "\n".join(s.l) + "\n"

def vr(a, n): return f"v[{a}:{a+n-1}]" if n > 1 else f"v{a}"
def sr(a, n): return f"s[{a}:{a+n-1}]" if n > 1 else f"s{a}"

def srd(o, d, b, size, add=0):
    if add:
        o(f"s_add_u32 s{d}, s{b}, {add:#x}")
        o(f"s_addc_u32 s{d+1}, s{b+1}, 0")
    else:
        o(f"s_mov_b32 s{d}, s{b}")
        o(f"s_mov_b32 s{d+1}, s{b+1}")
    o(f"s_mov_b32 s{d+2}, {size:#x}")
    o(f"s_mov_b32 s{d+3}, 0x00020000")

class Sched:
    def __init__(s, pace=14): s.ops = []; s.pace = pace
    def add(s, text, defs, uses, lat=8, cost=4, trans=False):
        s.ops.append(dict(t=text, d=set(defs), u=set(uses), lat=lat, cost=cost, tr=trans))
    def emit(s, o, hook=None):
        ops = s.ops; n = len(ops)
        pred = [[] for _ in ops]
        lastw, readers = {}, {}
        for i, op in enumerate(ops):
            for r in op['u']:
                if r in lastw: pred[i].append((lastw[r], ops[lastw[r]]['lat']))
            for r in op['d']:
                if r in lastw: pred[i].append((lastw[r], 4))
                for j in readers.get(r, []):
                    if j != i: pred[i].append((j, 8))
            for r in op['u']: readers.setdefault(r, []).append(i)
            for r in op['d']: lastw[r] = i; readers[r] = []
        succ = [[] for _ in ops]
        for i in range(n):
            for j, l in pred[i]: succ[j].append((i, l))
        cp = [0] * n
        for i in reversed(range(n)):
            cp[i] = ops[i]['cost'] + max([l + cp[k] for k, l in succ[i]], default=0)
        done, when, t, last, lastwr = set(), {}, 0, None, -99
        while len(done) < n:
            cand = [i for i in range(n) if i not in done and all(j in done for j, _ in pred[i])]
            rdy = {i: max([when[j] + l for j, l in pred[i]], default=0) for i in cand}
            now = [i for i in cand if rdy[i] <= t]
            wr = [k for k in now if ops[k]['t'].startswith('ds_write')]
            cv = [k for k in now if ops[k]['t'].startswith('v_cvt_pk') and any(ops[z]['t'].startswith('ds_write') for z, _ in succ[k])]
            oth = [k for k in now if k not in wr]
            if wr and (t - lastwr >= s.pace or not oth): i = wr[0]; lastwr = t
            elif cv and len(wr) < 2: i = cv[0]
            elif oth: i = max(oth, key=lambda k: cp[k])
            else: i = min(cand, key=lambda k: (rdy[k], -cp[k]))
            if last is not None and ops[last]['tr'] and not ops[i]['tr'] and (ops[last]['d'] & ops[i]['u']): o("s_nop 0")
            t = max(t, rdy[i]); when[i] = t; t += ops[i]['cost']; done.add(i); last = i
            o(ops[i]['t'])
            if hook and t >= hook[0] and not ops[i]['tr']: hook[1](); hook = None
        return t

STAMP = False
FINE = False
FINE2 = False
FUSE23 = False
OPT = {}
STFLAG = 'sc1'
ST_OFF = 16 << 20
def stamp(o, i):
    if OPT.get("PROBE"): o(f"s_memrealtime s[{64+2*i}:{65+2*i}]"); return
    if OPT.get("DBG"): o(f"s_memrealtime s[{64+2*i}:{65+2*i}]"); return
    if STAMP: o(f"s_memtime s[{64+2*i}:{65+2*i}]")
def xstamp(o, i):
    if OPT.get("PROBE"): o(f"s_memrealtime s[{84+2*i}:{85+2*i}]"); return
    if STAMP: o(f"s_memtime s[{84+2*i}:{85+2*i}]")
def rstamp(o, i):
    if STAMP: o(f"s_memrealtime s[{64+2*i}:{65+2*i}]")
def stamp_out(o, kid, wave_sgpr="s3", wadd=0):
    if OPT.get("PROBE"):
        if wadd: return
        a_, b_ = OPT["PA"], OPT["PB"]
        o("s_waitcnt vmcnt(0)")
        o("s_memrealtime s[78:79]")
        o("s_waitcnt lgkmcnt(0)")
        o(f"s_sub_u32 s80, s{b_}, s{a_}")
        o(f"s_mul_i32 s80, s80, {OPT['PROBE']}")
        o.lab("PROBE_L")
        o("s_memrealtime s[82:83]")
        o("s_waitcnt lgkmcnt(0)")
        o("s_sub_u32 s81, s82, s78")
        o("s_cmp_lt_u32 s81, s80")
        o("s_cbranch_scc1 PROBE_L")
        return
    if OPT.get("DBG"):
        lab = f"DBG_{kid}_{len(o.l)}"
        o("s_load_dwordx2 s[82:83], s[0:1], 104")
        o("s_waitcnt vmcnt(0)")
        o("s_memrealtime s[78:79]")
        o("s_and_b32 s80, s2, 7")
        o(f"s_add_u32 s80, s80, {wave_sgpr}")
        o("s_waitcnt lgkmcnt(0)")
        o("s_cmp_lg_u32 s80, 0")
        o(f"s_cbranch_scc1 {lab}")
        o(f"s_add_u32 s82, s82, {(2-kid)*512}")
        o("s_addc_u32 s83, s83, 0")
        o("s_mov_b64 exec, 1")
        o("s_not_b32 s66, s66")
        o("v_mov_b32 v2, 0")
        sl = {0: [(66, 0), (78, 1), (68, 6), (70, 7)], 1: [(66, 2), (78, 3), (68, 8), (74, 9)], 2: [(66, 4), (78, 5), (68, 10), (70, 11)]}[kid]
        if wadd: sl = [(78, 12), (70, 13)]
        for q, (sg, slot) in enumerate(sl):
            o(f"v_mov_b32 v{4+q}, s{sg}")
            o(f"global_atomic_umax v2, v{4+q}, s[82:83] offset:{4*slot}")
        o.lab(lab)
        return
    if not STAMP: return
    o("s_memrealtime s[78:79]")
    o("s_waitcnt lgkmcnt(0)")
    o("s_mov_b64 exec, 1")
    o(f"s_lshl_b32 s80, s2, 4")
    o(f"s_add_u32 s80, s80, {wave_sgpr}")
    o(f"s_add_u32 s80, s80, {kid*8192 + wadd}")
    o(f"s_lshl_b32 s80, s80, 7")
    o(f"s_add_u32 s80, s80, {ST_OFF:#x}")
    o("s_waitcnt vmcnt(0)")
    o("s_memtime s[76:77]")
    o("s_waitcnt lgkmcnt(0)")
    for i in range(16): o(f"v_mov_b32 v{4+i}, s{64+i}")
    for i in range(16): o(f"v_mov_b32 v{20+i}, s{84+i}")
    o("v_mov_b32 v2, 0")
    for q in range(8): o(f"buffer_store_dwordx4 v[{4+4*q}:{7+4*q}], v2, s[20:23], s80 offen offset:{16*q}")

def kstart(o, name):
    o.raw(f".globl {name}\n.p2align 8\n.type {name},@function")
    o.lab(name)

def kdesc(name, nv, ns=102):
    return f""".p2align 6
.amdhsa_kernel {name}
  .amdhsa_next_free_vgpr {nv}
  .amdhsa_next_free_sgpr {ns}
  .amdhsa_accum_offset {(nv+3)//4*4}
  .amdhsa_group_segment_fixed_size 0
  .amdhsa_kernarg_size 120
  .amdhsa_user_sgpr_count 2
  .amdhsa_user_sgpr_kernarg_segment_ptr 1
  .amdhsa_system_sgpr_workgroup_id_x 1
.end_amdhsa_kernel
"""


STG = 32768
CHL = 131072
L_E, L_C1, L_UT, L_U1 = 4160, 8320, 16640, 4608
L_GC = 26624
L_CNT = L_GC + 3072
LDS_ALL = CHL + L_CNT + 64
KB = 16384
KS = 15504

def poll(o, name, vaddr, soff, nonce, tmp, first=None):
    o("s_mov_b32 s39, 0")
    if first:
        o(f"buffer_load_dwordx2 {vr(tmp,2)}, v{vaddr}, s[20:23], s{soff} offen sc1")
        o("s_waitcnt vmcnt(0)")
        first()
        o(f"s_branch {name}_C")
    o.lab(name)
    o(f"""
    s_sleep {OPT.get('PSL', 2)}
    buffer_load_dwordx2 {vr(tmp,2)}, v{vaddr}, s[20:23], s{soff} offen sc1
    s_waitcnt vmcnt(0)
    """)
    o.lab(name + "_C")
    o(f"""
    v_cmp_ne_u64 vcc, {vr(tmp,2)}, {vr(nonce,2)}
    s_add_u32 s39, s39, 1
    s_cmp_ge_u32 s39, {SPIN_MAX}
    s_cbranch_scc1 {name}_D
    s_cbranch_vccnz {name}
    """)
    o.lab(name + "_D")

def sw_arrive(o, off, va, vt, base=CHL + L_CNT, restore="-1"):
    o(f"""
    v_mov_b32 v{va}, {base}
    v_mov_b32 v{vt}, 1
    s_mov_b64 exec, 1
    s_waitcnt lgkmcnt(0)
    ds_add_u32 v{va}, v{vt} offset:{off}
    s_mov_b64 exec, {restore}
    """)
def sw_wait(o, name, off, va, vt, cnt=4):
    o("s_mov_b64 exec, 1")
    o("s_mov_b32 s39, 0")
    o.lab(name)
    o(f"""
    ds_read_b32 v{vt}, v{va} offset:{off}
    s_add_u32 s39, s39, 1
    s_waitcnt lgkmcnt(0)
    v_cmp_gt_u32 vcc, {cnt}, v{vt}
    s_cmp_ge_u32 s39, {SPIN_MAX*8}
    s_cbranch_scc1 {name}_D
    s_cbranch_vccz {name}_D
    s_sleep {1 if name.startswith("CV") else 0}
    s_branch {name}
    """)
    o.lab(name + "_D")
    o("s_mov_b64 exec, -1")
def swsync(o, name, off, va, vt, cnt=4, base=CHL + L_CNT):
    sw_arrive(o, off, va, vt, base, "1")
    sw_wait(o, name, off, va, vt, cnt)

def phase1(o):
    o(f"""
    s_load_dwordx4 s[4:7], s[0:1], 0
    v_readfirstlane_b32 s3, v0
    v_and_b32 v0, 63, v0
    s_and_b32 s24, s2, 7
    s_lshr_b32 s25, s2, 3
    s_lshr_b32 s3, s3, 6
    s_and_b32 s26, s2, 6
    s_lshl_b32 s26, s26, 2
    s_and_b32 s31, s25, 7
    s_add_u32 s26, s26, s31         ; mt (0..31)
    s_lshr_b32 s30, s2, 6
    s_and_b32 s27, s2, 1
    s_lshl_b32 s27, s27, 2
    s_add_u32 s27, s27, s30         ; hg (0..7)
    s_lshl_b32 s30, s30, 1
    s_add_u32 s31, s31, s30
    s_lshl_b32 s53, s3, 12
    s_lshl_b32 s50, s26, 16
    s_lshl_b32 s51, s3, 15
    s_add_u32 s50, s50, s51
    s_sub_u32 s48, s3, 2
    s_lshr_b32 s49, s48, 1
    s_lshl_b32 s49, s49, 10
    s_and_b32 s48, s48, 1
    s_mul_i32 s48, s48, {32*3072}
    s_add_u32 s48, s48, s49
    s_lshl_b32 s49, s27, 7
    s_add_u32 s48, s48, s49
    s_cmp_lt_u32 s3, 2
    s_cselect_b32 s50, s50, s48
    s_cselect_b32 s55, 1, 3
    s_mul_i32 s55, s55, 1024
    s_mul_i32 s51, s55, 8
    s_mul_i32 s52, s55, 64
    s_mul_i32 s14, s55, 512
    s_cselect_b32 s52, 128, s52
    s_cselect_b32 s14, {2048*1024}, s14
    s_cselect_b32 s48, 3, 1
    s_cselect_b32 s49, 0, 1
    v_lshrrev_b32 v3, 4, v0
    v_lshrrev_b32 v10, 3, v0
    v_and_b32 v76, s48, v3
    v_lshlrev_b32 v76, s49, v76
    v_and_b32 v11, 7, v0
    v_xor_b32 v76, v76, v11
    v_mul_u32_u24 v77, s55, v10
    v_lshl_add_u32 v76, v76, 4, v77
    v_xor_b32 v77, 64, v76
    s_mov_b32 s15, 0x00020000
    s_waitcnt lgkmcnt(0)
    s_cselect_b32 s12, s4, s6
    s_cselect_b32 s13, s5, s7
    """)
    ACC, FR, FR1 = 12, 36, 180
    def dma_l(n):
        L = []
        for q in range(4):
            if q == 0:
                t = f"s_add_u32 m0, s53, {(n & 3) * STG}\ns_add_u32 s54, s31, {n}\ns_and_b32 s54, s54, 7\ns_mul_i32 s54, s54, s52\ns_add_u32 s54, s54, s50\n"
            else:
                t = "s_add_u32 m0, m0, 1024\ns_add_u32 s54, s54, s51\n"
            L.append(t + f"buffer_load_dwordx4 v{76 + (q & 1)}, s[12:15], s54 offen lds")
        return L
    def dma(n):
        for t in dma_l(n): o(t)
    PRE, LOOK = OPT.get("K1PRE", 2), OPT.get("K1LOOK", 3)
    P = 80
    if OPT.get("ST0"): xstamp(o, 5)
    dma(0)
    o(f"""
    s_load_dwordx2 s[28:29], s[0:1], 112
    s_load_dwordx16 s[32:47], s[0:1], 32
    v_and_b32 v2, 15, v0
    s_and_b32 s30, s3, 1            ; tg
    s_lshr_b32 s48, s3, 1           ; hq
    s_barrier
    s_cmp_lt_u32 s3, 4
    s_cbranch_scc1 P1_NP
    s_getpc_b64 s[8:9]
    """)
    o.lab("P1_PC")
    o(f"""
    s_and_b32 s55, s3, 3
    s_lshl_b32 s55, s55, 12
    v_lshl_add_u32 v78, v0, 6, s55
    v_min_u32 v78, K_END-P1_PC, v78
    global_load_dword v87, v78, s[8:9]
    s_lshl_b32 s56, s24, 5
    s_add_u32 s56, s56, s25
    s_lshl_b32 s56, s56, 1
    s_and_b32 s55, s48, 1
    s_add_u32 s56, s56, s55
    s_lshl_b32 s58, s56, 8
    s_lshl_b32 s59, s30, 7
    s_add_u32 s58, s58, s59
    v_lshl_add_u32 v10, v0, 1, s58
    s_lshl_b32 s59, s56, 1
    v_mov_b32 v11, s59
    s_waitcnt lgkmcnt(0)
    global_load_ushort v{P+6}, v11, s[44:45]
    global_load_ushort v{P}, v10, s[32:33]
    global_load_ushort v{P+1}, v10, s[34:35]
    global_load_ushort v{P+2}, v10, s[36:37]
    global_load_ushort v{P+3}, v10, s[38:39]
    global_load_ushort v{P+4}, v10, s[40:41]
    global_load_ushort v{P+5}, v10, s[42:43]
    """)
    o.lab("P1_NP")
    for n in range(1, PRE): dma(n)
    if OPT.get("ST0"): xstamp(o, 6)
    o("s_waitcnt lgkmcnt(0)")
    if OPT.get("WSB"):
        o(f"s_add_u32 s28, s28, {OPT['WSB'] << 20:#x}")
        o("s_addc_u32 s29, s29, 0")
    srd(o, 20, 28, WS_USED)
    o(f"""
    s_add_u32 s8, s28, {EP_OFF:#x}
    s_addc_u32 s9, s29, 0
    s_load_dwordx2 s[100:101], s[8:9], 0
    v_lshlrev_b32 v1, 4, v0
    v_lshrrev_b32 v78, 1, v2
    v_xor_b32 v78, v78, v3
    v_lshlrev_b32 v78, 4, v78
    v_lshl_add_u32 v4, v2, 7, v78
    s_lshl_b32 s49, s30, 12
    v_add_u32 v4, s49, v4
    v_xor_b32 v5, 64, v4
    v_add_u32 v6, {2*STG}, v4
    v_add_u32 v7, {2*STG}, v5
    v_bfe_u32 v78, v0, 2, 2
    v_lshl_add_u32 v78, v3, 3, v78
    v_lshlrev_b32 v78, 7, v78
    v_bfe_u32 v79, v0, 3, 2
    v_xor_b32 v79, s48, v79
    v_lshl_add_u32 v78, v79, 5, v78
    v_and_b32 v79, 3, v0
    v_lshl_add_u32 v8, v79, 3, v78
    v_add_u32 v8, 8192, v8
    v_add_u32 v9, {2*STG}, v8
    """)
    o.lab("P1_NW")
    if OPT.get("PT"):
        o(f"""
        s_cmp_lg_u32 s3, {OPT.get("PTW", 3)}
        s_cbranch_scc1 P1_NT
        s_load_dwordx4 s[60:63], s[0:1], 16
        s_load_dwordx2 s[10:11], s[0:1], 96
        v_lshlrev_b32 v78, 21, v0
        v_add_u32 v78, 0x1fff80, v78
        s_mov_b64 exec, 0x7f
        buffer_load_dword v87, v78, s[20:23], 0 offen
        v_lshlrev_b32 v78, 21, v0
        s_waitcnt lgkmcnt(0)
        s_mov_b64 exec, 3
        global_load_dword v87, v78, s[10:11]
        s_mov_b64 exec, 1
        global_load_dword v87, v78, s[60:61]
        global_load_dword v87, v78, s[62:63]
        global_load_dword v87, v78, s[46:47]
        s_mov_b64 exec, -1
        """)
        o.lab("P1_NT")
    for i in range(24): o(f"v_mov_b32 v{ACC+i}, 0")
    def reads_l(n):
        xa = (4, 5) if (n & 3) < 2 else (6, 7)
        wa = 8 if (n & 3) < 2 else 9
        so = (n & 1) * STG
        L = []
        for ks in range(2):
            b = (FR1 if n & 1 else FR) + 20 * ks
            L.append(f"ds_read_b128 {vr(b,4)}, v{xa[ks]} offset:{so}")
            L.append(f"ds_read_b128 {vr(b+4,4)}, v{xa[ks]} offset:{so + 2048}")
            for p in range(3):
                L.append(f"ds_read_b64_tr_b16 {vr(b+8+4*p,2)}, v{wa} offset:{so + p*8192 + ks*4096}")
                L.append(f"ds_read_b64_tr_b16 {vr(b+10+4*p,2)}, v{wa} offset:{so + p*8192 + ks*4096 + 512}")
        return L
    o(f"""
    s_cmp_lt_u32 s3, 4
    s_cbranch_scc1 P1_W0
    s_waitcnt vmcnt({4*(PRE-1) + 8}) lgkmcnt(0)
    s_branch P1_W1
    """)
    o.lab("P1_W0")
    o(f"s_waitcnt vmcnt({4*(PRE-1)}) lgkmcnt(0)")
    o.lab("P1_W1")
    o("s_barrier")
    o("s_add_u32 s100, s100, 0x7f4a7c15")
    o("s_addc_u32 s101, s101, 0x9e3779b9")
    stamp(o, 2)
    for t in reads_l(0): o(t)
    for n in range(PRE, LOOK): dma(n)
    P = 80
    for n in range(8):
        if n < 7:
            o(f"s_waitcnt vmcnt({4*(min(n+LOOK-1,7)-(n+1))}) lgkmcnt(0)")
            o("s_barrier")
        else:
            o("s_waitcnt lgkmcnt(0)")
        R = reads_l(n + 1) if n < 7 else []
        Dm = dma_l(n + LOOK) if n + LOOK <= 7 else []
        M = []
        for ks in range(2):
            b = (FR1 if n & 1 else FR) + 20 * ks
            for tt in range(2):
                M.append(f"v_mfma_f32_16x16x32_bf16 {vr(ACC+8+4*tt,4)}, {vr(b+12,4)}, {vr(b+4*tt,4)}, {vr(ACC+8+4*tt,4)}")
            for tt in range(2):
                M.append(f"v_mfma_f32_16x16x32_bf16 {vr(ACC+16+4*tt,4)}, {vr(b+4*tt,4)}, {vr(b+16,4)}, {vr(ACC+16+4*tt,4)}")
            for tt in range(2):
                M.append(f"v_mfma_f32_16x16x32_bf16 {vr(ACC+4*tt,4)}, {vr(b+8,4)}, {vr(b+4*tt,4)}, {vr(ACC+4*tt,4)}")
        for i, m in enumerate(M):
            o(m)
            if i < 8:
                for t in R[2*i:2*i+2]: o(t)
            elif Dm: o(Dm[i - 8])
    stamp(o, 3)
    o(f"""
    s_lshl_b32 s49, s27, 2
    s_add_u32 s49, s49, s48         ; head
    s_lshl_b32 s52, s49, 12
    s_lshl_b32 s49, s49, 6
    s_lshl_b32 s50, s26, 1
    s_add_u32 s50, s50, s30
    s_add_u32 s49, s49, s50
    s_lshl_b32 s53, s50, 3
    s_add_u32 s52, s52, s53
    s_add_u32 s52, s52, {FL1_OFF:#x}
    s_lshl_b32 s50, s49, 11
    s_lshl_b32 s49, s49, 10
    s_add_u32 s50, s50, {KV_OFF:#x}
    s_mov_b32 s51, {f2u(0.25*LOG2E):#x}
    """)
    def cv(a):
        b = ACC + 4 * a
        o(f"v_cvt_pk_bf16_f32 v{FR+2*a}, v{b}, v{b+1}")
        o(f"v_cvt_pk_bf16_f32 v{FR+1+2*a}, v{b+2}, v{b+3}")
    def sw(a):
        o(f"v_permlane16_swap_b32 v{FR+4*a}, v{FR+4*a+2}")
        o(f"v_permlane16_swap_b32 v{FR+4*a+1}, v{FR+4*a+3}")
    cv(2); cv(3); cv(4); cv(5)
    sw(1)
    for i in range(4): o(f"v_mul_f32 v{ACC+i}, s51, v{ACC+i}")
    o(f"buffer_store_dwordx4 {vr(FR+4,4)}, v1, s[20:23], s50 offen")
    sw(2)
    for i in range(4, 8): o(f"v_mul_f32 v{ACC+i}, s51, v{ACC+i}")
    o(f"buffer_store_dwordx4 {vr(FR+8,4)}, v1, s[20:23], s50 offen offset:1024")
    cv(0); cv(1)
    o("s_nop 1")
    sw(0)
    o("s_nop 1")
    o(f"""
    buffer_store_dwordx4 {vr(FR,4)}, v1, s[20:23], s49 offen
    s_load_dwordx4 s[4:7], s[0:1], 16
    s_load_dwordx4 s[8:11], s[0:1], 88
    v_lshlrev_b32 v4, 9, v0
    v_mov_b32 v6, s100
    v_mov_b32 v7, s101
    s_lshl_b32 s26, s24, 2
    s_and_b32 s27, s25, 3
    s_add_u32 s26, s26, s27
    s_lshr_b32 s27, s25, 2          ; qb
    """)

def flag1(o):
    o(f"""
    s_mov_b64 exec, 0xff
    s_waitcnt vmcnt(0)
    buffer_store_dwordx2 v[6:7], v4, s[20:23], s52 offen
    s_mov_b64 exec, -1
    """)
    stamp(o, 4)

def kgen(o):
    P, T, GA, WA, RA = 80, 88, 168, 78, 79
    o(f"""
    s_and_b32 s58, s3, 3
    s_mul_i32 s58, s58, {KS}
    s_add_u32 s58, s58, {KB}
    v_lshl_add_u32 v{WA}, v0, 2, s58
    v_mul_u32_u24 v{RA}, 272, v2
    v_lshl_add_u32 v{RA}, v3, 4, v{RA}
    v_add_u32 v{RA}, s58, v{RA}
    s_mul_i32 s58, s55, {L_C1}
    s_add_u32 s58, s58, {CHL}
    v_add_u32 v{T}, s58, v1
    """)
    for i in range(12): o(f"v_mov_b32 v{GA+i}, 0")
    sc = Sched()
    pairs = [r for r in range(36, 76, 2)] + [r for r in range(90, 168, 2)] + [r for r in range(180, 236, 2)]
    tpool = list(range(236, 256)); tix = [0]
    def newp(): return pairs.pop(0)
    def tmp():
        t = tpool[tix[0] % len(tpool)]; tix[0] += 1; return t
    def op(text, d, u, **k): sc.add(text, d, u, **k)
    for r in range(P, P + 7): op(f"v_lshlrev_b32 v{r}, 16, v{r}", [r], [r])
    D = P + 6
    op(f"v_mul_f32 v{D}, {f2u(LOG2E):#x}, v{D}", [D], [D])
    op(f"v_exp_f32 v{D}, v{D}", [D], [D], lat=16, cost=8, trans=True)
    op(f"v_cvt_pk_bf16_f32 v{D}, v{D}, v{D}", [D], [D])
    op(f"v_lshlrev_b32 v{D}, 16, v{D}", [D], [D])
    for k in range(4): op(f"v_mul_f32 v{P+k}, v{D}, v{P+k}", [P+k], [D, P+k])
    op(f"v_mul_f32 v{P}, {f2u(LOG2E):#x}, v{P}", [P], [P])
    op(f"v_mul_f32 v{P+1}, {f2u(1/(2*math.pi)):#x}, v{P+1}", [P+1], [P+1])
    C = newp()
    op(f"v_mul_f32 v{C}, v{P+4}, v{P+2}", [C], [P+4, P+2])
    op(f"v_mul_f32 v{C+1}, v{P+4}, v{P+3}", [C+1], [P+4, P+3])
    op(f"v_fma_f32 v{C}, -v{P+5}, v{P+3}, v{C}", [C], [P+5, P+3, C])
    op(f"v_fma_f32 v{C+1}, v{P+5}, v{P+2}, v{C+1}", [C+1], [P+5, P+2, C+1])
    def anchor(t):
        d = newp(); a_, b_, c_, e_ = tmp(), tmp(), tmp(), tmp()
        op(f"v_mul_f32 v{a_}, {f2u(float(t)):#x}, v{P}", [a_], [P])
        op(f"v_mul_f32 v{b_}, {f2u(float(t)):#x}, v{P+1}", [b_], [P+1])
        op(f"v_exp_f32 v{a_}, v{a_}", [a_], [a_], lat=16, cost=8, trans=True)
        op(f"v_fract_f32 v{b_}, v{b_}", [b_], [b_])
        op(f"v_cos_f32 v{c_}, v{b_}", [c_], [b_], lat=16, cost=8, trans=True)
        op(f"v_sin_f32 v{e_}, v{b_}", [e_], [b_], lat=16, cost=8, trans=True)
        op(f"v_mul_f32 v{d}, v{a_}, v{c_}", [d], [a_, c_])
        op(f"v_mul_f32 v{d+1}, v{a_}, v{e_}", [d+1], [a_, e_])
        return d
    def cmul(x, w):
        d = newp()
        op(f"v_pk_mul_f32 {vr(d,2)}, {vr(x,2)}, {vr(w,2)} op_sel:[0,0] op_sel_hi:[1,0]", [d, d+1], [x, x+1, w], lat=12)
        op(f"v_pk_fma_f32 {vr(d,2)}, {vr(x,2)}, {vr(w,2)}, {vr(d,2)} op_sel:[1,1,0] op_sel_hi:[0,1,1] neg_lo:[1,0,0]", [d, d+1], [x, x+1, w+1, d, d+1], lat=12)
        return d
    def put(e, x, neg=False):
        t = tmp()
        op(f"v_cvt_pk_bf16_f32 v{t}, v{x}, {'-' if neg else ''}v{x+1}", [t], [x, x+1])
        if not OPT.get("KNOW"): op(f"ds_write_b32 v{WA}, v{t} offset:{e*272}", [], [t])
    Z8, Z1, Z128 = anchor(8), anchor(1), anchor(128)
    t_ = tmp()
    op(f"v_mov_b32 v{t_}, 0x3f80", [t_], [])
    op(f"ds_write_b32 v{WA}, v{t_}", [], [t_])
    e = {1: Z8}
    e[2] = cmul(e[1], e[1]); e[3] = cmul(e[2], e[1]); e[4] = cmul(e[2], e[2])
    for j in (5, 6, 7): e[j] = cmul(e[4], e[j-4])
    e[8] = cmul(e[4], e[4])
    for j in range(9, 16): e[j] = cmul(e[8], e[j-8])
    for j in range(1, 16): put(j, e[j], True)
    x = {0: C}
    x[1] = cmul(C, Z1); Z2 = cmul(Z1, Z1); x[2] = cmul(x[0], Z2); x[3] = cmul(x[1], Z2); Z4 = cmul(Z2, Z2)
    for r in range(4, 8): x[r] = cmul(x[r-4], Z4)
    y = {r: cmul(x[r], Z128) for r in range(8)}
    Z256 = cmul(Z128, Z128)
    pp = {r: cmul(x[2*r], Z256) for r in range(4)}
    qq = {r: cmul(y[2*r], Z256) for r in range(4)}
    Z512 = cmul(Z256, Z256)
    rr = [cmul(v_, Z512) for v_ in (x[0], x[4], y[0], y[4], pp[0], pp[2], qq[0], qq[2])]
    Z1024 = cmul(Z512, Z512)
    ss = [cmul(v_, Z1024) for v_ in (x[0], y[0], pp[0], qq[0], rr[0], rr[2], rr[4], rr[6])]
    s2048 = cmul(ss[0], Z1024)
    for r in range(8): put(16 + r, x[r]); put(24 + r, y[r])
    for r in range(4): put(32 + r, pp[r]); put(36 + r, qq[r])
    for r in range(8): put(40 + r, rr[r])
    for r in range(8): put(48 + r, ss[r])
    put(56, s2048)
    sc.emit(o, (OPT.get('FLT', 300), lambda: flag1(o)))
    FB_ = 90
    for t in range(4):
        for s_ in range(4): o(f"ds_read_b128 {vr(FB_+16*t+4*s_,4)}, v{RA} offset:{t*4352 + 64*s_}")
    for t in range(3):
        o(f"s_waitcnt lgkmcnt({8 - 4*t})")
        for s_ in range(4):
            o(f"v_mfma_f32_16x16x32_bf16 {vr(GA+4*t,4)}, {vr(FB_+16+16*t+4*s_,4)}, {vr(FB_+4*s_,4)}, {vr(GA+4*t,4)}")
    o(f"""
    s_cmp_eq_u32 s30, 0
    s_cbranch_scc1 KG_EV
    s_nop 7
    ds_write_b128 v{T}, {vr(GA,4)}
    ds_write_b128 v{T}, {vr(GA+4,4)} offset:1024
    ds_write_b128 v{T}, {vr(GA+8,4)} offset:2048
    """)
    o.lab("KG_EV")

def gsum(o):
    T, GA, X0 = 88, 168, 104
    Y = [120, 122, 124, 126, 128]
    o(f"""
    s_cmp_lg_u32 s34, 0
    s_cbranch_scc1 GS_END
    ds_read_b128 {vr(X0,4)}, v{T}
    ds_read_b128 {vr(X0+4,4)}, v{T} offset:1024
    ds_read_b128 {vr(X0+8,4)}, v{T} offset:2048
    s_mul_i32 s58, s33, 1536
    s_add_u32 s58, s58, {CHL + L_GC}
    v_lshrrev_b32 v{Y[0]}, 1, v3
    v_lshlrev_b32 v{Y[0]}, 8, v{Y[0]}
    v_lshl_add_u32 v{Y[0]}, v2, 4, v{Y[0]}
    v_and_b32 v{Y[0]+1}, 1, v3
    v_lshl_add_u32 v{Y[0]}, v{Y[0]+1}, 3, v{Y[0]}
    v_cmp_gt_u32 s[60:61], 2, v3
    v_lshlrev_b32 v{Y[1]}, 2, v2
    v_lshlrev_b32 v{Y[1]+1}, 3, v2
    v_cndmask_b32 v{Y[1]}, v{Y[1]}, v{Y[1]+1}, s[60:61]
    v_lshl_add_u32 v{Y[1]}, v3, 7, v{Y[1]}
    v_mov_b32 v{Y[1]+1}, 64
    v_cndmask_b32 v{Y[1]+1}, v{Y[1]+1}, 4, s[60:61]
    v_add_u32 v{Y[1]+1}, v{Y[1]}, v{Y[1]+1}
    v_lshlrev_b32 v{Y[2]}, 7, v3
    v_lshl_add_u32 v{Y[2]}, v2, 1, v{Y[2]}
    v_add_u32 v{Y[0]}, s58, v{Y[0]}
    v_add_u32 v{Y[1]}, s58, v{Y[1]}
    v_add_u32 v{Y[1]+1}, s58, v{Y[1]+1}
    v_add_u32 v{Y[2]}, s58, v{Y[2]}
    s_waitcnt lgkmcnt(0)
    """)
    for i in range(12): o(f"v_add_f32 v{GA+i}, v{GA+i}, v{X0+i}")
    g = Y[4]
    for i in range(6): o(f"v_cvt_pk_bf16_f32 v{g+i}, v{GA+2*i}, v{GA+2*i+1}")
    o(f"""
    ds_write_b64 v{Y[0]}, {vr(g,2)}
    ds_write_b32 v{Y[1]}, v{g+2} offset:512
    ds_write_b32 v{Y[1]+1}, v{g+3} offset:512
    ds_write_b16 v{Y[2]}, v{g+4} offset:1024
    ds_write_b16_d16_hi v{Y[2]}, v{g+4} offset:1056
    ds_write_b16 v{Y[2]}, v{g+5} offset:1088
    ds_write_b16_d16_hi v{Y[2]}, v{g+5} offset:1120
    """)
    o.lab("GS_END")

def phase3(o):
    if OPT.get("B4", 6) == 16: o("s_barrier")
    srd(o, 12, 4, 512*1024)
    srd(o, 16, 10, 2048*2048)
    o(f"""
    s_and_b32 s30, s3, 1            ; tt
    s_lshr_b32 s31, s3, 1
    s_lshl_b32 s32, s27, 2
    s_bfe_u32 s33, s26, 0x20002
    s_add_u32 s32, s32, s33         ; tb
    s_lshl_b32 s32, s32, 1
    s_add_u32 s32, s32, s30
    s_lshr_b32 s35, s26, 4
    s_lshl_b32 s35, s35, 2
    s_and_b32 s34, s26, 3
    s_add_u32 s35, s35, s34         ; nb
    s_lshl_b32 s34, s35, 1
    s_add_u32 s34, s34, s31
    s_lshl_b32 s42, s31, 14
    s_lshl_b32 s43, s32, 15
    s_add_u32 s42, s42, s43
    s_add_u32 s42, s42, {OF_OFF:#x}
    s_add_u32 s43, s42, 4096
    s_add_u32 s44, s42, 8192
    s_add_u32 s45, s42, 12288
    v_lshrrev_b32 v2, 3, v0
    v_and_b32 v3, 7, v0
    v_bfe_u32 v4, v0, 4, 1
    v_lshlrev_b32 v4, 2, v4
    v_xor_b32 v3, v3, v4
    v_lshlrev_b32 v3, 4, v3
    v_lshl_add_u32 v2, v2, 10, v3
    s_lshl_b32 s36, s3, 17
    s_lshl_b32 s37, s35, 7
    s_add_u32 s36, s36, s37
    s_lshl_b32 s37, s3, 14
    s_mov_b32 m0, s37
    v_lshrrev_b32 v3, 5, v0
    v_bfe_u32 v4, v0, 2, 2
    v_lshl_add_u32 v3, v3, 2, v4
    v_lshlrev_b32 v3, 7, v3
    v_bfe_u32 v4, v0, 3, 1
    v_xor_b32 v4, s31, v4
    v_lshl_add_u32 v3, v4, 6, v3
    v_bfe_u32 v4, v0, 4, 1
    v_lshl_add_u32 v3, v4, 5, v3
    v_and_b32 v4, 3, v0
    v_lshl_add_u32 v3, v4, 3, v3
    s_lshl_b32 s37, s31, 15
    v_add_u32 v250, s37, v3
    v_xor_b32 v251, 64, v250
    v_mov_b32 v252, s100
    v_mov_b32 v253, s101
    v_lshrrev_b32 v5, 2, v0
    v_lshlrev_b32 v5, 4, v5
    v_and_b32 v8, 3, v0
    v_add_u32 v5, v5, v8
    v_lshlrev_b32 v5, 8, v5
    s_lshl_b32 s38, s27, 13
    s_lshl_b32 s39, s26, 3
    s_add_u32 s38, s38, s39
    s_lshl_b32 s39, s3, 10
    s_add_u32 s38, s38, s39
    s_add_u32 s38, s38, {FL2_OFF:#x}
    """)
    sw_arrive(o, 0, 8, 9, restore="0xff")
    o(f"""
    s_waitcnt vmcnt(0)
    buffer_store_dwordx2 v[252:253], v5, s[20:23], s38 offen
    """)
    xstamp(o, 0)
    sw_wait(o, "P3_S1", 0, 8, 9)
    for i in range(16):
        o("buffer_load_dwordx4 v2, s[12:15], s36 offen lds")
        if i < 15:
            o("s_add_u32 m0, m0, 1024")
            o("s_add_u32 s36, s36, 8192")
    AC, FA, FBb = 4, 36, 164
    xstamp(o, 1)
    o(f"""
    s_lshl_b32 s38, s27, 5
    s_add_u32 s38, s38, s26
    s_lshl_b32 s38, s38, 8
    s_lshl_b32 s39, s31, 7
    s_add_u32 s38, s38, s39
    s_add_u32 s38, s38, {FL2_OFF:#x}
    v_lshlrev_b32 v5, 3, v0
    s_mov_b64 exec, 0xffff
    """)
    poll(o, "P3_POLL", 5, 38, 252, 232, first=lambda: sw_arrive(o, 4, 8, 9, restore="0xffff"))
    o("s_mov_b64 exec, -1")
    xstamp(o, 2)
    for h in range(16):
        o(f"buffer_load_dwordx4 {vr(FBb+4*h,4)}, v1, s[20:23], s{42 + (h >> 2)} offen offset:{1024*(h&3)} sc1")
    sw_wait(o, "P3_S2", 4, 8, 9)
    for h in range(16):
        for k in range(2):
            o(f"ds_read_b64_tr_b16 {vr(FA+8*h+4*k,2)}, v{250+k} offset:{2048*h}")
            o(f"ds_read_b64_tr_b16 {vr(FA+8*h+4*k+2,2)}, v{250+k} offset:{2048*h+1024}")
    XB = 65536
    o(f"""
    s_xor_b32 s36, s3, 2
    s_lshl_b32 s36, s36, 12
    s_add_u32 s36, s36, {XB}
    v_add_u32 v240, s36, v1
    s_lshl_b32 s36, s3, 12
    s_add_u32 s36, s36, {XB}
    v_add_u32 v241, s36, v1
    v_and_b32 v2, 31, v0
    v_lshlrev_b32 v2, 11, v2
    v_lshrrev_b32 v3, 5, v0
    v_lshl_add_u32 v2, v3, 4, v2
    s_lshl_b32 s36, s32, 16
    s_lshl_b32 s37, s34, 6
    s_add_u32 s36, s36, s37
    s_lshl_b32 s37, s30, 2
    s_add_u32 s37, s37, {CHL + L_CNT + 8}
    s_waitcnt lgkmcnt(0)
    """)
    for h in range(16):
        o(f"s_waitcnt vmcnt({15-h})")
        if h == 0: xstamp(o, 3)
        for k in (1, 0):
            c = vr(AC + 16 * k, 16)
            o(f"v_mfma_f32_32x32x16_bf16 {c}, {vr(FA+8*h+4*k,4)}, {vr(FBb+4*h,4)}, {c if h else 0}")
    xstamp(o, 4)
    o("s_nop 10")
    for q in range(4):
        o(f"ds_write_b128 v240, {vr(AC+16+4*q,4)} offset:{q*1024}")
    swsync(o, "P3_S3", 0, 242, 243, cnt=2, base="s37")
    for q in range(4):
        o(f"ds_read_b128 {vr(FA+4*q,4)}, v241 offset:{q*1024}")
    for q in range(4):
        o(f"s_waitcnt lgkmcnt({3-q})")
        for i in range(4): o(f"v_add_f32 v{AC+4*q+i}, v{AC+4*q+i}, v{FA+4*q+i}")
        for i in range(2): o(f"v_cvt_pk_bf16_f32 v{24+2*q+i}, v{AC+4*q+2*i}, v{AC+4*q+2*i+1}")
    o(f"""
    s_nop 1
    v_permlane32_swap_b32 v24, v26
    v_permlane32_swap_b32 v25, v27
    v_permlane32_swap_b32 v28, v30
    v_permlane32_swap_b32 v29, v31
    s_nop 1
    buffer_store_dwordx4 v[24:27], v2, s[16:19], s36 offen{['',' sc1',' nt',' sc0 sc1'][OPT.get('OSF',0)]}
    buffer_store_dwordx4 v[28:31], v2, s[16:19], s36 offen offset:32{['',' sc1',' nt',' sc0 sc1'][OPT.get('OSF',0)]}
    s_add_u32 s38, s2, s3
    s_cmp_lg_u32 s38, 0
    s_cbranch_scc1 P3_NE
    s_mov_b32 s38, {EP_OFF:#x}
    v_mov_b32 v5, 0
    s_mov_b64 exec, 1
    buffer_store_dwordx2 v[252:253], v5, s[20:23], s38 offen
    """)
    o.lab("P3_NE")
    if not OPT.get("ST0"): xstamp(o, 5)

def kvpiece(o, step):
    o("s_add_u32 s38, s30, s37")
    o("buffer_load_dwordx4 v1, s[20:23], s38 offen sc1 lds")
    o(f"s_add_u32 m0, m0, {step}")
    o(f"s_add_u32 s30, s30, {step}")
    o("s_and_b32 s30, s30, 0x1ffff")

def phase2(o):
    o(f"""
    s_lshl_b32 s37, s26, 17
    s_add_u32 s37, s37, {KV_OFF:#x}
    s_lshl_b32 s36, s26, 3
    s_add_u32 s36, s36, s27
    s_lshl_b32 s36, s36, 9
    s_add_u32 s36, s36, {FL1_OFF:#x}
    s_cmp_ge_u32 s3, 4
    s_cbranch_scc1 P2_AUX
    """)
    flag1(o)
    QA, QB, NMA, NMB, OA, OB, SX, SY = 4, 8, 12, 28, 44, 60, 76, 92
    KF, V0, V1, IDX, AD, MB = (108, 112), (116, 120), (124, 128), 132, 2, 133
    o(f"""
    s_lshl_b32 s35, s26, 6
    s_lshl_b32 s31, s27, 3
    s_add_u32 s35, s35, s31
    s_lshl_b32 s31, s3, 1
    s_add_u32 s35, s35, s31
    s_lshl_b32 s35, s35, 10
    s_lshl_b32 s31, s3, 10
    s_lshl_b32 s30, s27, 14
    s_add_u32 s30, s30, s31
    s_lshl_b32 s38, s27, 6
    s_add_u32 s36, s36, s38
    """)
    def vinit():
        o("s_mov_b64 exec, s[42:43]")
        for r in range(V0[0], V0[0] + 16): o(f"v_mov_b32 v{r}, 0x3f803f80")
        o("s_not_b64 exec, exec")
        for r in range(V0[0], V0[0] + 16): o(f"v_mov_b32 v{r}, 0")
        o("s_mov_b64 exec, -1")
    o(f"""
    s_mov_b32 s40, 0xffff
    s_mov_b32 s41, 0xffff
    s_mov_b32 s42, 0x110000
    s_mov_b32 s43, 0x110000
    s_mov_b32 s34, 0
    v_mov_b32 v{IDX}, 0xdddd
    """)
    vinit()
    def zinit():
        for i in range(16): o(f"v_mov_b32 v{OA+i}, 0")
        for i in range(16): o(f"v_mov_b32 v{OB+i}, 0")
    zinit()
    if OPT.get("APRIO"): o(f"s_setprio {OPT['APRIO']}")
    o(f"""
    s_mov_b32 m0, s31
    v_lshlrev_b32 v2, 3, v0
    s_mov_b64 exec, 0xff
    """)
    poll(o, "P2_POLL", 2, 36, 6, 140)
    o("s_mov_b64 exec, -1")
    stamp(o, 5)
    kvpiece(o, 4096)
    o(f"buffer_load_dwordx4 {vr(QA,4)}, v1, s[20:23], s35 offen sc1")
    o(f"buffer_load_dwordx4 {vr(QB,4)}, v1, s[20:23], s35 offen offset:1024 sc1")
    for i in range(3): kvpiece(o, 4096)
    o("s_waitcnt vmcnt(0)")
    o("s_barrier")
    if not OPT.get("ST0"): xstamp(o, 6)
    o(f"""
    ds_read_b128 {vr(KF[0],4)}, v1
    ds_read_b128 {vr(KF[1],4)}, v1 offset:2048
    s_mov_b64 exec, s[40:41]
    ds_read_b128 {vr(V0[0],4)}, v1 offset:1024
    ds_read_b128 {vr(V1[0],4)}, v1 offset:1280
    s_mov_b64 exec, -1
    s_waitcnt lgkmcnt(3)
    v_mfma_f32_32x32x16_bf16 {vr(SX,16)}, {vr(KF[0],4)}, {vr(QA,4)}, 0
    v_mfma_f32_32x32x16_bf16 {vr(SY,16)}, {vr(KF[0],4)}, {vr(QB,4)}, 0
    s_nop 10
    """)
    def maxred(src, dst):
        o(f"v_max3_f32 v{dst}, v{src}, v{src+1}, v{src+2}")
        for i in range(3, 15, 2): o(f"v_max3_f32 v{dst}, v{dst}, v{src+i}, v{src+i+1}")
        o(f"v_max_f32 v{dst}, v{dst}, v{src+15}")
    maxred(SX, 3)
    maxred(SY, MB)
    o.lab("K2_PASS")
    o(f"""
    v_mov_b32 v{AD}, v3
    v_mov_b32 v{MB+1}, v{MB}
    s_nop 1
    v_permlane32_swap_b32 v3, v{AD}
    v_permlane32_swap_b32 v{MB}, v{MB+1}
    s_nop 1
    v_max_f32 v3, v3, v{AD}
    v_max_f32 v{MB}, v{MB}, v{MB+1}
    v_mov_b32 v{AD}, v1
    """)
    for i in range(16): o(f"v_sub_f32 v{NMA+i}, 0, v3")
    o("s_nop 1")
    o(f"v_mfma_f32_32x32x16_bf16 {vr(SX,16)}, {vr(KF[0],4)}, {vr(QA,4)}, {vr(NMA,16)}")
    for i in range(16): o(f"v_sub_f32 v{NMB+i}, 0, v{MB}")
    for i in range(8, 16): o(f"v_mov_b32 v{SY+i}, 0")
    o(f"""
    s_mov_b32 s32, 0                ; iteration
    s_cmp_eq_u32 s34, 0
    s_cselect_b32 s33, 1, 16        ; limit
    """)
    o.raw(".p2align 6")
    o.lab("K2_LOOP")
    SP = [(3,8,13),(2,8,13),(4,9,14),(3,8,14),(5,10,15),(2,7,12),(2,5,11),(2,5,10)][OPT.get('SP',6)]
    def ex(X, a, b):
        for i in range(a, b): o(f"v_exp_f32 v{X+i}, v{X+i}")
    for u in range(4):
        p = u & 1
        ex(SX, 0, SP[0])
        o("s_waitcnt lgkmcnt(0)")
        o(f"v_smfmac_f32_32x32x32_bf16 {vr(OB,16)}, {vr(V1[p^1],4)}, {vr(SY+8,8)}, v{IDX}")
        o("s_mov_b64 exec, s[40:41]")
        o(f"ds_read_b128 {vr(V0[p^1],4)}, v{AD} offset:{(u+1)*2048+1024}")
        o(f"ds_read_b128 {vr(V1[p^1],4)}, v{AD} offset:{(u+1)*2048+1280}")
        o("s_mov_b64 exec, -1")
        ex(SX, SP[0], SP[1])
        o(f"v_mfma_f32_32x32x16_bf16 {vr(SY,16)}, {vr(KF[p],4)}, {vr(QB,4)}, {vr(NMB,16)}")
        o(f"ds_read_b128 {vr(KF[p],4)}, v{AD} offset:{(u+2)*2048}")
        ex(SX, SP[1], SP[2])
        o(f"v_smfmac_f32_32x32x32_bf16 {vr(OA,16)}, {vr(V0[p],4)}, {vr(SX,8)}, v{IDX}")
        ex(SX, SP[2], 16)
        if u == 3:
            o(f"v_add_u32 v{AD}, 8192, v{AD}")
            o("s_add_u32 s32, s32, 1")
            o("s_cmp_lt_u32 s32, s33")
        ex(SY, 0, SP[0])
        o(f"v_smfmac_f32_32x32x32_bf16 {vr(OA,16)}, {vr(V1[p],4)}, {vr(SX+8,8)}, v{IDX}")
        ex(SY, SP[0], SP[1])
        o(f"v_mfma_f32_32x32x16_bf16 {vr(SX,16)}, {vr(KF[p^1],4)}, {vr(QA,4)}, {vr(NMA,16)}")
        ex(SY, SP[1], SP[2])
        o(f"v_smfmac_f32_32x32x32_bf16 {vr(OB,16)}, {vr(V0[p],4)}, {vr(SY,8)}, v{IDX}")
        ex(SY, SP[2], 16)
    o(f"""
    s_cbranch_scc1 K2_LOOP
    s_cmp_ge_u32 s32, 16
    s_cbranch_scc1 K2_FIN
    """)
    if OPT.get("STB"):
        o(f"s_cmp_lg_u32 s32, {OPT['STB']}")
        o("s_cbranch_scc1 K2_SB0")
        stamp(o, 2)
        o("s_barrier")
        stamp(o, 3)
        o("s_branch K2_SB1")
        o.lab("K2_SB0")
    o("s_barrier")
    if OPT.get("STB"): o.lab("K2_SB1")
    o(f"""
    s_cmp_eq_u32 s32, {OPT.get("B3", 5)}
    s_cselect_b32 s33, {OPT.get("B4", 6)}, 16
    s_cmp_eq_u32 s32, 1
    s_cselect_b32 s33, {OPT.get("B3", 5)}, s33
    s_branch K2_LOOP
    """)
    o.lab("K2_FIN")
    xstamp(o, 7)
    o(f"""
    v_smfmac_f32_32x32x32_bf16 {vr(OB,16)}, {vr(V1[1],4)}, {vr(SY+8,8)}, v{IDX}
    v_mul_f32 v3, 0, v{OA+8}
    """)
    for i in range(8): o(f"v_fma_f32 v3, v{OA+i}, 0, v3")
    o("s_nop 3")
    for i in range(9): o(f"v_fma_f32 v3, v{OB+i}, 0, v3")
    o(f"""
    s_cmp_lg_u32 s34, 0
    s_cbranch_scc1 K2_OUT
    v_cmp_u_f32 vcc, v3, v3
    s_nop 1
    s_cbranch_vccz K2_OUT
    s_mov_b32 s34, 1
    s_mov_b32 s32, 0
    v_mov_b32 v{AD}, v1
    v_mov_b32 v3, 0xff800000
    v_mov_b32 v{MB}, 0xff800000
    s_waitcnt lgkmcnt(0)
    """)
    o.lab("K2_MAXL")
    o(f"""
    ds_read_b128 {vr(KF[0],4)}, v{AD}
    v_add_u32 v{AD}, 2048, v{AD}
    s_waitcnt lgkmcnt(0)
    v_mfma_f32_32x32x16_bf16 {vr(SX,16)}, {vr(KF[0],4)}, {vr(QA,4)}, 0
    v_mfma_f32_32x32x16_bf16 {vr(SY,16)}, {vr(KF[0],4)}, {vr(QB,4)}, 0
    s_nop 15
    """)
    for i in range(0, 16, 2): o(f"v_max3_f32 v3, v3, v{SX+i}, v{SX+i+1}")
    for i in range(0, 16, 2): o(f"v_max3_f32 v{MB}, v{MB}, v{SY+i}, v{SY+i+1}")
    o(f"""
    s_add_u32 s32, s32, 1
    s_cmp_lt_u32 s32, 64
    s_cbranch_scc1 K2_MAXL
    """)
    vinit()
    o(f"""
    ds_read_b128 {vr(KF[0],4)}, v1
    ds_read_b128 {vr(KF[1],4)}, v1 offset:2048
    s_mov_b64 exec, s[40:41]
    ds_read_b128 {vr(V0[0],4)}, v1 offset:1024
    ds_read_b128 {vr(V1[0],4)}, v1 offset:1280
    s_mov_b64 exec, -1
    """)
    zinit()
    o("s_waitcnt lgkmcnt(0)")
    o("s_branch K2_PASS")
    o.lab("K2_OUT")
    o(f"""
    v_rcp_f32 v3, v{OA+8}
    v_rcp_f32 v{MB}, v{OB+8}
    s_lshl_b32 s30, s27, 3
    s_lshl_b32 s31, s3, 1
    s_add_u32 s30, s30, s31
    s_lshl_b32 s30, s30, 5
    s_add_u32 s30, s30, s26
    s_lshl_b32 s30, s30, 10
    s_add_u32 s30, s30, {OF_OFF:#x}
    s_add_u32 s31, s30, 32768
    """)
    for i in range(8): o(f"v_mul_f32 v{OA+i}, v{OA+i}, v3")
    for i in range(4): o(f"v_cvt_pk_bf16_f32 v{SX+i}, v{OA+2*i}, v{OA+2*i+1}")
    o(f"buffer_store_dwordx4 {vr(SX,4)}, v1, s[20:23], s30 offen")
    for i in range(8): o(f"v_mul_f32 v{OB+i}, v{OB+i}, v{MB}")
    for i in range(4): o(f"v_cvt_pk_bf16_f32 v{SX+4+i}, v{OB+2*i}, v{OB+2*i+1}")
    o(f"buffer_store_dwordx4 {vr(SX+4,4)}, v1, s[20:23], s31 offen")
    phase3(o)
    stamp_out(o, 0)
    o("s_endpgm")

    o.lab("P2_AUX")
    kgen(o)
    srd(o, 16, 10, 2048*2048)
    o(f"""
    s_sub_u32 s3, s3, 4             ; w'
    s_lshl_b32 s31, s3, 10
    s_add_u32 m0, s31, 16384
    s_lshl_b32 s30, s27, 14
    s_add_u32 s30, s30, s31
    s_add_u32 s30, s30, 16384
    s_and_b32 s30, s30, 0x1ffff
    v_mov_b32 v8, {CHL + L_CNT}
    v_mov_b32 v12, 0
    v_mov_b32 v13, 0
    v_mov_b32 v14, 0
    v_mov_b32 v15, 0
    ds_write_b128 v8, v[12:15]
    ds_write_b128 v8, v[12:15] offset:16
    ds_write_b128 v8, v[12:15] offset:32
    v_lshlrev_b32 v5, 3, v0
    s_waitcnt lgkmcnt(0)
    """)
    stamp(o, 5)
    o("s_barrier")
    poll(o, "P2_POLA", 5, 36, 6, 140)
    xstamp(o, 4)
    def kvdma(n):
        for i in range(n): kvpiece(o, 4096)
    kvdma(8)
    o(f"""
    s_lshl_b32 s26, s24, 5
    s_add_u32 s26, s26, s25
    s_lshl_b32 s32, s26, 2
    s_lshr_b32 s33, s3, 1           ; ch'
    s_and_b32 s34, s3, 1
    v_mov_b32 v8, s32
    global_load_dword v16, v8, s[8:9]
    """)
    kvdma(K2_EARLY)
    gsum(o)
    o(f"""
    s_waitcnt vmcnt({1 + K2_EARLY}) lgkmcnt(0)
    s_barrier
    s_mul_i32 s35, s33, 1536
    s_add_u32 s35, s35, {CHL + L_GC}
    v_lshl_add_u32 v5, v0, 3, s35
    v_lshl_add_u32 v6, v0, 2, s35
    v_mov_b32 v7, s35
    ds_read_b64 v[50:51], v5
    ds_read_b32 v52, v5 offset:8
    ds_read2_b32 v[54:55], v6 offset0:128 offset1:129
    ds_read2_b32 v[56:57], v6 offset0:192 offset1:193
    v_add_u32 v6, 1024, v6
    ds_read2_b32 v[58:59], v6 offset0:0 offset1:1
    ds_read_u16 v60, v7
    v_lshlrev_b32 v5, 3, v0
    """)
    kvdma(20 - K2_EARLY)
    srd(o, 48, 6, 2048*1024)
    o(f"""
    v_lshlrev_b32 v9, 10, v0
    s_lshl_b32 s36, s3, 19
    s_add_u32 s36, s36, s32
    """)
    G1 = OPT.get("G1", 7)
    o("v_mov_b32 v106, v9")
    o("s_lshl_b32 s46, s3, 3")
    o("s_add_u32 s46, s46, s25")
    def gath(a_, b_):
        for i in range(a_, b_):
            o(f"s_add_u32 s47, s46, {i}")
            o("s_and_b32 s47, s47, 31")
            o(f"s_lshl_b32 s{52+i}, s47, 7")
            o("s_lshl_b32 s47, s47, 16")
            o("s_add_u32 s47, s47, s32")
            o(f"buffer_load_dword v{96+i}, v106, s[48:51], s47 offen")
    srd(o, 12, 4, 512*1024)
    gath(0, G1)
    o(f"""
    v_lshlrev_b32 v105, 1, v0
    v_sub_u32 v105, {CHL + L_UT + 4094}, v105
    v_and_b32 v2, 15, v0
    v_lshrrev_b32 v3, 4, v0
    s_lshl_b32 s27, s34, 1
    s_add_u32 s27, s27, s33
    s_lshl_b32 s27, s27, 1
    v_lshlrev_b32 v4, 2, v3
    v_lshl_add_u32 v4, v2, 4, v4    ; 16a+4g
    v_lshlrev_b32 v9, 1, v4
    v_sub_u32 v9, {CHL + L_UT + 4088}, v9
    v_lshlrev_b32 v4, 11, v4        ; *2048 (out)
    v_and_b32 v10, 1, v2
    v_mul_u32_u24 v17, {L_E}, v10
    v_add_u32 v11, v2, v10
    v_lshl_add_u32 v17, v11, 1, v17
    v_lshl_add_u32 v17, v3, 4, v17
    s_mul_i32 s35, s33, {L_C1}
    s_lshl_b32 s36, s34, 8
    s_add_u32 s35, s35, s36
    s_add_u32 s35, s35, {CHL}
    v_add_u32 v17, s35, v17
    v_add_u32 v18, 1024, v17
    v_add_u32 v19, 2048, v17
    v_add_u32 v20, 3072, v17
    v_lshlrev_b32 v10, 5, v2
    v_lshlrev_b32 v11, 4, v3
    v_sub_u32 v11, v11, v10
    s_mul_i32 s35, s33, {L_U1}
    s_add_u32 s35, s35, s36
    s_add_u32 s35, s35, {CHL + L_UT + 480}
    v_add_u32 v23, s35, v11
    s_lshl_b32 s35, s27, 9
    v_subrev_u32 v22, s35, v9
    v_subrev_u32 v21, 512, v22
    s_mul_i32 s38, s33, {L_C1}
    s_xor_b32 s39, s34, 1
    s_mul_i32 s39, s39, {L_E}
    s_add_u32 s38, s38, s39
    s_add_u32 s38, s38, {CHL}
    v_add_u32 v5, s38, v5           ; +8t
    v_lshl_add_u32 v6, v0, 4, s38   ; +16t
    v_lshl_add_u32 v7, v0, 5, s38   ; +32t
    v_lshl_add_u32 v8, v0, 2, s38   ; +4t
    s_mul_i32 s39, s33, {L_U1}
    s_add_u32 s39, s39, {CHL + L_UT + 4096}
    v_lshl_add_u32 v10, v0, 3, s39
    s_mov_b32 s40, 0x01000100
    s_mov_b32 s41, 0x03020302
    v_mov_b32 v92, 0
    v_mov_b32 v93, 0
    v_cmp_eq_u32 s[42:43], 7, v0
    s_waitcnt lgkmcnt(0)
    s_cmp_eq_u32 s34, 0
    s_cbranch_scc0 K2_XO
    v_perm_b32 v64, v54, v54, s40
    v_alignbit_b32 v65, v55, v54, 16
    v_perm_b32 v68, v56, v56, s40
    v_mov_b32 v69, v56
    v_perm_b32 v70, v56, v56, s41
    v_perm_b32 v71, v57, v57, s40
    v_perm_b32 v76, v58, v58, s40
    v_mov_b32 v77, v76
    v_mov_b32 v78, v58
    v_perm_b32 v79, v58, v58, s41
    v_mov_b32 v80, v79
    v_mov_b32 v81, v79
    v_perm_b32 v82, v59, v59, s40
    v_mov_b32 v83, v82
    v_mov_b32 v60, 0
    ds_write_b64 v10, v[92:93]
    s_branch K2_XW
    """)
    o.lab("K2_XO")
    o(f"""
    v_alignbit_b32 v50, v51, v50, 16
    v_alignbit_b32 v51, v52, v51, 16
    v_mov_b32 v64, v54
    v_perm_b32 v65, v55, v55, s40
    v_perm_b32 v68, v56, v56, s40
    v_perm_b32 v69, v56, v56, s41
    v_alignbit_b32 v70, v57, v56, 16
    v_perm_b32 v71, v57, v57, s40
    v_perm_b32 v76, v58, v58, s40
    v_mov_b32 v77, v76
    v_perm_b32 v78, v58, v58, s41
    v_mov_b32 v79, v78
    v_mov_b32 v80, v78
    v_alignbit_b32 v81, v59, v58, 16
    v_perm_b32 v82, v59, v59, s40
    v_mov_b32 v83, v82
    v_lshlrev_b32 v60, 16, v60
    v_cndmask_b32 v60, 0, v60, s[42:43]
    """)
    o.lab("K2_XW")
    o(f"""
    ds_write_b64 v5, v[50:51] offset:32
    ds_write_b64 v5, v[64:65] offset:544
    ds_write_b128 v6, v[68:71] offset:1056
    ds_write_b128 v7, v[76:79] offset:2080
    ds_write_b128 v7, v[80:83] offset:2096
    s_mov_b64 exec, 0xff
    ds_write_b32 v8, v60
    s_mov_b64 exec, -1
    """)
    o(f"""
    s_waitcnt vmcnt({G1})
    s_barrier
    """)
    xstamp(o, 0)
    gath(G1, 8)
    for i in range(8):
        o(f"v_subrev_u32 v{107 + (i & 1)}, s{52+i}, v105")
        o(f"s_waitcnt vmcnt({7 - i})")
        o(f"ds_write_b16 v{107 + (i & 1)}, v{96+i}")
        o(f"ds_write_b16_d16_hi v{107 + (i & 1)}, v{96+i} offset:{L_U1}")
    xstamp(o, 1)
    if True:
        o(f"""
        s_cmp_ge_u32 s3, 1
        s_cbranch_scc1 K2_NWU
        s_lshr_b32 s36, s25, 2
        s_lshl_b32 s36, s36, 16
        s_lshr_b32 s45, s24, 2
        s_lshl_b32 s45, s45, 2
        s_and_b32 s44, s25, 3
        s_add_u32 s45, s45, s44
        s_lshl_b32 s45, s45, 7
        s_add_u32 s36, s36, s45
        buffer_load_dword v110, v106, s[12:15], s36 offen
        """)
        o.lab("K2_NWU")

    o(f"""
    s_waitcnt lgkmcnt(0)
    s_barrier
    s_waitcnt vmcnt(0)
    """)
    xstamp(o, 2)
    if OPT.get("CPRIO"): o(f"s_setprio {OPT['CPRIO']}")
    FB, CA = 24, 152
    def creads(ph):
        b = FB + 64 * (ph & 1)
        L = []
        for p in range(8):
            off = 16 * ph + 128 * (p & 1)
            L.append(f"ds_read2_b32 {vr(b+4*p,2)}, v{17 + (p >> 1)} offset0:{off} offset1:{off+1}")
            L.append(f"ds_read2_b32 {vr(b+4*p+2,2)}, v{17 + (p >> 1)} offset0:{off+2} offset1:{off+3}")
            L.append(f"ds_read_b128 {vr(b+32+4*p,4)}, v23 offset:{512*(7-p) + 64*ph}")
        return L
    for t in creads(0): o(t)
    o(f"""
    s_lshl_b32 s35, s3, 12
    s_add_u32 s35, s35, {CHL}
    v_add_u32 v184, s35, v1
    v_xor_b32 v185, 4096, v184
    s_lshl_b32 s35, s3, 11
    s_add_u32 s35, s35, {CHL + 16384}
    v_add_u32 v190, s35, v1
    v_xor_b32 v191, 4096, v190
    v_lshlrev_b32 v6, 16, v16
    v_and_b32 v7, 0xffff0000, v16
    s_lshl_b32 s44, s33, 2
    s_add_u32 s44, s44, {CHL + L_CNT + 20}
    s_lshl_b32 s45, s34, 2
    s_add_u32 s45, s45, {CHL + L_CNT + 28}
    s_lshl_b32 s40, s27, 19
    s_add_u32 s40, s40, s32
    s_add_u32 s40, s40, 1024
    s_add_u32 s41, s40, 4096
    s_add_u32 s42, s40, {1 << 19}
    s_add_u32 s43, s41, {1 << 19}
    ds_read_b64 v[8:9], v22
    ds_read_b64 v[10:11], v22 offset:{L_U1}
    ds_read_b64 v[12:13], v21
    ds_read_b64 v[14:15], v21 offset:{L_U1}
    s_waitcnt lgkmcnt(0)
    """)
    for ph in range(4):
        b = FB + 64 * (ph & 1)
        R = creads(ph + 1) if ph < 3 else []
        M = [(p, q) for q in range(8) for p in range(8 - q)]
        for i, (p, q) in enumerate(M):
            c = vr(CA + 4 * (p + q), 4)
            first = (ph == 0 and q == 0)
            o(f"v_mfma_f32_16x16x32_bf16 {c}, {vr(b+4*p,4)}, {vr(b+32+4*q,4)}, {0 if first else c}")
            if i < len(R): o(R[i])
        if ph < 3: o("s_waitcnt lgkmcnt(0)")
    xstamp(o, 3)
    swsync(o, "CV_SA", 16, 186, 187)
    RR, TT, FF = 24, 40, 56
    o("s_cmp_eq_u32 s34, 0")
    o("s_cbranch_scc0 CV_H1")
    for j in range(4): o(f"ds_write_b128 v184, {vr(CA+16+4*j,4)} offset:{1024*j}")
    for i in range(16): o(f"v_mov_b32 v{RR+i}, v{CA+i}")
    o("s_branch CV_H2")
    o.lab("CV_H1")
    for j in range(4): o(f"ds_write_b128 v184, {vr(CA+4*j,4)} offset:{1024*j}")
    for i in range(16): o(f"v_mov_b32 v{RR+i}, v{CA+16+i}")
    o.lab("CV_H2")
    swsync(o, "CV_SB", 0, 186, 187, cnt=2, base="s44")
    for j in range(4): o(f"ds_read_b128 {vr(TT+4*j,4)}, v185 offset:{1024*j}")
    o("s_waitcnt lgkmcnt(0)")
    o("s_cmp_eq_u32 s33, 0")
    o("s_cbranch_scc0 CV_C1")
    for i in range(8): o(f"v_add_f32 v{RR+8+i}, v{RR+8+i}, v{TT+8+i}")
    for j in range(2): o(f"ds_write_b128 v190, {vr(RR+8+4*j,4)} offset:{1024*j}")
    for i in range(8): o(f"v_add_f32 v{FF+i}, v{RR+i}, v{TT+i}")
    swsync(o, "CV_SC0", 0, 186, 187, cnt=2, base="s45")
    for j in range(2): o(f"ds_read_b128 {vr(FF+8+4*j,4)}, v191 offset:{1024*j}")
    o("s_branch CV_C2")
    o.lab("CV_C1")
    for i in range(8): o(f"v_add_f32 v{RR+i}, v{RR+i}, v{TT+i}")
    for j in range(2): o(f"ds_write_b128 v190, {vr(RR+4*j,4)} offset:{1024*j}")
    for i in range(8): o(f"v_add_f32 v{FF+8+i}, v{RR+8+i}, v{TT+8+i}")
    swsync(o, "CV_SC1", 0, 186, 187, cnt=2, base="s45")
    for j in range(2): o(f"ds_read_b128 {vr(FF+4*j,4)}, v191 offset:{1024*j}")
    o.lab("CV_C2")
    o("s_waitcnt lgkmcnt(0)")
    for blk in range(2):
        for r in range(4):
            for c, dd in ((0, 6), (1, 7)):
                src = 8 + 4 * blk + 2 * c + (1 - (r >> 1))
                y = FF + 8 * c + 4 * blk + r
                if r & 1: o(f"v_lshlrev_b32 v{188+c}, 16, v{src}")
                else:     o(f"v_and_b32 v{188+c}, 0xffff0000, v{src}")
                o(f"v_fma_f32 v{y}, v{188+c}, v{dd}, v{y}")
            o(f"v_cvt_pk_bf16_f32 v{192+4*blk+r}, v{FF+4*blk+r}, v{FF+8+4*blk+r}")
            o(f"buffer_store_dword v{192+4*blk+r}, v4, s[16:19], s{40 + (r >> 1) + 2*blk} offen offset:{2048*(r&1)}{['',' nt',' sc0'][OPT.get('CSF',0)]}")
    if OPT.get("WBL2"):
        o(f"""
        s_cmp_lg_u32 s3, 0
        s_cbranch_scc1 K_END
        s_and_b32 s38, s25, {OPT['WBL2'] - 1}
        s_cmp_lg_u32 s38, 0
        s_cbranch_scc1 K_END
        s_waitcnt vmcnt(0)
        buffer_wbl2 sc1
        s_waitcnt vmcnt(0)
        """)
    stamp_out(o, 0, wadd=4)
    o.lab("K_END")
    o("s_endpgm")


K2_EARLY = 6
def main(out):
    hdr = open(f"cdna_kernels/{NAME}.s.ref").read().split("; @launch")[0]
    o = A()
    o.raw(hdr.rstrip())
    o.raw(f"; @launch grid=(256,1,1) block=(512,1,1) lds={LDS_ALL}")
    o.raw('.amdgcn_target "amdgcn-amd-amdhsa--gfx950"\n.text')
    kstart(o, NAME + "_kernel")
    rstamp(o, 0); stamp(o, 1)
    o("s_cmp_ge_u32 s2, 256")
    o("s_cbranch_scc1 K_END")
    phase1(o)
    phase2(o)
    o.raw('.section .rodata,"a"')
    o.raw(kdesc(NAME + "_kernel", 256))
    txt = o.text()
    txt = "\n".join((l + " sc1") if l.strip().startswith("buffer_store") and "s80" not in l and "s[16:19]" not in l else l for l in txt.split("\n"))
    open(out, "w").write(txt)

if __name__ == "__main__":
    if "--stamp" in sys.argv:
        STAMP = True; sys.argv.remove("--stamp")
    for a_ in list(sys.argv):
        if a_.startswith("-D"):
            kk, _, vv = a_[2:].partition("="); OPT[kk] = int(vv or 1); sys.argv.remove(a_)
    main(sys.argv[1] if len(sys.argv) > 1 else f"cdna_kernels/{NAME}.s")
```

```python
import sys, math, struct

NAME = "concat_heads__softmax_full_mha__ssm_conv_s4__prompt"

QF_OFF  = 0
KV_OFF  = 2 << 20
OF_OFF  = 6 << 20
WOF_OFF = 8 << 20
UT_OFF  = 9 << 20
GC_OFF  = 11 << 20
GC_SZ   = 1536
FL2_OFF = 12 << 20
FL1_OFF = (12 << 20) + (1 << 17)
EP_OFF  = 13 << 20
SPIN_MAX = 400000
ST1 = ""
WS_USED = 32 << 20

def f2u(x): return struct.unpack('<I', struct.pack('<f', x))[0]
LOG2E = 1.4426950408889634

class A:
    def __init__(s): s.l = []
    def __call__(s, t):
        for x in t.split("\n"):
            x = x.strip()
            if x: s.l.append("    " + x)
    def lab(s, n): s.l.append(n + ":")
    def raw(s, t): s.l.append(t)
    def text(s): return "\n".join(s.l) + "\n"

def vr(a, n): return f"v[{a}:{a+n-1}]" if n > 1 else f"v{a}"
def sr(a, n): return f"s[{a}:{a+n-1}]" if n > 1 else f"s{a}"

def srd(o, d, b, size, add=0):
    if add:
        o(f"s_add_u32 s{d}, s{b}, {add:#x}")
        o(f"s_addc_u32 s{d+1}, s{b+1}, 0")
    else:
        o(f"s_mov_b32 s{d}, s{b}")
        o(f"s_mov_b32 s{d+1}, s{b+1}")
    o(f"s_mov_b32 s{d+2}, {size:#x}")
    o(f"s_mov_b32 s{d+3}, 0x00020000")

class Sched:
    def __init__(s, pace=14): s.ops = []; s.pace = pace
    def add(s, text, defs, uses, lat=8, cost=4, trans=False):
        s.ops.append(dict(t=text, d=set(defs), u=set(uses), lat=lat, cost=cost, tr=trans))
    def emit(s, o, hook=None):
        ops = s.ops; n = len(ops)
        pred = [[] for _ in ops]
        lastw, readers = {}, {}
        for i, op in enumerate(ops):
            for r in op['u']:
                if r in lastw: pred[i].append((lastw[r], ops[lastw[r]]['lat']))
            for r in op['d']:
                if r in lastw: pred[i].append((lastw[r], 4))
                for j in readers.get(r, []):
                    if j != i: pred[i].append((j, 8))
            for r in op['u']: readers.setdefault(r, []).append(i)
            for r in op['d']: lastw[r] = i; readers[r] = []
        succ = [[] for _ in ops]
        for i in range(n):
            for j, l in pred[i]: succ[j].append((i, l))
        cp = [0] * n
        for i in reversed(range(n)):
            cp[i] = ops[i]['cost'] + max([l + cp[k] for k, l in succ[i]], default=0)
        done, when, t, last, lastwr = set(), {}, 0, None, -99
        while len(done) < n:
            cand = [i for i in range(n) if i not in done and all(j in done for j, _ in pred[i])]
            rdy = {i: max([when[j] + l for j, l in pred[i]], default=0) for i in cand}
            now = [i for i in cand if rdy[i] <= t]
            wr = [k for k in now if ops[k]['t'].startswith('ds_write')]
            cv = [k for k in now if ops[k]['t'].startswith('v_cvt_pk') and any(ops[z]['t'].startswith('ds_write') for z, _ in succ[k])]
            oth = [k for k in now if k not in wr]
            if wr and (t - lastwr >= s.pace or not oth): i = wr[0]; lastwr = t
            elif cv and len(wr) < 2: i = cv[0]
            elif oth: i = max(oth, key=lambda k: cp[k])
            else: i = min(cand, key=lambda k: (rdy[k], -cp[k]))
            if last is not None and ops[last]['tr'] and not ops[i]['tr'] and (ops[last]['d'] & ops[i]['u']): o("s_nop 0")
            t = max(t, rdy[i]); when[i] = t; t += ops[i]['cost']; done.add(i); last = i
            o(ops[i]['t'])
            if hook and t >= hook[0] and not ops[i]['tr']: hook[1](); hook = None
        return t

STAMP = False
FINE = False
FINE2 = False
FUSE23 = False
OPT = {}
STFLAG = 'sc1'
ST_OFF = 16 << 20
def stamp(o, i):
    if OPT.get("PROBE"): o(f"s_memrealtime s[{64+2*i}:{65+2*i}]"); return
    if OPT.get("DBG"): o(f"s_memrealtime s[{64+2*i}:{65+2*i}]"); return
    if STAMP: o(f"s_memtime s[{64+2*i}:{65+2*i}]")
def xstamp(o, i):
    if OPT.get("PROBE"): o(f"s_memrealtime s[{84+2*i}:{85+2*i}]"); return
    if STAMP: o(f"s_memtime s[{84+2*i}:{85+2*i}]")
def rstamp(o, i):
    if STAMP: o(f"s_memrealtime s[{64+2*i}:{65+2*i}]")
def stamp_out(o, kid, wave_sgpr="s3", wadd=0):
    if OPT.get("PROBE"):
        if wadd: return
        a_, b_ = OPT["PA"], OPT["PB"]
        o("s_waitcnt vmcnt(0)")
        o("s_memrealtime s[78:79]")
        o("s_waitcnt lgkmcnt(0)")
        o(f"s_sub_u32 s80, s{b_}, s{a_}")
        o(f"s_mul_i32 s80, s80, {OPT['PROBE']}")
        o.lab("PROBE_L")
        o("s_memrealtime s[82:83]")
        o("s_waitcnt lgkmcnt(0)")
        o("s_sub_u32 s81, s82, s78")
        o("s_cmp_lt_u32 s81, s80")
        o("s_cbranch_scc1 PROBE_L")
        return
    if OPT.get("DBG"):
        lab = f"DBG_{kid}_{len(o.l)}"
        o("s_load_dwordx2 s[82:83], s[0:1], 104")
        o("s_waitcnt vmcnt(0)")
        o("s_memrealtime s[78:79]")
        o("s_and_b32 s80, s2, 7")
        o(f"s_add_u32 s80, s80, {wave_sgpr}")
        o("s_waitcnt lgkmcnt(0)")
        o("s_cmp_lg_u32 s80, 0")
        o(f"s_cbranch_scc1 {lab}")
        o(f"s_add_u32 s82, s82, {(2-kid)*512}")
        o("s_addc_u32 s83, s83, 0")
        o("s_mov_b64 exec, 1")
        o("s_not_b32 s66, s66")
        o("v_mov_b32 v2, 0")
        sl = {0: [(66, 0), (78, 1), (68, 6), (70, 7)], 1: [(66, 2), (78, 3), (68, 8), (74, 9)], 2: [(66, 4), (78, 5), (68, 10), (70, 11)]}[kid]
        if wadd: sl = [(78, 12), (70, 13)]
        for q, (sg, slot) in enumerate(sl):
            o(f"v_mov_b32 v{4+q}, s{sg}")
            o(f"global_atomic_umax v2, v{4+q}, s[82:83] offset:{4*slot}")
        o.lab(lab)
        return
    if not STAMP: return
    o("s_memrealtime s[78:79]")
    o("s_waitcnt lgkmcnt(0)")
    o("s_mov_b64 exec, 1")
    o(f"s_lshl_b32 s80, s2, 4")
    o(f"s_add_u32 s80, s80, {wave_sgpr}")
    o(f"s_add_u32 s80, s80, {kid*8192 + wadd}")
    o(f"s_lshl_b32 s80, s80, 7")
    o(f"s_add_u32 s80, s80, {ST_OFF:#x}")
    o("s_waitcnt vmcnt(0)")
    o("s_memtime s[76:77]")
    o("s_waitcnt lgkmcnt(0)")
    for i in range(16): o(f"v_mov_b32 v{4+i}, s{64+i}")
    for i in range(16): o(f"v_mov_b32 v{20+i}, s{84+i}")
    o("v_mov_b32 v2, 0")
    for q in range(8): o(f"buffer_store_dwordx4 v[{4+4*q}:{7+4*q}], v2, s[20:23], s80 offen offset:{16*q}")

def kstart(o, name):
    o.raw(f".globl {name}\n.p2align 8\n.type {name},@function")
    o.lab(name)

def kdesc(name, nv, ns=102):
    return f""".p2align 6
.amdhsa_kernel {name}
  .amdhsa_next_free_vgpr {nv}
  .amdhsa_next_free_sgpr {ns}
  .amdhsa_accum_offset {(nv+3)//4*4}
  .amdhsa_group_segment_fixed_size 0
  .amdhsa_kernarg_size 120
  .amdhsa_user_sgpr_count 2
  .amdhsa_user_sgpr_kernarg_segment_ptr 1
  .amdhsa_system_sgpr_workgroup_id_x 1
.end_amdhsa_kernel
"""


STG = 32768
CHL = 131072
L_E, L_C1, L_UT, L_U1 = 4160, 8320, 16640, 4608
L_GC = 26624
L_CNT = L_GC + 3072
LDS_ALL = CHL + L_CNT + 64
KB = 16384
KS = 15504

def poll(o, name, vaddr, soff, nonce, tmp, first=None):
    o("s_mov_b32 s39, 0")
    if first:
        o(f"buffer_load_dwordx2 {vr(tmp,2)}, v{vaddr}, s[20:23], s{soff} offen sc1")
        o("s_waitcnt vmcnt(0)")
        first()
        o(f"s_branch {name}_C")
    o.lab(name)
    o(f"""
    s_sleep {OPT.get('PSL', 2)}
    buffer_load_dwordx2 {vr(tmp,2)}, v{vaddr}, s[20:23], s{soff} offen sc1
    s_waitcnt vmcnt(0)
    """)
    o.lab(name + "_C")
    o(f"""
    v_cmp_ne_u64 vcc, {vr(tmp,2)}, {vr(nonce,2)}
    s_add_u32 s39, s39, 1
    s_cmp_ge_u32 s39, {SPIN_MAX}
    s_cbranch_scc1 {name}_D
    s_cbranch_vccnz {name}
    """)
    o.lab(name + "_D")

def sw_arrive(o, off, va, vt, base=CHL + L_CNT, restore="-1"):
    o(f"""
    v_mov_b32 v{va}, {base}
    v_mov_b32 v{vt}, 1
    s_mov_b64 exec, 1
    s_waitcnt lgkmcnt(0)
    ds_add_u32 v{va}, v{vt} offset:{off}
    s_mov_b64 exec, {restore}
    """)
def sw_wait(o, name, off, va, vt, cnt=4):
    o("s_mov_b64 exec, 1")
    o("s_mov_b32 s39, 0")
    o.lab(name)
    o(f"""
    ds_read_b32 v{vt}, v{va} offset:{off}
    s_add_u32 s39, s39, 1
    s_waitcnt lgkmcnt(0)
    v_cmp_gt_u32 vcc, {cnt}, v{vt}
    s_cmp_ge_u32 s39, {SPIN_MAX*8}
    s_cbranch_scc1 {name}_D
    s_cbranch_vccz {name}_D
    s_sleep {1 if name.startswith("CV") else 0}
    s_branch {name}
    """)
    o.lab(name + "_D")
    o("s_mov_b64 exec, -1")
def swsync(o, name, off, va, vt, cnt=4, base=CHL + L_CNT):
    sw_arrive(o, off, va, vt, base, "1")
    sw_wait(o, name, off, va, vt, cnt)

def phase1(o):
    o(f"""
    s_load_dwordx4 s[4:7], s[0:1], 0
    v_readfirstlane_b32 s3, v0
    v_and_b32 v0, 63, v0
    s_and_b32 s24, s2, 7
    s_lshr_b32 s25, s2, 3
    s_lshr_b32 s3, s3, 6
    s_and_b32 s26, s2, 6
    s_lshl_b32 s26, s26, 2
    s_and_b32 s31, s25, 7
    s_add_u32 s26, s26, s31         ; mt (0..31)
    s_lshr_b32 s30, s2, 6
    s_and_b32 s27, s2, 1
    s_lshl_b32 s27, s27, 2
    s_add_u32 s27, s27, s30         ; hg (0..7)
    s_lshl_b32 s30, s30, 1
    s_add_u32 s31, s31, s30
    s_lshl_b32 s53, s3, 12
    s_lshl_b32 s50, s26, 16
    s_lshl_b32 s51, s3, 15
    s_add_u32 s50, s50, s51
    s_sub_u32 s48, s3, 2
    s_lshr_b32 s49, s48, 1
    s_lshl_b32 s49, s49, 10
    s_and_b32 s48, s48, 1
    s_mul_i32 s48, s48, {32*3072}
    s_add_u32 s48, s48, s49
    s_lshl_b32 s49, s27, 7
    s_add_u32 s48, s48, s49
    s_cmp_lt_u32 s3, 2
    s_cselect_b32 s50, s50, s48
    s_cselect_b32 s55, 1, 3
    s_mul_i32 s55, s55, 1024
    s_mul_i32 s51, s55, 8
    s_mul_i32 s52, s55, 64
    s_mul_i32 s14, s55, 512
    s_cselect_b32 s52, 128, s52
    s_cselect_b32 s14, {2048*1024}, s14
    s_cselect_b32 s48, 3, 1
    s_cselect_b32 s49, 0, 1
    v_lshrrev_b32 v3, 4, v0
    v_lshrrev_b32 v10, 3, v0
    v_and_b32 v76, s48, v3
    v_lshlrev_b32 v76, s49, v76
    v_and_b32 v11, 7, v0
    v_xor_b32 v76, v76, v11
    v_mul_u32_u24 v77, s55, v10
    v_lshl_add_u32 v76, v76, 4, v77
    v_xor_b32 v77, 64, v76
    s_mov_b32 s15, 0x00020000
    s_waitcnt lgkmcnt(0)
    s_cselect_b32 s12, s4, s6
    s_cselect_b32 s13, s5, s7
    """)
    ACC, FR, FR1 = 12, 36, 180
    def dma_l(n):
        L = []
        for q in range(4):
            if q == 0:
                t = f"s_add_u32 m0, s53, {(n & 3) * STG}\ns_add_u32 s54, s31, {n}\ns_and_b32 s54, s54, 7\ns_mul_i32 s54, s54, s52\ns_add_u32 s54, s54, s50\n"
            else:
                t = "s_add_u32 m0, m0, 1024\ns_add_u32 s54, s54, s51\n"
            L.append(t + f"buffer_load_dwordx4 v{76 + (q & 1)}, s[12:15], s54 offen lds")
        return L
    def dma(n):
        for t in dma_l(n): o(t)
    PRE, LOOK = OPT.get("K1PRE", 2), OPT.get("K1LOOK", 3)
    P = 80
    if OPT.get("ST0"): xstamp(o, 5)
    dma(0)
    o(f"""
    s_load_dwordx2 s[28:29], s[0:1], 112
    s_load_dwordx16 s[32:47], s[0:1], 32
    v_and_b32 v2, 15, v0
    s_and_b32 s30, s3, 1            ; tg
    s_lshr_b32 s48, s3, 1           ; hq
    s_barrier
    s_cmp_lt_u32 s3, 4
    s_cbranch_scc1 P1_NP
    {"s_setprio 1" if OPT.get("YP", 2) else ""}
    s_getpc_b64 s[8:9]
    """)
    o.lab("P1_PC")
    o(f"""
    s_and_b32 s55, s3, 3
    s_lshl_b32 s55, s55, 12
    v_lshl_add_u32 v78, v0, 6, s55
    v_min_u32 v78, K_END-P1_PC, v78
    global_load_dword v87, v78, s[8:9]
    s_lshl_b32 s56, s24, 5
    s_add_u32 s56, s56, s25
    s_lshl_b32 s56, s56, 1
    s_and_b32 s55, s48, 1
    s_add_u32 s56, s56, s55
    s_lshl_b32 s58, s56, 8
    s_lshl_b32 s59, s30, 7
    s_add_u32 s58, s58, s59
    v_lshl_add_u32 v10, v0, 1, s58
    s_lshl_b32 s59, s56, 1
    v_mov_b32 v11, s59
    s_waitcnt lgkmcnt(0)
    global_load_ushort v{P+6}, v11, s[44:45]
    global_load_ushort v{P}, v10, s[32:33]
    global_load_ushort v{P+1}, v10, s[34:35]
    global_load_ushort v{P+2}, v10, s[36:37]
    global_load_ushort v{P+3}, v10, s[38:39]
    global_load_ushort v{P+4}, v10, s[40:41]
    global_load_ushort v{P+5}, v10, s[42:43]
    """)
    o.lab("P1_NP")
    for n in range(1, PRE): dma(n)
    if OPT.get("ST0"): xstamp(o, 6)
    o("s_waitcnt lgkmcnt(0)")
    if OPT.get("WSB"):
        o(f"s_add_u32 s28, s28, {OPT['WSB'] << 20:#x}")
        o("s_addc_u32 s29, s29, 0")
    srd(o, 20, 28, WS_USED)
    o(f"""
    s_add_u32 s8, s28, {EP_OFF:#x}
    s_addc_u32 s9, s29, 0
    s_load_dwordx2 s[100:101], s[8:9], 0
    v_lshlrev_b32 v1, 4, v0
    v_lshrrev_b32 v78, 1, v2
    v_xor_b32 v78, v78, v3
    v_lshlrev_b32 v78, 4, v78
    v_lshl_add_u32 v4, v2, 7, v78
    s_lshl_b32 s49, s30, 12
    v_add_u32 v4, s49, v4
    v_xor_b32 v5, 64, v4
    v_add_u32 v6, {2*STG}, v4
    v_add_u32 v7, {2*STG}, v5
    v_bfe_u32 v78, v0, 2, 2
    v_lshl_add_u32 v78, v3, 3, v78
    v_lshlrev_b32 v78, 7, v78
    v_bfe_u32 v79, v0, 3, 2
    v_xor_b32 v79, s48, v79
    v_lshl_add_u32 v78, v79, 5, v78
    v_and_b32 v79, 3, v0
    v_lshl_add_u32 v8, v79, 3, v78
    v_add_u32 v8, 8192, v8
    v_add_u32 v9, {2*STG}, v8
    """)
    o.lab("P1_NW")
    if OPT.get("PT"):
        o(f"""
        s_cmp_lg_u32 s3, {OPT.get("PTW", 3)}
        s_cbranch_scc1 P1_NT
        s_load_dwordx4 s[60:63], s[0:1], 16
        s_load_dwordx2 s[10:11], s[0:1], 96
        v_lshlrev_b32 v78, 21, v0
        v_add_u32 v78, 0x1fff80, v78
        s_mov_b64 exec, 0x7f
        buffer_load_dword v87, v78, s[20:23], 0 offen
        v_lshlrev_b32 v78, 21, v0
        s_waitcnt lgkmcnt(0)
        s_mov_b64 exec, 3
        global_load_dword v87, v78, s[10:11]
        s_mov_b64 exec, 1
        global_load_dword v87, v78, s[60:61]
        global_load_dword v87, v78, s[62:63]
        global_load_dword v87, v78, s[46:47]
        s_mov_b64 exec, -1
        """)
        o.lab("P1_NT")
    for i in range(24): o(f"v_mov_b32 v{ACC+i}, 0")
    def reads_l(n):
        xa = (4, 5) if (n & 3) < 2 else (6, 7)
        wa = 8 if (n & 3) < 2 else 9
        so = (n & 1) * STG
        L = []
        for ks in range(2):
            b = (FR1 if n & 1 else FR) + 20 * ks
            L.append(f"ds_read_b128 {vr(b,4)}, v{xa[ks]} offset:{so}")
            L.append(f"ds_read_b128 {vr(b+4,4)}, v{xa[ks]} offset:{so + 2048}")
            for p in range(3):
                L.append(f"ds_read_b64_tr_b16 {vr(b+8+4*p,2)}, v{wa} offset:{so + p*8192 + ks*4096}")
                L.append(f"ds_read_b64_tr_b16 {vr(b+10+4*p,2)}, v{wa} offset:{so + p*8192 + ks*4096 + 512}")
        return L
    o(f"""
    s_cmp_lt_u32 s3, 4
    s_cbranch_scc1 P1_W0
    s_waitcnt vmcnt({4*(PRE-1) + 8}) lgkmcnt(0)
    s_branch P1_W1
    """)
    o.lab("P1_W0")
    o(f"s_waitcnt vmcnt({4*(PRE-1)}) lgkmcnt(0)")
    o.lab("P1_W1")
    o("s_barrier")
    o("s_add_u32 s100, s100, 0x7f4a7c15")
    o("s_addc_u32 s101, s101, 0x9e3779b9")
    stamp(o, 2)
    for t in reads_l(0): o(t)
    for n in range(PRE, LOOK): dma(n)
    P = 80
    for n in range(8):
        if n < 7:
            o(f"s_waitcnt vmcnt({4*(min(n+LOOK-1,7)-(n+1))}) lgkmcnt(0)")
            o("s_barrier")
        else:
            o("s_waitcnt lgkmcnt(0)")
        R = reads_l(n + 1) if n < 7 else []
        Dm = dma_l(n + LOOK) if n + LOOK <= 7 else []
        M = []
        for ks in range(2):
            b = (FR1 if n & 1 else FR) + 20 * ks
            for tt in range(2):
                M.append(f"v_mfma_f32_16x16x32_bf16 {vr(ACC+8+4*tt,4)}, {vr(b+12,4)}, {vr(b+4*tt,4)}, {vr(ACC+8+4*tt,4)}")
            for tt in range(2):
                M.append(f"v_mfma_f32_16x16x32_bf16 {vr(ACC+16+4*tt,4)}, {vr(b+4*tt,4)}, {vr(b+16,4)}, {vr(ACC+16+4*tt,4)}")
            for tt in range(2):
                M.append(f"v_mfma_f32_16x16x32_bf16 {vr(ACC+4*tt,4)}, {vr(b+8,4)}, {vr(b+4*tt,4)}, {vr(ACC+4*tt,4)}")
        for i, m in enumerate(M):
            o(m)
            if i < 8:
                for t in R[2*i:2*i+2]: o(t)
            elif Dm: o(Dm[i - 8])
    stamp(o, 3)
    o(f"""
    s_lshl_b32 s49, s27, 2
    s_add_u32 s49, s49, s48         ; head
    s_lshl_b32 s52, s49, 12
    s_lshl_b32 s49, s49, 6
    s_lshl_b32 s50, s26, 1
    s_add_u32 s50, s50, s30
    s_add_u32 s49, s49, s50
    s_lshl_b32 s53, s50, 3
    s_add_u32 s52, s52, s53
    s_add_u32 s52, s52, {FL1_OFF:#x}
    s_lshl_b32 s50, s49, 11
    s_lshl_b32 s49, s49, 10
    s_add_u32 s50, s50, {KV_OFF:#x}
    s_mov_b32 s51, {f2u(0.25*LOG2E):#x}
    """)
    def cv(a):
        b = ACC + 4 * a
        o(f"v_cvt_pk_bf16_f32 v{FR+2*a}, v{b}, v{b+1}")
        o(f"v_cvt_pk_bf16_f32 v{FR+1+2*a}, v{b+2}, v{b+3}")
    def sw(a):
        o(f"v_permlane16_swap_b32 v{FR+4*a}, v{FR+4*a+2}")
        o(f"v_permlane16_swap_b32 v{FR+4*a+1}, v{FR+4*a+3}")
    cv(2); cv(3); cv(4); cv(5)
    sw(1)
    for i in range(4): o(f"v_mul_f32 v{ACC+i}, s51, v{ACC+i}")
    o(f"buffer_store_dwordx4 {vr(FR+4,4)}, v1, s[20:23], s50 offen")
    sw(2)
    for i in range(4, 8): o(f"v_mul_f32 v{ACC+i}, s51, v{ACC+i}")
    o(f"buffer_store_dwordx4 {vr(FR+8,4)}, v1, s[20:23], s50 offen offset:1024")
    cv(0); cv(1)
    o("s_nop 1")
    sw(0)
    o("s_nop 1")
    o(f"""
    buffer_store_dwordx4 {vr(FR,4)}, v1, s[20:23], s49 offen
    s_load_dwordx4 s[4:7], s[0:1], 16
    s_load_dwordx4 s[8:11], s[0:1], 88
    v_lshlrev_b32 v4, 9, v0
    v_mov_b32 v6, s100
    v_mov_b32 v7, s101
    s_lshl_b32 s26, s24, 2
    s_and_b32 s27, s25, 3
    s_add_u32 s26, s26, s27
    s_lshr_b32 s27, s25, 2          ; qb
    """)

def flag1(o):
    o(f"""
    s_mov_b64 exec, 0xff
    s_waitcnt vmcnt(0)
    buffer_store_dwordx2 v[6:7], v4, s[20:23], s52 offen
    s_mov_b64 exec, -1
    """)
    stamp(o, 4)

def kgen(o):
    P, T, GA, WA, RA = 80, 88, 168, 78, 79
    o(f"""
    s_and_b32 s58, s3, 3
    s_mul_i32 s58, s58, {KS}
    s_add_u32 s58, s58, {KB}
    v_lshl_add_u32 v{WA}, v0, 2, s58
    v_mul_u32_u24 v{RA}, 272, v2
    v_lshl_add_u32 v{RA}, v3, 4, v{RA}
    v_add_u32 v{RA}, s58, v{RA}
    s_mul_i32 s58, s55, {L_C1}
    s_add_u32 s58, s58, {CHL}
    v_add_u32 v{T}, s58, v1
    """)
    for i in range(12): o(f"v_mov_b32 v{GA+i}, 0")
    sc = Sched()
    pairs = [r for r in range(36, 76, 2)] + [r for r in range(90, 168, 2)] + [r for r in range(180, 236, 2)]
    tpool = list(range(236, 256)); tix = [0]
    def newp(): return pairs.pop(0)
    def tmp():
        t = tpool[tix[0] % len(tpool)]; tix[0] += 1; return t
    def op(text, d, u, **k): sc.add(text, d, u, **k)
    for r in range(P, P + 7): op(f"v_lshlrev_b32 v{r}, 16, v{r}", [r], [r])
    D = P + 6
    op(f"v_mul_f32 v{D}, {f2u(LOG2E):#x}, v{D}", [D], [D])
    op(f"v_exp_f32 v{D}, v{D}", [D], [D], lat=16, cost=8, trans=True)
    op(f"v_cvt_pk_bf16_f32 v{D}, v{D}, v{D}", [D], [D])
    op(f"v_lshlrev_b32 v{D}, 16, v{D}", [D], [D])
    for k in range(4): op(f"v_mul_f32 v{P+k}, v{D}, v{P+k}", [P+k], [D, P+k])
    op(f"v_mul_f32 v{P}, {f2u(LOG2E):#x}, v{P}", [P], [P])
    op(f"v_mul_f32 v{P+1}, {f2u(1/(2*math.pi)):#x}, v{P+1}", [P+1], [P+1])
    C = newp()
    op(f"v_mul_f32 v{C}, v{P+4}, v{P+2}", [C], [P+4, P+2])
    op(f"v_mul_f32 v{C+1}, v{P+4}, v{P+3}", [C+1], [P+4, P+3])
    op(f"v_fma_f32 v{C}, -v{P+5}, v{P+3}, v{C}", [C], [P+5, P+3, C])
    op(f"v_fma_f32 v{C+1}, v{P+5}, v{P+2}, v{C+1}", [C+1], [P+5, P+2, C+1])
    def anchor(t):
        d = newp(); a_, b_, c_, e_ = tmp(), tmp(), tmp(), tmp()
        op(f"v_mul_f32 v{a_}, {f2u(float(t)):#x}, v{P}", [a_], [P])
        op(f"v_mul_f32 v{b_}, {f2u(float(t)):#x}, v{P+1}", [b_], [P+1])
        op(f"v_exp_f32 v{a_}, v{a_}", [a_], [a_], lat=16, cost=8, trans=True)
        op(f"v_fract_f32 v{b_}, v{b_}", [b_], [b_])
        op(f"v_cos_f32 v{c_}, v{b_}", [c_], [b_], lat=16, cost=8, trans=True)
        op(f"v_sin_f32 v{e_}, v{b_}", [e_], [b_], lat=16, cost=8, trans=True)
        op(f"v_mul_f32 v{d}, v{a_}, v{c_}", [d], [a_, c_])
        op(f"v_mul_f32 v{d+1}, v{a_}, v{e_}", [d+1], [a_, e_])
        return d
    def cmul(x, w):
        d = newp()
        op(f"v_pk_mul_f32 {vr(d,2)}, {vr(x,2)}, {vr(w,2)} op_sel:[0,0] op_sel_hi:[1,0]", [d, d+1], [x, x+1, w], lat=12)
        op(f"v_pk_fma_f32 {vr(d,2)}, {vr(x,2)}, {vr(w,2)}, {vr(d,2)} op_sel:[1,1,0] op_sel_hi:[0,1,1] neg_lo:[1,0,0]", [d, d+1], [x, x+1, w+1, d, d+1], lat=12)
        return d
    def put(e, x, neg=False):
        t = tmp()
        op(f"v_cvt_pk_bf16_f32 v{t}, v{x}, {'-' if neg else ''}v{x+1}", [t], [x, x+1])
        if not OPT.get("KNOW"): op(f"ds_write_b32 v{WA}, v{t} offset:{e*272}", [], [t])
    Z8, Z1, Z128 = anchor(8), anchor(1), anchor(128)
    t_ = tmp()
    op(f"v_mov_b32 v{t_}, 0x3f80", [t_], [])
    op(f"ds_write_b32 v{WA}, v{t_}", [], [t_])
    e = {1: Z8}
    e[2] = cmul(e[1], e[1]); e[3] = cmul(e[2], e[1]); e[4] = cmul(e[2], e[2])
    for j in (5, 6, 7): e[j] = cmul(e[4], e[j-4])
    e[8] = cmul(e[4], e[4])
    for j in range(9, 16): e[j] = cmul(e[8], e[j-8])
    for j in range(1, 16): put(j, e[j], True)
    x = {0: C}
    x[1] = cmul(C, Z1); Z2 = cmul(Z1, Z1); x[2] = cmul(x[0], Z2); x[3] = cmul(x[1], Z2); Z4 = cmul(Z2, Z2)
    for r in range(4, 8): x[r] = cmul(x[r-4], Z4)
    y = {r: cmul(x[r], Z128) for r in range(8)}
    Z256 = cmul(Z128, Z128)
    pp = {r: cmul(x[2*r], Z256) for r in range(4)}
    qq = {r: cmul(y[2*r], Z256) for r in range(4)}
    Z512 = cmul(Z256, Z256)
    rr = [cmul(v_, Z512) for v_ in (x[0], x[4], y[0], y[4], pp[0], pp[2], qq[0], qq[2])]
    Z1024 = cmul(Z512, Z512)
    ss = [cmul(v_, Z1024) for v_ in (x[0], y[0], pp[0], qq[0], rr[0], rr[2], rr[4], rr[6])]
    s2048 = cmul(ss[0], Z1024)
    for r in range(8): put(16 + r, x[r]); put(24 + r, y[r])
    for r in range(4): put(32 + r, pp[r]); put(36 + r, qq[r])
    for r in range(8): put(40 + r, rr[r])
    for r in range(8): put(48 + r, ss[r])
    put(56, s2048)
    sc.emit(o, (OPT.get('FLT', 300), lambda: flag1(o)))
    FB_ = 90
    for t in range(4):
        for s_ in range(4): o(f"ds_read_b128 {vr(FB_+16*t+4*s_,4)}, v{RA} offset:{t*4352 + 64*s_}")
    for t in range(3):
        o(f"s_waitcnt lgkmcnt({8 - 4*t})")
        for s_ in range(4):
            o(f"v_mfma_f32_16x16x32_bf16 {vr(GA+4*t,4)}, {vr(FB_+16+16*t+4*s_,4)}, {vr(FB_+4*s_,4)}, {vr(GA+4*t,4)}")
    o(f"""
    s_cmp_eq_u32 s30, 0
    s_cbranch_scc1 KG_EV
    s_nop 7
    ds_write_b128 v{T}, {vr(GA,4)}
    ds_write_b128 v{T}, {vr(GA+4,4)} offset:1024
    ds_write_b128 v{T}, {vr(GA+8,4)} offset:2048
    """)
    o.lab("KG_EV")

def gsum(o):
    T, GA, X0 = 88, 168, 104
    Y = [120, 122, 124, 126, 128]
    o(f"""
    s_cmp_lg_u32 s34, 0
    s_cbranch_scc1 GS_END
    ds_read_b128 {vr(X0,4)}, v{T}
    ds_read_b128 {vr(X0+4,4)}, v{T} offset:1024
    ds_read_b128 {vr(X0+8,4)}, v{T} offset:2048
    s_mul_i32 s58, s33, 1536
    s_add_u32 s58, s58, {CHL + L_GC}
    v_lshrrev_b32 v{Y[0]}, 1, v3
    v_lshlrev_b32 v{Y[0]}, 8, v{Y[0]}
    v_lshl_add_u32 v{Y[0]}, v2, 4, v{Y[0]}
    v_and_b32 v{Y[0]+1}, 1, v3
    v_lshl_add_u32 v{Y[0]}, v{Y[0]+1}, 3, v{Y[0]}
    v_cmp_gt_u32 s[60:61], 2, v3
    v_lshlrev_b32 v{Y[1]}, 2, v2
    v_lshlrev_b32 v{Y[1]+1}, 3, v2
    v_cndmask_b32 v{Y[1]}, v{Y[1]}, v{Y[1]+1}, s[60:61]
    v_lshl_add_u32 v{Y[1]}, v3, 7, v{Y[1]}
    v_mov_b32 v{Y[1]+1}, 64
    v_cndmask_b32 v{Y[1]+1}, v{Y[1]+1}, 4, s[60:61]
    v_add_u32 v{Y[1]+1}, v{Y[1]}, v{Y[1]+1}
    v_lshlrev_b32 v{Y[2]}, 7, v3
    v_lshl_add_u32 v{Y[2]}, v2, 1, v{Y[2]}
    v_add_u32 v{Y[0]}, s58, v{Y[0]}
    v_add_u32 v{Y[1]}, s58, v{Y[1]}
    v_add_u32 v{Y[1]+1}, s58, v{Y[1]+1}
    v_add_u32 v{Y[2]}, s58, v{Y[2]}
    s_waitcnt lgkmcnt(0)
    """)
    for i in range(12): o(f"v_add_f32 v{GA+i}, v{GA+i}, v{X0+i}")
    g = Y[4]
    for i in range(6): o(f"v_cvt_pk_bf16_f32 v{g+i}, v{GA+2*i}, v{GA+2*i+1}")
    o(f"""
    ds_write_b64 v{Y[0]}, {vr(g,2)}
    ds_write_b32 v{Y[1]}, v{g+2} offset:512
    ds_write_b32 v{Y[1]+1}, v{g+3} offset:512
    ds_write_b16 v{Y[2]}, v{g+4} offset:1024
    ds_write_b16_d16_hi v{Y[2]}, v{g+4} offset:1056
    ds_write_b16 v{Y[2]}, v{g+5} offset:1088
    ds_write_b16_d16_hi v{Y[2]}, v{g+5} offset:1120
    """)
    o.lab("GS_END")

def phase3(o):
    if OPT.get("B4", 6) == 16: o("s_barrier")
    srd(o, 12, 4, 512*1024)
    srd(o, 16, 10, 2048*2048)
    o(f"""
    s_and_b32 s30, s3, 1            ; tt
    s_lshr_b32 s31, s3, 1
    s_lshl_b32 s32, s27, 2
    s_bfe_u32 s33, s26, 0x20002
    s_add_u32 s32, s32, s33         ; tb
    s_lshl_b32 s32, s32, 1
    s_add_u32 s32, s32, s30
    s_lshr_b32 s35, s26, 4
    s_lshl_b32 s35, s35, 2
    s_and_b32 s34, s26, 3
    s_add_u32 s35, s35, s34         ; nb
    s_lshl_b32 s34, s35, 1
    s_add_u32 s34, s34, s31
    s_lshl_b32 s42, s31, 14
    s_lshl_b32 s43, s32, 15
    s_add_u32 s42, s42, s43
    s_add_u32 s42, s42, {OF_OFF:#x}
    s_add_u32 s43, s42, 4096
    s_add_u32 s44, s42, 8192
    s_add_u32 s45, s42, 12288
    v_lshrrev_b32 v2, 3, v0
    v_and_b32 v3, 7, v0
    v_bfe_u32 v4, v0, 4, 1
    v_lshlrev_b32 v4, 2, v4
    v_xor_b32 v3, v3, v4
    v_lshlrev_b32 v3, 4, v3
    v_lshl_add_u32 v2, v2, 10, v3
    s_lshl_b32 s36, s3, 17
    s_lshl_b32 s37, s35, 7
    s_add_u32 s36, s36, s37
    s_lshl_b32 s37, s3, 14
    s_mov_b32 m0, s37
    v_lshrrev_b32 v3, 5, v0
    v_bfe_u32 v4, v0, 2, 2
    v_lshl_add_u32 v3, v3, 2, v4
    v_lshlrev_b32 v3, 7, v3
    v_bfe_u32 v4, v0, 3, 1
    v_xor_b32 v4, s31, v4
    v_lshl_add_u32 v3, v4, 6, v3
    v_bfe_u32 v4, v0, 4, 1
    v_lshl_add_u32 v3, v4, 5, v3
    v_and_b32 v4, 3, v0
    v_lshl_add_u32 v3, v4, 3, v3
    s_lshl_b32 s37, s31, 15
    v_add_u32 v250, s37, v3
    v_xor_b32 v251, 64, v250
    v_mov_b32 v252, s100
    v_mov_b32 v253, s101
    v_lshrrev_b32 v5, 2, v0
    v_lshlrev_b32 v5, 4, v5
    v_and_b32 v8, 3, v0
    v_add_u32 v5, v5, v8
    v_lshlrev_b32 v5, 8, v5
    s_lshl_b32 s38, s27, 13
    s_lshl_b32 s39, s26, 3
    s_add_u32 s38, s38, s39
    s_lshl_b32 s39, s3, 10
    s_add_u32 s38, s38, s39
    s_add_u32 s38, s38, {FL2_OFF:#x}
    """)
    sw_arrive(o, 0, 8, 9, restore="0xff")
    o(f"""
    s_waitcnt vmcnt(0)
    buffer_store_dwordx2 v[252:253], v5, s[20:23], s38 offen
    """)
    xstamp(o, 0)
    sw_wait(o, "P3_S1", 0, 8, 9)
    for i in range(16):
        o("buffer_load_dwordx4 v2, s[12:15], s36 offen lds")
        if i < 15:
            o("s_add_u32 m0, m0, 1024")
            o("s_add_u32 s36, s36, 8192")
    AC, FA, FBb = 4, 36, 164
    xstamp(o, 1)
    o(f"""
    s_lshl_b32 s38, s27, 5
    s_add_u32 s38, s38, s26
    s_lshl_b32 s38, s38, 8
    s_lshl_b32 s39, s31, 7
    s_add_u32 s38, s38, s39
    s_add_u32 s38, s38, {FL2_OFF:#x}
    v_lshlrev_b32 v5, 3, v0
    s_mov_b64 exec, 0xffff
    """)
    poll(o, "P3_POLL", 5, 38, 252, 232, first=lambda: sw_arrive(o, 4, 8, 9, restore="0xffff"))
    o("s_mov_b64 exec, -1")
    xstamp(o, 2)
    for h in range(16):
        o(f"buffer_load_dwordx4 {vr(FBb+4*h,4)}, v1, s[20:23], s{42 + (h >> 2)} offen offset:{1024*(h&3)} sc1")
    sw_wait(o, "P3_S2", 4, 8, 9)
    for h in range(16):
        for k in range(2):
            o(f"ds_read_b64_tr_b16 {vr(FA+8*h+4*k,2)}, v{250+k} offset:{2048*h}")
            o(f"ds_read_b64_tr_b16 {vr(FA+8*h+4*k+2,2)}, v{250+k} offset:{2048*h+1024}")
    XB = 65536
    o(f"""
    s_xor_b32 s36, s3, 2
    s_lshl_b32 s36, s36, 12
    s_add_u32 s36, s36, {XB}
    v_add_u32 v240, s36, v1
    s_lshl_b32 s36, s3, 12
    s_add_u32 s36, s36, {XB}
    v_add_u32 v241, s36, v1
    v_and_b32 v2, 31, v0
    v_lshlrev_b32 v2, 11, v2
    v_lshrrev_b32 v3, 5, v0
    v_lshl_add_u32 v2, v3, 4, v2
    s_lshl_b32 s36, s32, 16
    s_lshl_b32 s37, s34, 6
    s_add_u32 s36, s36, s37
    s_lshl_b32 s37, s30, 2
    s_add_u32 s37, s37, {CHL + L_CNT + 8}
    s_waitcnt lgkmcnt(0)
    """)
    for h in range(16):
        o(f"s_waitcnt vmcnt({15-h})")
        if h == 0: xstamp(o, 3)
        for k in (1, 0):
            c = vr(AC + 16 * k, 16)
            o(f"v_mfma_f32_32x32x16_bf16 {c}, {vr(FA+8*h+4*k,4)}, {vr(FBb+4*h,4)}, {c if h else 0}")
    xstamp(o, 4)
    o("s_nop 10")
    for q in range(4):
        o(f"ds_write_b128 v240, {vr(AC+16+4*q,4)} offset:{q*1024}")
    swsync(o, "P3_S3", 0, 242, 243, cnt=2, base="s37")
    for q in range(4):
        o(f"ds_read_b128 {vr(FA+4*q,4)}, v241 offset:{q*1024}")
    for q in range(4):
        o(f"s_waitcnt lgkmcnt({3-q})")
        for i in range(4): o(f"v_add_f32 v{AC+4*q+i}, v{AC+4*q+i}, v{FA+4*q+i}")
        for i in range(2): o(f"v_cvt_pk_bf16_f32 v{24+2*q+i}, v{AC+4*q+2*i}, v{AC+4*q+2*i+1}")
    o(f"""
    s_nop 1
    v_permlane32_swap_b32 v24, v26
    v_permlane32_swap_b32 v25, v27
    v_permlane32_swap_b32 v28, v30
    v_permlane32_swap_b32 v29, v31
    s_nop 1
    buffer_store_dwordx4 v[24:27], v2, s[16:19], s36 offen{['',' sc1',' nt',' sc0 sc1'][OPT.get('OSF',0)]}
    buffer_store_dwordx4 v[28:31], v2, s[16:19], s36 offen offset:32{['',' sc1',' nt',' sc0 sc1'][OPT.get('OSF',0)]}
    s_add_u32 s38, s2, s3
    s_cmp_lg_u32 s38, 0
    s_cbranch_scc1 P3_NE
    s_mov_b32 s38, {EP_OFF:#x}
    v_mov_b32 v5, 0
    s_mov_b64 exec, 1
    buffer_store_dwordx2 v[252:253], v5, s[20:23], s38 offen
    """)
    o.lab("P3_NE")
    if not OPT.get("ST0"): xstamp(o, 5)

def kvpiece(o, step):
    o("s_add_u32 s38, s30, s37")
    o("buffer_load_dwordx4 v1, s[20:23], s38 offen sc1 lds")
    o(f"s_add_u32 m0, m0, {step}")
    o(f"s_add_u32 s30, s30, {step}")
    o("s_and_b32 s30, s30, 0x1ffff")

def phase2(o):
    o(f"""
    s_lshl_b32 s37, s26, 17
    s_add_u32 s37, s37, {KV_OFF:#x}
    s_lshl_b32 s36, s26, 3
    s_add_u32 s36, s36, s27
    s_lshl_b32 s36, s36, 9
    s_add_u32 s36, s36, {FL1_OFF:#x}
    s_cmp_ge_u32 s3, 4
    s_cbranch_scc1 P2_AUX
    """)
    flag1(o)
    QA, QB, NMA, NMB, OA, OB, SX, SY = 4, 8, 12, 28, 44, 60, 76, 92
    KF, V0, V1, IDX, AD, MB = (108, 112), (116, 120), (124, 128), 132, 2, 133
    o(f"""
    s_lshl_b32 s35, s26, 6
    s_lshl_b32 s31, s27, 3
    s_add_u32 s35, s35, s31
    s_lshl_b32 s31, s3, 1
    s_add_u32 s35, s35, s31
    s_lshl_b32 s35, s35, 10
    s_lshl_b32 s31, s3, 11
    s_lshl_b32 s30, s27, 14
    s_add_u32 s30, s30, s31
    s_lshl_b32 s38, s27, 6
    s_add_u32 s36, s36, s38
    """)
    def vinit():
        o("s_mov_b64 exec, s[42:43]")
        for r in range(V0[0], V0[0] + 16): o(f"v_mov_b32 v{r}, 0x3f803f80")
        o("s_not_b64 exec, exec")
        for r in range(V0[0], V0[0] + 16): o(f"v_mov_b32 v{r}, 0")
        o("s_mov_b64 exec, -1")
    o(f"""
    s_mov_b32 s40, 0xffff
    s_mov_b32 s41, 0xffff
    s_mov_b32 s42, 0x110000
    s_mov_b32 s43, 0x110000
    s_mov_b32 s34, 0
    v_mov_b32 v{IDX}, 0xdddd
    """)
    vinit()
    def zinit():
        for i in range(16): o(f"v_mov_b32 v{OA+i}, 0")
        for i in range(16): o(f"v_mov_b32 v{OB+i}, 0")
    zinit()
    if OPT.get("APRIO"): o(f"s_setprio {OPT['APRIO']}")
    o(f"""
    s_mov_b32 m0, s31
    v_lshlrev_b32 v2, 3, v0
    s_mov_b64 exec, 0xff
    """)
    poll(o, "P2_POLL", 2, 36, 6, 140)
    o("s_mov_b64 exec, -1")
    stamp(o, 5)
    kvpiece(o, 1024)
    o(f"buffer_load_dwordx4 {vr(QA,4)}, v1, s[20:23], s35 offen sc1")
    o(f"buffer_load_dwordx4 {vr(QB,4)}, v1, s[20:23], s35 offen offset:1024 sc1")
    kvpiece(o, 7168); kvpiece(o, 1024); kvpiece(o, 1024)
    o(f"""
    v_add_u32 v{AD}, s31, v1
    s_waitcnt vmcnt(3)
    ds_read_b128 {vr(KF[0],4)}, v{AD}
    s_waitcnt lgkmcnt(0)
    v_mfma_f32_32x32x16_bf16 {vr(SX,16)}, {vr(KF[0],4)}, {vr(QA,4)}, 0
    v_mfma_f32_32x32x16_bf16 {vr(SY,16)}, {vr(KF[0],4)}, {vr(QB,4)}, 0
    s_nop 10
    """)
    def maxred(src, dst):
        o(f"v_max3_f32 v{dst}, v{src}, v{src+1}, v{src+2}")
        for i in range(3, 15, 2): o(f"v_max3_f32 v{dst}, v{dst}, v{src+i}, v{src+i+1}")
        o(f"v_max_f32 v{dst}, v{dst}, v{src+15}")
    maxred(SX, 3)
    maxred(SY, MB)
    o.lab("K2_PASS")
    o(f"""
    v_mov_b32 v{AD}, v3
    v_mov_b32 v{MB+1}, v{MB}
    s_nop 1
    v_permlane32_swap_b32 v3, v{AD}
    v_permlane32_swap_b32 v{MB}, v{MB+1}
    s_nop 1
    v_max_f32 v3, v3, v{AD}
    v_max_f32 v{MB}, v{MB}, v{MB+1}
    v_mov_b32 v{AD}, v1
    """)
    for i in range(16): o(f"v_sub_f32 v{NMA+i}, 0, v3")
    for i in range(16): o(f"v_sub_f32 v{NMB+i}, 0, v{MB}")
    for i in range(8, 16): o(f"v_mov_b32 v{SY+i}, 0")
    o(f"""
    s_mov_b32 s32, 0                ; iteration
    s_mov_b32 s33, 16
    s_cmp_lg_u32 s34, 0
    s_cbranch_scc1 K2_GO
    s_mov_b32 s33, 1
    s_waitcnt vmcnt(0)
    s_barrier
    """)
    if not OPT.get("ST0"): xstamp(o, 6)
    o.lab("K2_GO")
    o(f"""
    ds_read_b128 {vr(KF[0],4)}, v1
    ds_read_b128 {vr(KF[1],4)}, v1 offset:2048
    s_mov_b64 exec, s[40:41]
    ds_read_b128 {vr(V0[0],4)}, v1 offset:1024
    ds_read_b128 {vr(V1[0],4)}, v1 offset:1280
    s_mov_b64 exec, -1
    s_waitcnt lgkmcnt(3)
    v_mfma_f32_32x32x16_bf16 {vr(SX,16)}, {vr(KF[0],4)}, {vr(QA,4)}, {vr(NMA,16)}
    s_nop 11
    """)
    o.raw(".p2align 6")
    o.lab("K2_LOOP")
    SP = [(3,8,13),(2,8,13),(4,9,14),(3,8,14),(5,10,15),(2,7,12),(2,5,11),(2,5,10)][OPT.get('SP',6)]
    def ex(X, a, b):
        for i in range(a, b): o(f"v_exp_f32 v{X+i}, v{X+i}")
    for u in range(4):
        p = u & 1
        ex(SX, 0, SP[0])
        o("s_waitcnt lgkmcnt(0)")
        o(f"v_smfmac_f32_32x32x32_bf16 {vr(OB,16)}, {vr(V1[p^1],4)}, {vr(SY+8,8)}, v{IDX}")
        o("s_mov_b64 exec, s[40:41]")
        o(f"ds_read_b128 {vr(V0[p^1],4)}, v{AD} offset:{(u+1)*2048+1024}")
        o(f"ds_read_b128 {vr(V1[p^1],4)}, v{AD} offset:{(u+1)*2048+1280}")
        o("s_mov_b64 exec, -1")
        ex(SX, SP[0], SP[1])
        o(f"v_mfma_f32_32x32x16_bf16 {vr(SY,16)}, {vr(KF[p],4)}, {vr(QB,4)}, {vr(NMB,16)}")
        o(f"ds_read_b128 {vr(KF[p],4)}, v{AD} offset:{(u+2)*2048}")
        ex(SX, SP[1], SP[2])
        o(f"v_smfmac_f32_32x32x32_bf16 {vr(OA,16)}, {vr(V0[p],4)}, {vr(SX,8)}, v{IDX}")
        ex(SX, SP[2], 16)
        if u == 3:
            o(f"v_add_u32 v{AD}, 8192, v{AD}")
            o("s_add_u32 s32, s32, 1")
            o("s_cmp_lt_u32 s32, s33")
        ex(SY, 0, SP[0])
        o(f"v_smfmac_f32_32x32x32_bf16 {vr(OA,16)}, {vr(V1[p],4)}, {vr(SX+8,8)}, v{IDX}")
        ex(SY, SP[0], SP[1])
        o(f"v_mfma_f32_32x32x16_bf16 {vr(SX,16)}, {vr(KF[p^1],4)}, {vr(QA,4)}, {vr(NMA,16)}")
        ex(SY, SP[1], SP[2])
        o(f"v_smfmac_f32_32x32x32_bf16 {vr(OB,16)}, {vr(V0[p],4)}, {vr(SY,8)}, v{IDX}")
        ex(SY, SP[2], 16)
    o(f"""
    s_cbranch_scc1 K2_LOOP
    s_cmp_ge_u32 s32, 16
    s_cbranch_scc1 K2_FIN
    """)
    if OPT.get("STB"):
        o(f"s_cmp_lg_u32 s32, {OPT['STB']}")
        o("s_cbranch_scc1 K2_SB0")
        stamp(o, 2)
        o("s_barrier")
        stamp(o, 3)
        o("s_branch K2_SB1")
        o.lab("K2_SB0")
    o("s_barrier")
    if OPT.get("STB"): o.lab("K2_SB1")
    o(f"""
    s_cmp_eq_u32 s32, {OPT.get("B3", 5)}
    s_cselect_b32 s33, {OPT.get("B4", 6)}, 16
    s_cmp_eq_u32 s32, 1
    s_cselect_b32 s33, {OPT.get("B3", 5)}, s33
    s_branch K2_LOOP
    """)
    o.lab("K2_FIN")
    xstamp(o, 7)
    o(f"""
    v_smfmac_f32_32x32x32_bf16 {vr(OB,16)}, {vr(V1[1],4)}, {vr(SY+8,8)}, v{IDX}
    v_mul_f32 v3, 0, v{OA+8}
    """)
    for i in range(8): o(f"v_fma_f32 v3, v{OA+i}, 0, v3")
    o("s_nop 3")
    for i in range(9): o(f"v_fma_f32 v3, v{OB+i}, 0, v3")
    o(f"""
    s_cmp_lg_u32 s34, 0
    s_cbranch_scc1 K2_OUT
    v_cmp_u_f32 vcc, v3, v3
    s_nop 1
    s_cbranch_vccz K2_OUT
    s_mov_b32 s34, 1
    s_mov_b32 s32, 0
    v_mov_b32 v{AD}, v1
    v_mov_b32 v3, 0xff800000
    v_mov_b32 v{MB}, 0xff800000
    s_waitcnt lgkmcnt(0)
    """)
    o.lab("K2_MAXL")
    o(f"""
    ds_read_b128 {vr(KF[0],4)}, v{AD}
    v_add_u32 v{AD}, 2048, v{AD}
    s_waitcnt lgkmcnt(0)
    v_mfma_f32_32x32x16_bf16 {vr(SX,16)}, {vr(KF[0],4)}, {vr(QA,4)}, 0
    v_mfma_f32_32x32x16_bf16 {vr(SY,16)}, {vr(KF[0],4)}, {vr(QB,4)}, 0
    s_nop 15
    """)
    for i in range(0, 16, 2): o(f"v_max3_f32 v3, v3, v{SX+i}, v{SX+i+1}")
    for i in range(0, 16, 2): o(f"v_max3_f32 v{MB}, v{MB}, v{SY+i}, v{SY+i+1}")
    o(f"""
    s_add_u32 s32, s32, 1
    s_cmp_lt_u32 s32, 64
    s_cbranch_scc1 K2_MAXL
    """)
    vinit()
    zinit()
    o("s_branch K2_PASS")
    o.lab("K2_OUT")
    o(f"""
    v_rcp_f32 v3, v{OA+8}
    v_rcp_f32 v{MB}, v{OB+8}
    s_lshl_b32 s30, s27, 3
    s_lshl_b32 s31, s3, 1
    s_add_u32 s30, s30, s31
    s_lshl_b32 s30, s30, 5
    s_add_u32 s30, s30, s26
    s_lshl_b32 s30, s30, 10
    s_add_u32 s30, s30, {OF_OFF:#x}
    s_add_u32 s31, s30, 32768
    """)
    for i in range(8): o(f"v_mul_f32 v{OA+i}, v{OA+i}, v3")
    for i in range(4): o(f"v_cvt_pk_bf16_f32 v{SX+i}, v{OA+2*i}, v{OA+2*i+1}")
    o(f"buffer_store_dwordx4 {vr(SX,4)}, v1, s[20:23], s30 offen")
    for i in range(8): o(f"v_mul_f32 v{OB+i}, v{OB+i}, v{MB}")
    for i in range(4): o(f"v_cvt_pk_bf16_f32 v{SX+4+i}, v{OB+2*i}, v{OB+2*i+1}")
    o(f"buffer_store_dwordx4 {vr(SX+4,4)}, v1, s[20:23], s31 offen")
    phase3(o)
    stamp_out(o, 0)
    o("s_endpgm")

    o.lab("P2_AUX")
    if OPT.get("YP", 2) == 1: o("s_setprio 0")
    kgen(o)
    if OPT.get("YP", 2) == 2: o("s_setprio 0")
    srd(o, 16, 10, 2048*2048)
    o(f"""
    s_sub_u32 s3, s3, 4             ; w'
    s_lshl_b32 s31, s3, 10
    s_add_u32 m0, s31, 16384
    s_lshl_b32 s30, s27, 14
    s_add_u32 s30, s30, s31
    s_add_u32 s30, s30, 16384
    s_and_b32 s30, s30, 0x1ffff
    v_mov_b32 v8, {CHL + L_CNT}
    v_mov_b32 v12, 0
    v_mov_b32 v13, 0
    v_mov_b32 v14, 0
    v_mov_b32 v15, 0
    ds_write_b128 v8, v[12:15]
    ds_write_b128 v8, v[12:15] offset:16
    ds_write_b128 v8, v[12:15] offset:32
    v_lshlrev_b32 v5, 3, v0
    s_waitcnt lgkmcnt(0)
    """)
    stamp(o, 5)
    o("s_barrier")
    poll(o, "P2_POLA", 5, 36, 6, 140)
    xstamp(o, 4)
    def kvdma(n):
        for i in range(n): kvpiece(o, 4096)
    kvdma(8)
    o(f"""
    s_lshl_b32 s26, s24, 5
    s_add_u32 s26, s26, s25
    s_lshl_b32 s32, s26, 2
    s_lshr_b32 s33, s3, 1           ; ch'
    s_and_b32 s34, s3, 1
    v_mov_b32 v8, s32
    global_load_dword v16, v8, s[8:9]
    """)
    kvdma(_early())
    gsum(o)
    o(f"""
    s_waitcnt vmcnt({1 + _early()}) lgkmcnt(0)
    s_barrier
    s_mul_i32 s35, s33, 1536
    s_add_u32 s35, s35, {CHL + L_GC}
    v_lshl_add_u32 v5, v0, 3, s35
    v_lshl_add_u32 v6, v0, 2, s35
    v_mov_b32 v7, s35
    ds_read_b64 v[50:51], v5
    ds_read_b32 v52, v5 offset:8
    ds_read2_b32 v[54:55], v6 offset0:128 offset1:129
    ds_read2_b32 v[56:57], v6 offset0:192 offset1:193
    v_add_u32 v6, 1024, v6
    ds_read2_b32 v[58:59], v6 offset0:0 offset1:1
    ds_read_u16 v60, v7
    v_lshlrev_b32 v5, 3, v0
    """)
    kvdma(20 - _early())
    srd(o, 48, 6, 2048*1024)
    o(f"""
    v_lshlrev_b32 v9, 10, v0
    s_lshl_b32 s36, s3, 19
    s_add_u32 s36, s36, s32
    """)
    G1 = OPT.get("G1", 7)
    o("v_mov_b32 v106, v9")
    o("s_lshl_b32 s46, s3, 3")
    o("s_add_u32 s46, s46, s25")
    def gath(a_, b_):
        for i in range(a_, b_):
            o(f"s_add_u32 s47, s46, {i}")
            o("s_and_b32 s47, s47, 31")
            o(f"s_lshl_b32 s{52+i}, s47, 7")
            o("s_lshl_b32 s47, s47, 16")
            o("s_add_u32 s47, s47, s32")
            o(f"buffer_load_dword v{96+i}, v106, s[48:51], s47 offen")
    srd(o, 12, 4, 512*1024)
    gath(0, G1)
    o(f"""
    v_lshlrev_b32 v105, 1, v0
    v_sub_u32 v105, {CHL + L_UT + 4094}, v105
    v_and_b32 v2, 15, v0
    v_lshrrev_b32 v3, 4, v0
    s_lshl_b32 s27, s34, 1
    s_add_u32 s27, s27, s33
    s_lshl_b32 s27, s27, 1
    v_lshlrev_b32 v4, 2, v3
    v_lshl_add_u32 v4, v2, 4, v4    ; 16a+4g
    v_lshlrev_b32 v9, 1, v4
    v_sub_u32 v9, {CHL + L_UT + 4088}, v9
    v_lshlrev_b32 v4, 11, v4        ; *2048 (out)
    v_and_b32 v10, 1, v2
    v_mul_u32_u24 v17, {L_E}, v10
    v_add_u32 v11, v2, v10
    v_lshl_add_u32 v17, v11, 1, v17
    v_lshl_add_u32 v17, v3, 4, v17
    s_mul_i32 s35, s33, {L_C1}
    s_lshl_b32 s36, s34, 8
    s_add_u32 s35, s35, s36
    s_add_u32 s35, s35, {CHL}
    v_add_u32 v17, s35, v17
    v_add_u32 v18, 1024, v17
    v_add_u32 v19, 2048, v17
    v_add_u32 v20, 3072, v17
    v_lshlrev_b32 v10, 5, v2
    v_lshlrev_b32 v11, 4, v3
    v_sub_u32 v11, v11, v10
    s_mul_i32 s35, s33, {L_U1}
    s_add_u32 s35, s35, s36
    s_add_u32 s35, s35, {CHL + L_UT + 480}
    v_add_u32 v23, s35, v11
    s_lshl_b32 s35, s27, 9
    v_subrev_u32 v22, s35, v9
    v_subrev_u32 v21, 512, v22
    s_mul_i32 s38, s33, {L_C1}
    s_xor_b32 s39, s34, 1
    s_mul_i32 s39, s39, {L_E}
    s_add_u32 s38, s38, s39
    s_add_u32 s38, s38, {CHL}
    v_add_u32 v5, s38, v5           ; +8t
    v_lshl_add_u32 v6, v0, 4, s38   ; +16t
    v_lshl_add_u32 v7, v0, 5, s38   ; +32t
    v_lshl_add_u32 v8, v0, 2, s38   ; +4t
    s_mul_i32 s39, s33, {L_U1}
    s_add_u32 s39, s39, {CHL + L_UT + 4096}
    v_lshl_add_u32 v10, v0, 3, s39
    s_mov_b32 s40, 0x01000100
    s_mov_b32 s41, 0x03020302
    v_mov_b32 v92, 0
    v_mov_b32 v93, 0
    v_cmp_eq_u32 s[42:43], 7, v0
    s_waitcnt lgkmcnt(0)
    s_cmp_eq_u32 s34, 0
    s_cbranch_scc0 K2_XO
    v_perm_b32 v64, v54, v54, s40
    v_alignbit_b32 v65, v55, v54, 16
    v_perm_b32 v68, v56, v56, s40
    v_mov_b32 v69, v56
    v_perm_b32 v70, v56, v56, s41
    v_perm_b32 v71, v57, v57, s40
    v_perm_b32 v76, v58, v58, s40
    v_mov_b32 v77, v76
    v_mov_b32 v78, v58
    v_perm_b32 v79, v58, v58, s41
    v_mov_b32 v80, v79
    v_mov_b32 v81, v79
    v_perm_b32 v82, v59, v59, s40
    v_mov_b32 v83, v82
    v_mov_b32 v60, 0
    ds_write_b64 v10, v[92:93]
    s_branch K2_XW
    """)
    o.lab("K2_XO")
    o(f"""
    v_alignbit_b32 v50, v51, v50, 16
    v_alignbit_b32 v51, v52, v51, 16
    v_mov_b32 v64, v54
    v_perm_b32 v65, v55, v55, s40
    v_perm_b32 v68, v56, v56, s40
    v_perm_b32 v69, v56, v56, s41
    v_alignbit_b32 v70, v57, v56, 16
    v_perm_b32 v71, v57, v57, s40
    v_perm_b32 v76, v58, v58, s40
    v_mov_b32 v77, v76
    v_perm_b32 v78, v58, v58, s41
    v_mov_b32 v79, v78
    v_mov_b32 v80, v78
    v_alignbit_b32 v81, v59, v58, 16
    v_perm_b32 v82, v59, v59, s40
    v_mov_b32 v83, v82
    v_lshlrev_b32 v60, 16, v60
    v_cndmask_b32 v60, 0, v60, s[42:43]
    """)
    o.lab("K2_XW")
    o(f"""
    ds_write_b64 v5, v[50:51] offset:32
    ds_write_b64 v5, v[64:65] offset:544
    ds_write_b128 v6, v[68:71] offset:1056
    ds_write_b128 v7, v[76:79] offset:2080
    ds_write_b128 v7, v[80:83] offset:2096
    s_mov_b64 exec, 0xff
    ds_write_b32 v8, v60
    s_mov_b64 exec, -1
    """)
    o(f"""
    s_waitcnt vmcnt({G1})
    s_barrier
    """)
    xstamp(o, 0)
    gath(G1, 8)
    for i in range(8):
        o(f"v_subrev_u32 v{107 + (i & 1)}, s{52+i}, v105")
        o(f"s_waitcnt vmcnt({7 - i})")
        o(f"ds_write_b16 v{107 + (i & 1)}, v{96+i}")
        o(f"ds_write_b16_d16_hi v{107 + (i & 1)}, v{96+i} offset:{L_U1}")
    xstamp(o, 1)
    if True:
        o(f"""
        s_cmp_ge_u32 s3, 1
        s_cbranch_scc1 K2_NWU
        s_lshr_b32 s36, s25, 2
        s_lshl_b32 s36, s36, 16
        s_lshr_b32 s45, s24, 2
        s_lshl_b32 s45, s45, 2
        s_and_b32 s44, s25, 3
        s_add_u32 s45, s45, s44
        s_lshl_b32 s45, s45, 7
        s_add_u32 s36, s36, s45
        buffer_load_dword v110, v106, s[12:15], s36 offen
        """)
        o.lab("K2_NWU")

    o(f"""
    s_waitcnt lgkmcnt(0)
    s_barrier
    s_waitcnt vmcnt(0)
    """)
    xstamp(o, 2)
    if OPT.get("CPRIO"): o(f"s_setprio {OPT['CPRIO']}")
    FB, CA = 24, 152
    def creads(ph):
        b = FB + 64 * (ph & 1)
        L = []
        for p in range(8):
            off = 16 * ph + 128 * (p & 1)
            L.append(f"ds_read2_b32 {vr(b+4*p,2)}, v{17 + (p >> 1)} offset0:{off} offset1:{off+1}")
            L.append(f"ds_read2_b32 {vr(b+4*p+2,2)}, v{17 + (p >> 1)} offset0:{off+2} offset1:{off+3}")
            L.append(f"ds_read_b128 {vr(b+32+4*p,4)}, v23 offset:{512*(7-p) + 64*ph}")
        return L
    for t in creads(0): o(t)
    o(f"""
    s_lshl_b32 s35, s3, 12
    s_add_u32 s35, s35, {CHL}
    v_add_u32 v184, s35, v1
    v_xor_b32 v185, 4096, v184
    s_lshl_b32 s35, s3, 11
    s_add_u32 s35, s35, {CHL + 16384}
    v_add_u32 v190, s35, v1
    v_xor_b32 v191, 4096, v190
    v_lshlrev_b32 v6, 16, v16
    v_and_b32 v7, 0xffff0000, v16
    s_lshl_b32 s44, s33, 2
    s_add_u32 s44, s44, {CHL + L_CNT + 20}
    s_lshl_b32 s45, s34, 2
    s_add_u32 s45, s45, {CHL + L_CNT + 28}
    s_lshl_b32 s40, s27, 19
    s_add_u32 s40, s40, s32
    s_add_u32 s40, s40, 1024
    s_add_u32 s41, s40, 4096
    s_add_u32 s42, s40, {1 << 19}
    s_add_u32 s43, s41, {1 << 19}
    ds_read_b64 v[8:9], v22
    ds_read_b64 v[10:11], v22 offset:{L_U1}
    ds_read_b64 v[12:13], v21
    ds_read_b64 v[14:15], v21 offset:{L_U1}
    s_waitcnt lgkmcnt(0)
    """)
    for ph in range(4):
        b = FB + 64 * (ph & 1)
        R = creads(ph + 1) if ph < 3 else []
        M = [(p, q) for q in range(8) for p in range(8 - q)]
        for i, (p, q) in enumerate(M):
            c = vr(CA + 4 * (p + q), 4)
            first = (ph == 0 and q == 0)
            o(f"v_mfma_f32_16x16x32_bf16 {c}, {vr(b+4*p,4)}, {vr(b+32+4*q,4)}, {0 if first else c}")
            if i < len(R): o(R[i])
        if ph < 3: o("s_waitcnt lgkmcnt(0)")
    xstamp(o, 3)
    swsync(o, "CV_SA", 16, 186, 187)
    RR, TT, FF = 24, 40, 56
    o("s_cmp_eq_u32 s34, 0")
    o("s_cbranch_scc0 CV_H1")
    for j in range(4): o(f"ds_write_b128 v184, {vr(CA+16+4*j,4)} offset:{1024*j}")
    for i in range(16): o(f"v_mov_b32 v{RR+i}, v{CA+i}")
    o("s_branch CV_H2")
    o.lab("CV_H1")
    for j in range(4): o(f"ds_write_b128 v184, {vr(CA+4*j,4)} offset:{1024*j}")
    for i in range(16): o(f"v_mov_b32 v{RR+i}, v{CA+16+i}")
    o.lab("CV_H2")
    swsync(o, "CV_SB", 0, 186, 187, cnt=2, base="s44")
    for j in range(4): o(f"ds_read_b128 {vr(TT+4*j,4)}, v185 offset:{1024*j}")
    o("s_waitcnt lgkmcnt(0)")
    o("s_cmp_eq_u32 s33, 0")
    o("s_cbranch_scc0 CV_C1")
    for i in range(8): o(f"v_add_f32 v{RR+8+i}, v{RR+8+i}, v{TT+8+i}")
    for j in range(2): o(f"ds_write_b128 v190, {vr(RR+8+4*j,4)} offset:{1024*j}")
    for i in range(8): o(f"v_add_f32 v{FF+i}, v{RR+i}, v{TT+i}")
    swsync(o, "CV_SC0", 0, 186, 187, cnt=2, base="s45")
    for j in range(2): o(f"ds_read_b128 {vr(FF+8+4*j,4)}, v191 offset:{1024*j}")
    o("s_branch CV_C2")
    o.lab("CV_C1")
    for i in range(8): o(f"v_add_f32 v{RR+i}, v{RR+i}, v{TT+i}")
    for j in range(2): o(f"ds_write_b128 v190, {vr(RR+4*j,4)} offset:{1024*j}")
    for i in range(8): o(f"v_add_f32 v{FF+8+i}, v{RR+8+i}, v{TT+8+i}")
    swsync(o, "CV_SC1", 0, 186, 187, cnt=2, base="s45")
    for j in range(2): o(f"ds_read_b128 {vr(FF+4*j,4)}, v191 offset:{1024*j}")
    o.lab("CV_C2")
    o("s_waitcnt lgkmcnt(0)")
    for blk in range(2):
        for r in range(4):
            for c, dd in ((0, 6), (1, 7)):
                src = 8 + 4 * blk + 2 * c + (1 - (r >> 1))
                y = FF + 8 * c + 4 * blk + r
                if r & 1: o(f"v_lshlrev_b32 v{188+c}, 16, v{src}")
                else:     o(f"v_and_b32 v{188+c}, 0xffff0000, v{src}")
                o(f"v_fma_f32 v{y}, v{188+c}, v{dd}, v{y}")
            o(f"v_cvt_pk_bf16_f32 v{192+4*blk+r}, v{FF+4*blk+r}, v{FF+8+4*blk+r}")
            o(f"buffer_store_dword v{192+4*blk+r}, v4, s[16:19], s{40 + (r >> 1) + 2*blk} offen offset:{2048*(r&1)}{['',' nt',' sc0'][OPT.get('CSF',0)]}")
    if OPT.get("WBL2"):
        o(f"""
        s_cmp_lg_u32 s3, 0
        s_cbranch_scc1 K_END
        s_and_b32 s38, s25, {OPT['WBL2'] - 1}
        s_cmp_lg_u32 s38, 0
        s_cbranch_scc1 K_END
        s_waitcnt vmcnt(0)
        buffer_wbl2 sc1
        s_waitcnt vmcnt(0)
        """)
    stamp_out(o, 0, wadd=4)
    o.lab("K_END")
    o("s_endpgm")


K2_EARLY = 6
def _early(): return OPT.get("EARLY", 6)
def main(out):
    hdr = open(f"cdna_kernels/{NAME}.s.ref").read().split("; @launch")[0]
    o = A()
    o.raw(hdr.rstrip())
    o.raw(f"; @launch grid=(256,1,1) block=(512,1,1) lds={LDS_ALL}")
    o.raw('.amdgcn_target "amdgcn-amd-amdhsa--gfx950"\n.text')
    kstart(o, NAME + "_kernel")
    rstamp(o, 0); stamp(o, 1)
    o("s_cmp_ge_u32 s2, 256")
    o("s_cbranch_scc1 K_END")
    phase1(o)
    phase2(o)
    o.raw('.section .rodata,"a"')
    o.raw(kdesc(NAME + "_kernel", 256))
    txt = o.text()
    txt = "\n".join((l + " sc1") if l.strip().startswith("buffer_store") and "s80" not in l and "s[16:19]" not in l else l for l in txt.split("\n"))
    open(out, "w").write(txt)

if __name__ == "__main__":
    if "--stamp" in sys.argv:
        STAMP = True; sys.argv.remove("--stamp")
    for a_ in list(sys.argv):
        if a_.startswith("-D"):
            kk, _, vv = a_[2:].partition("="); OPT[kk] = int(vv or 1); sys.argv.remove(a_)
    main(sys.argv[1] if len(sys.argv) > 1 else f"cdna_kernels/{NAME}.s")
```

```python
import sys, math, struct

NAME = "concat_heads__softmax_full_mha__ssm_conv_s4__prompt"

QF_OFF  = 0
KV_OFF  = 2 << 20
OF_OFF  = 6 << 20
WOF_OFF = 8 << 20
UT_OFF  = 9 << 20
GC_OFF  = 11 << 20
GC_SZ   = 1536
FL2_OFF = 12 << 20
FL1_OFF = (12 << 20) + (1 << 17)
EP_OFF  = 13 << 20
SPIN_MAX = 400000
ST1 = ""
WS_USED = 32 << 20

def f2u(x): return struct.unpack('<I', struct.pack('<f', x))[0]
LOG2E = 1.4426950408889634

class A:
    def __init__(s): s.l = []
    def __call__(s, t):
        for x in t.split("\n"):
            x = x.strip()
            if x: s.l.append("    " + x)
    def lab(s, n): s.l.append(n + ":")
    def raw(s, t): s.l.append(t)
    def text(s): return "\n".join(s.l) + "\n"

def vr(a, n): return f"v[{a}:{a+n-1}]" if n > 1 else f"v{a}"
def sr(a, n): return f"s[{a}:{a+n-1}]" if n > 1 else f"s{a}"

def srd(o, d, b, size, add=0):
    if add:
        o(f"s_add_u32 s{d}, s{b}, {add:#x}")
        o(f"s_addc_u32 s{d+1}, s{b+1}, 0")
    else:
        o(f"s_mov_b32 s{d}, s{b}")
        o(f"s_mov_b32 s{d+1}, s{b+1}")
    o(f"s_mov_b32 s{d+2}, {size:#x}")
    o(f"s_mov_b32 s{d+3}, 0x00020000")

class Sched:
    def __init__(s, pace=14): s.ops = []; s.pace = pace
    def add(s, text, defs, uses, lat=8, cost=4, trans=False):
        s.ops.append(dict(t=text, d=set(defs), u=set(uses), lat=lat, cost=cost, tr=trans))
    def emit(s, o, hook=None):
        ops = s.ops; n = len(ops)
        pred = [[] for _ in ops]
        lastw, readers = {}, {}
        for i, op in enumerate(ops):
            for r in op['u']:
                if r in lastw: pred[i].append((lastw[r], ops[lastw[r]]['lat']))
            for r in op['d']:
                if r in lastw: pred[i].append((lastw[r], 4))
                for j in readers.get(r, []):
                    if j != i: pred[i].append((j, 8))
            for r in op['u']: readers.setdefault(r, []).append(i)
            for r in op['d']: lastw[r] = i; readers[r] = []
        succ = [[] for _ in ops]
        for i in range(n):
            for j, l in pred[i]: succ[j].append((i, l))
        cp = [0] * n
        for i in reversed(range(n)):
            cp[i] = ops[i]['cost'] + max([l + cp[k] for k, l in succ[i]], default=0)
        done, when, t, last, lastwr = set(), {}, 0, None, -99
        while len(done) < n:
            cand = [i for i in range(n) if i not in done and all(j in done for j, _ in pred[i])]
            rdy = {i: max([when[j] + l for j, l in pred[i]], default=0) for i in cand}
            now = [i for i in cand if rdy[i] <= t]
            wr = [k for k in now if ops[k]['t'].startswith('ds_write')]
            cv = [k for k in now if ops[k]['t'].startswith('v_cvt_pk') and any(ops[z]['t'].startswith('ds_write') for z, _ in succ[k])]
            oth = [k for k in now if k not in wr]
            if wr and (t - lastwr >= s.pace or not oth): i = wr[0]; lastwr = t
            elif cv and len(wr) < 2: i = cv[0]
            elif oth: i = max(oth, key=lambda k: cp[k])
            else: i = min(cand, key=lambda k: (rdy[k], -cp[k]))
            if last is not None and ops[last]['tr'] and not ops[i]['tr'] and (ops[last]['d'] & ops[i]['u']): o("s_nop 0")
            t = max(t, rdy[i]); when[i] = t; t += ops[i]['cost']; done.add(i); last = i
            o(ops[i]['t'])
            if hook and t >= hook[0] and not ops[i]['tr']: hook[1](); hook = None
        return t

STAMP = False
FINE = False
FINE2 = False
FUSE23 = False
OPT = {}
STFLAG = 'sc1'
ST_OFF = 16 << 20
def stamp(o, i):
    if OPT.get("PROBE"): o(f"s_memrealtime s[{64+2*i}:{65+2*i}]"); return
    if OPT.get("DBG"): o(f"s_memrealtime s[{64+2*i}:{65+2*i}]"); return
    if STAMP: o(f"s_memtime s[{64+2*i}:{65+2*i}]")
def xstamp(o, i):
    if OPT.get("PROBE"): o(f"s_memrealtime s[{84+2*i}:{85+2*i}]"); return
    if STAMP: o(f"s_memtime s[{84+2*i}:{85+2*i}]")
def rstamp(o, i):
    if STAMP: o(f"s_memrealtime s[{64+2*i}:{65+2*i}]")
def stamp_out(o, kid, wave_sgpr="s3", wadd=0):
    if OPT.get("PROBE"):
        if wadd: return
        a_, b_ = OPT["PA"], OPT["PB"]
        o("s_waitcnt vmcnt(0)")
        o("s_memrealtime s[78:79]")
        o("s_waitcnt lgkmcnt(0)")
        o(f"s_sub_u32 s80, s{b_}, s{a_}")
        o(f"s_mul_i32 s80, s80, {OPT['PROBE']}")
        o.lab("PROBE_L")
        o("s_memrealtime s[82:83]")
        o("s_waitcnt lgkmcnt(0)")
        o("s_sub_u32 s81, s82, s78")
        o("s_cmp_lt_u32 s81, s80")
        o("s_cbranch_scc1 PROBE_L")
        return
    if OPT.get("DBG"):
        lab = f"DBG_{kid}_{len(o.l)}"
        o("s_load_dwordx2 s[82:83], s[0:1], 104")
        o("s_waitcnt vmcnt(0)")
        o("s_memrealtime s[78:79]")
        o("s_and_b32 s80, s2, 7")
        o(f"s_add_u32 s80, s80, {wave_sgpr}")
        o("s_waitcnt lgkmcnt(0)")
        o("s_cmp_lg_u32 s80, 0")
        o(f"s_cbranch_scc1 {lab}")
        o(f"s_add_u32 s82, s82, {(2-kid)*512}")
        o("s_addc_u32 s83, s83, 0")
        o("s_mov_b64 exec, 1")
        o("s_not_b32 s66, s66")
        o("v_mov_b32 v2, 0")
        sl = {0: [(66, 0), (78, 1), (68, 6), (70, 7)], 1: [(66, 2), (78, 3), (68, 8), (74, 9)], 2: [(66, 4), (78, 5), (68, 10), (70, 11)]}[kid]
        if wadd: sl = [(78, 12), (70, 13)]
        for q, (sg, slot) in enumerate(sl):
            o(f"v_mov_b32 v{4+q}, s{sg}")
            o(f"global_atomic_umax v2, v{4+q}, s[82:83] offset:{4*slot}")
        o.lab(lab)
        return
    if not STAMP: return
    o("s_memrealtime s[78:79]")
    o("s_waitcnt lgkmcnt(0)")
    o("s_mov_b64 exec, 1")
    o(f"s_lshl_b32 s80, s2, 4")
    o(f"s_add_u32 s80, s80, {wave_sgpr}")
    o(f"s_add_u32 s80, s80, {kid*8192 + wadd}")
    o(f"s_lshl_b32 s80, s80, 7")
    o(f"s_add_u32 s80, s80, {ST_OFF:#x}")
    o("s_waitcnt vmcnt(0)")
    o("s_memtime s[76:77]")
    o("s_waitcnt lgkmcnt(0)")
    for i in range(16): o(f"v_mov_b32 v{4+i}, s{64+i}")
    for i in range(16): o(f"v_mov_b32 v{20+i}, s{84+i}")
    o("v_mov_b32 v2, 0")
    for q in range(8): o(f"buffer_store_dwordx4 v[{4+4*q}:{7+4*q}], v2, s[20:23], s80 offen offset:{16*q}")

def kstart(o, name):
    o.raw(f".globl {name}\n.p2align 8\n.type {name},@function")
    o.lab(name)

def kdesc(name, nv, ns=102):
    return f""".p2align 6
.amdhsa_kernel {name}
  .amdhsa_next_free_vgpr {nv}
  .amdhsa_next_free_sgpr {ns}
  .amdhsa_accum_offset {(nv+3)//4*4}
  .amdhsa_group_segment_fixed_size 0
  .amdhsa_kernarg_size 120
  .amdhsa_user_sgpr_count 2
  .amdhsa_user_sgpr_kernarg_segment_ptr 1
  .amdhsa_system_sgpr_workgroup_id_x 1
.end_amdhsa_kernel
"""


STG = 32768
CHL = 131072
L_E, L_C1, L_UT, L_U1 = 4160, 8320, 16640, 4608
L_GC = 26624
L_CNT = L_GC + 3072
LDS_ALL = CHL + L_CNT + 64
KB = 16384
KS = 15504

def poll(o, name, vaddr, soff, nonce, tmp, first=None):
    o("s_mov_b32 s39, 0")
    if first:
        o(f"buffer_load_dwordx2 {vr(tmp,2)}, v{vaddr}, s[20:23], s{soff} offen sc1")
        o("s_waitcnt vmcnt(0)")
        first()
        o(f"s_branch {name}_C")
    o.lab(name)
    o(f"""
    s_sleep {OPT.get('PSL', 2)}
    buffer_load_dwordx2 {vr(tmp,2)}, v{vaddr}, s[20:23], s{soff} offen sc1
    s_waitcnt vmcnt(0)
    """)
    o.lab(name + "_C")
    o(f"""
    v_cmp_ne_u64 vcc, {vr(tmp,2)}, {vr(nonce,2)}
    s_add_u32 s39, s39, 1
    s_cmp_ge_u32 s39, {SPIN_MAX}
    s_cbranch_scc1 {name}_D
    s_cbranch_vccnz {name}
    """)
    o.lab(name + "_D")

def sw_arrive(o, off, va, vt, base=CHL + L_CNT, restore="-1"):
    o(f"""
    v_mov_b32 v{va}, {base}
    v_mov_b32 v{vt}, 1
    s_mov_b64 exec, 1
    s_waitcnt lgkmcnt(0)
    ds_add_u32 v{va}, v{vt} offset:{off}
    s_mov_b64 exec, {restore}
    """)
def sw_wait(o, name, off, va, vt, cnt=4):
    o("s_mov_b64 exec, 1")
    o("s_mov_b32 s39, 0")
    o.lab(name)
    o(f"""
    ds_read_b32 v{vt}, v{va} offset:{off}
    s_add_u32 s39, s39, 1
    s_waitcnt lgkmcnt(0)
    v_cmp_gt_u32 vcc, {cnt}, v{vt}
    s_cmp_ge_u32 s39, {SPIN_MAX*8}
    s_cbranch_scc1 {name}_D
    s_cbranch_vccz {name}_D
    s_sleep {1 if name.startswith("CV") else 0}
    s_branch {name}
    """)
    o.lab(name + "_D")
    o("s_mov_b64 exec, -1")
def swsync(o, name, off, va, vt, cnt=4, base=CHL + L_CNT):
    sw_arrive(o, off, va, vt, base, "1")
    sw_wait(o, name, off, va, vt, cnt)

def phase1(o):
    o(f"""
    s_load_dwordx4 s[4:7], s[0:1], 0
    v_readfirstlane_b32 s3, v0
    v_and_b32 v0, 63, v0
    s_and_b32 s24, s2, 7
    s_lshr_b32 s25, s2, 3
    s_lshr_b32 s3, s3, 6
    s_and_b32 s26, s2, 6
    s_lshl_b32 s26, s26, 2
    s_and_b32 s31, s25, 7
    s_add_u32 s26, s26, s31         ; mt (0..31)
    s_lshr_b32 s30, s2, 6
    s_and_b32 s27, s2, 1
    s_lshl_b32 s27, s27, 2
    s_add_u32 s27, s27, s30         ; hg (0..7)
    s_lshl_b32 s30, s30, {1 if OPT.get("ROT", 4) == 8 else 0}
    s_add_u32 s31, s31, s30
    s_mul_i32 s31, s31, {8 // OPT.get("ROT", 4) if OPT.get("ROT", 4) > 1 else 0}
    s_lshl_b32 s53, s3, 12
    s_lshl_b32 s50, s26, 16
    s_lshl_b32 s51, s3, 15
    s_add_u32 s50, s50, s51
    s_sub_u32 s48, s3, 2
    s_lshr_b32 s49, s48, 1
    s_lshl_b32 s49, s49, 10
    s_and_b32 s48, s48, 1
    s_mul_i32 s48, s48, {32*3072}
    s_add_u32 s48, s48, s49
    s_lshl_b32 s49, s27, 7
    s_add_u32 s48, s48, s49
    s_cmp_lt_u32 s3, 2
    s_cselect_b32 s50, s50, s48
    s_cselect_b32 s55, 1, 3
    s_mul_i32 s55, s55, 1024
    s_mul_i32 s51, s55, 8
    s_mul_i32 s52, s55, 64
    s_mul_i32 s14, s55, 512
    s_cselect_b32 s52, 128, s52
    s_cselect_b32 s14, {2048*1024}, s14
    s_cselect_b32 s48, 3, 1
    s_cselect_b32 s49, 0, 1
    v_lshrrev_b32 v3, 4, v0
    v_lshrrev_b32 v10, 3, v0
    v_and_b32 v76, s48, v3
    v_lshlrev_b32 v76, s49, v76
    v_and_b32 v11, 7, v0
    v_xor_b32 v76, v76, v11
    v_mul_u32_u24 v77, s55, v10
    v_lshl_add_u32 v76, v76, 4, v77
    v_xor_b32 v77, 64, v76
    s_mov_b32 s15, 0x00020000
    s_waitcnt lgkmcnt(0)
    s_cselect_b32 s12, s4, s6
    s_cselect_b32 s13, s5, s7
    """)
    ACC, FR, FR1 = 12, 36, 180
    def dma_l(n):
        L = []
        for q in range(4):
            if q == 0:
                t = f"s_add_u32 m0, s53, {(n & 3) * STG}\ns_add_u32 s54, s31, {n}\ns_and_b32 s54, s54, 7\ns_mul_i32 s54, s54, s52\ns_add_u32 s54, s54, s50\n"
            else:
                t = "s_add_u32 m0, m0, 1024\ns_add_u32 s54, s54, s51\n"
            L.append(t + f"buffer_load_dwordx4 v{76 + (q & 1)}, s[12:15], s54 offen lds")
        return L
    def dma(n):
        for t in dma_l(n): o(t)
    PRE, LOOK = OPT.get("K1PRE", 2), OPT.get("K1LOOK", 3)
    P = 80
    PF = 1 if OPT.get("PF2", 0) else 0
    def pf():
        o(f"""
        s_lshr_b32 s60, s25, 3
        s_and_b32 s61, s25, 3
        s_lshr_b32 s62, s25, 2
        s_xor_b32 s62, s62, s3
        s_and_b32 s62, s62, 1
        s_lshr_b32 s63, s51, 3
        s_cmp_lt_u32 s3, 2
        s_cselect_b32 s60, s60, s61
        s_cselect_b32 s62, 0, s62
        s_and_b32 s61, s60, 2
        s_add_u32 s60, s60, s61
        s_add_u32 s60, s60, {OPT.get("PF2", 0)}
        s_mul_i32 s60, s60, s52
        s_add_u32 s60, s60, s50
        v_mul_u32_u24 v78, s63, v0
        s_cmp_eq_u32 s62, 0
        s_cselect_b32 exec_lo, -1, 1
        s_mov_b32 exec_hi, 0
        buffer_load_dword v89, v78, s[12:15], s60 offen
        s_mov_b64 exec, -1
        """)
    if OPT.get("ST0"): xstamp(o, 5)
    dma(0)
    if PF and OPT.get('PFPOS'): pf()
    o(f"""
    s_load_dwordx2 s[28:29], s[0:1], 112
    s_load_dwordx16 s[32:47], s[0:1], 32
    v_and_b32 v2, 15, v0
    s_and_b32 s30, s3, 1            ; tg
    s_lshr_b32 s48, s3, 1           ; hq
    s_barrier
    s_cmp_lt_u32 s3, 4
    s_cbranch_scc1 P1_NP
    {"s_setprio 1" if OPT.get("YP", 2) else ""}
    s_getpc_b64 s[8:9]
    """)
    o.lab("P1_PC")
    o(f"""
    s_and_b32 s55, s3, 3
    s_lshl_b32 s55, s55, 12
    v_lshl_add_u32 v78, v0, 6, s55
    v_min_u32 v78, K_END-P1_PC, v78
    global_load_dword v87, v78, s[8:9]
    s_lshl_b32 s56, s24, 5
    s_add_u32 s56, s56, s25
    s_lshl_b32 s56, s56, 1
    s_and_b32 s55, s48, 1
    s_add_u32 s56, s56, s55
    s_lshl_b32 s58, s56, 8
    s_lshl_b32 s59, s30, 7
    s_add_u32 s58, s58, s59
    v_lshl_add_u32 v10, v0, 1, s58
    s_lshl_b32 s59, s56, 1
    v_mov_b32 v11, s59
    s_waitcnt lgkmcnt(0)
    global_load_ushort v{P+6}, v11, s[44:45]
    global_load_ushort v{P}, v10, s[32:33]
    global_load_ushort v{P+1}, v10, s[34:35]
    global_load_ushort v{P+2}, v10, s[36:37]
    global_load_ushort v{P+3}, v10, s[38:39]
    global_load_ushort v{P+4}, v10, s[40:41]
    global_load_ushort v{P+5}, v10, s[42:43]
    """)
    o.lab("P1_NP")
    for n in range(1, PRE): dma(n)
    if PF and not OPT.get('PFPOS'): pf()
    if OPT.get("ST0"): xstamp(o, 6)
    o("s_waitcnt lgkmcnt(0)")
    if OPT.get("WSB"):
        o(f"s_add_u32 s28, s28, {OPT['WSB'] << 20:#x}")
        o("s_addc_u32 s29, s29, 0")
    srd(o, 20, 28, WS_USED)
    o(f"""
    s_add_u32 s8, s28, {EP_OFF:#x}
    s_addc_u32 s9, s29, 0
    s_load_dwordx2 s[100:101], s[8:9], 0
    v_lshlrev_b32 v1, 4, v0
    v_lshrrev_b32 v78, 1, v2
    v_xor_b32 v78, v78, v3
    v_lshlrev_b32 v78, 4, v78
    v_lshl_add_u32 v4, v2, 7, v78
    s_lshl_b32 s49, s30, 12
    v_add_u32 v4, s49, v4
    v_xor_b32 v5, 64, v4
    v_add_u32 v6, {2*STG}, v4
    v_add_u32 v7, {2*STG}, v5
    v_bfe_u32 v78, v0, 2, 2
    v_lshl_add_u32 v78, v3, 3, v78
    v_lshlrev_b32 v78, 7, v78
    v_bfe_u32 v79, v0, 3, 2
    v_xor_b32 v79, s48, v79
    v_lshl_add_u32 v78, v79, 5, v78
    v_and_b32 v79, 3, v0
    v_lshl_add_u32 v8, v79, 3, v78
    v_add_u32 v8, 8192, v8
    v_add_u32 v9, {2*STG}, v8
    """)
    o.lab("P1_NW")
    if OPT.get("PT"):
        o(f"""
        s_cmp_lg_u32 s3, {OPT.get("PTW", 3)}
        s_cbranch_scc1 P1_NT
        s_load_dwordx4 s[60:63], s[0:1], 16
        s_load_dwordx2 s[10:11], s[0:1], 96
        v_lshlrev_b32 v78, 21, v0
        v_add_u32 v78, 0x1fff80, v78
        s_mov_b64 exec, 0x7f
        buffer_load_dword v87, v78, s[20:23], 0 offen
        v_lshlrev_b32 v78, 21, v0
        s_waitcnt lgkmcnt(0)
        s_mov_b64 exec, 3
        global_load_dword v87, v78, s[10:11]
        s_mov_b64 exec, 1
        global_load_dword v87, v78, s[60:61]
        global_load_dword v87, v78, s[62:63]
        global_load_dword v87, v78, s[46:47]
        s_mov_b64 exec, -1
        """)
        o.lab("P1_NT")
    for i in range(24): o(f"v_mov_b32 v{ACC+i}, 0")
    def reads_l(n):
        xa = (4, 5) if (n & 3) < 2 else (6, 7)
        wa = 8 if (n & 3) < 2 else 9
        so = (n & 1) * STG
        L = []
        for ks in range(2):
            b = (FR1 if n & 1 else FR) + 20 * ks
            L.append(f"ds_read_b128 {vr(b,4)}, v{xa[ks]} offset:{so}")
            L.append(f"ds_read_b128 {vr(b+4,4)}, v{xa[ks]} offset:{so + 2048}")
            for p in range(3):
                L.append(f"ds_read_b64_tr_b16 {vr(b+8+4*p,2)}, v{wa} offset:{so + p*8192 + ks*4096}")
                L.append(f"ds_read_b64_tr_b16 {vr(b+10+4*p,2)}, v{wa} offset:{so + p*8192 + ks*4096 + 512}")
        return L
    o(f"""
    s_cmp_lt_u32 s3, 4
    s_cbranch_scc1 P1_W0
    s_waitcnt vmcnt({4*(PRE-1) + 8 + PF}) lgkmcnt(0)
    s_branch P1_W1
    """)
    o.lab("P1_W0")
    o(f"s_waitcnt vmcnt({4*(PRE-1) + PF}) lgkmcnt(0)")
    o.lab("P1_W1")
    o("s_barrier")
    o("s_add_u32 s100, s100, 0x7f4a7c15")
    o("s_addc_u32 s101, s101, 0x9e3779b9")
    stamp(o, 2)
    for t in reads_l(0): o(t)
    for n in range(PRE, LOOK): dma(n)
    P = 80
    for n in range(8):
        if n < 7:
            o(f"s_waitcnt vmcnt({4*(min(n+LOOK-1,7)-(n+1)) + (PF if n == 0 and not OPT.get('PFPOS') else 0)}) lgkmcnt(0)")
            o("s_barrier")
        else:
            o("s_waitcnt lgkmcnt(0)")
        R = reads_l(n + 1) if n < 7 else []
        Dm = dma_l(n + LOOK) if n + LOOK <= 7 else []
        M = []
        for ks in range(2):
            b = (FR1 if n & 1 else FR) + 20 * ks
            for tt in range(2):
                M.append(f"v_mfma_f32_16x16x32_bf16 {vr(ACC+8+4*tt,4)}, {vr(b+12,4)}, {vr(b+4*tt,4)}, {vr(ACC+8+4*tt,4)}")
            for tt in range(2):
                M.append(f"v_mfma_f32_16x16x32_bf16 {vr(ACC+16+4*tt,4)}, {vr(b+4*tt,4)}, {vr(b+16,4)}, {vr(ACC+16+4*tt,4)}")
            for tt in range(2):
                M.append(f"v_mfma_f32_16x16x32_bf16 {vr(ACC+4*tt,4)}, {vr(b+8,4)}, {vr(b+4*tt,4)}, {vr(ACC+4*tt,4)}")
        for i, m in enumerate(M):
            o(m)
            if i < 8:
                for t in R[2*i:2*i+2]: o(t)
            elif Dm: o(Dm[i - 8])
    stamp(o, 3)
    o(f"""
    s_lshl_b32 s49, s27, 2
    s_add_u32 s49, s49, s48         ; head
    s_lshl_b32 s52, s49, 12
    s_lshl_b32 s49, s49, 6
    s_lshl_b32 s50, s26, 1
    s_add_u32 s50, s50, s30
    s_add_u32 s49, s49, s50
    s_lshl_b32 s53, s50, 3
    s_add_u32 s52, s52, s53
    s_add_u32 s52, s52, {FL1_OFF:#x}
    s_lshl_b32 s50, s49, 11
    s_lshl_b32 s49, s49, 10
    s_add_u32 s50, s50, {KV_OFF:#x}
    s_mov_b32 s51, {f2u(0.25*LOG2E):#x}
    """)
    def cv(a):
        b = ACC + 4 * a
        o(f"v_cvt_pk_bf16_f32 v{FR+2*a}, v{b}, v{b+1}")
        o(f"v_cvt_pk_bf16_f32 v{FR+1+2*a}, v{b+2}, v{b+3}")
    def sw(a):
        o(f"v_permlane16_swap_b32 v{FR+4*a}, v{FR+4*a+2}")
        o(f"v_permlane16_swap_b32 v{FR+4*a+1}, v{FR+4*a+3}")
    cv(2); cv(3); cv(4); cv(5)
    sw(1)
    for i in range(4): o(f"v_mul_f32 v{ACC+i}, s51, v{ACC+i}")
    o(f"buffer_store_dwordx4 {vr(FR+4,4)}, v1, s[20:23], s50 offen")
    sw(2)
    for i in range(4, 8): o(f"v_mul_f32 v{ACC+i}, s51, v{ACC+i}")
    o(f"buffer_store_dwordx4 {vr(FR+8,4)}, v1, s[20:23], s50 offen offset:1024")
    cv(0); cv(1)
    o("s_nop 1")
    sw(0)
    o("s_nop 1")
    o(f"""
    buffer_store_dwordx4 {vr(FR,4)}, v1, s[20:23], s49 offen
    s_load_dwordx4 s[4:7], s[0:1], 16
    s_load_dwordx4 s[8:11], s[0:1], 88
    v_lshlrev_b32 v4, 9, v0
    v_mov_b32 v6, s100
    v_mov_b32 v7, s101
    s_lshl_b32 s26, s24, 2
    s_and_b32 s27, s25, 3
    s_add_u32 s26, s26, s27
    s_lshr_b32 s27, s25, 2          ; qb
    """)

def flag1(o):
    o(f"""
    s_mov_b64 exec, 0xff
    s_waitcnt vmcnt(0)
    buffer_store_dwordx2 v[6:7], v4, s[20:23], s52 offen
    s_mov_b64 exec, -1
    """)
    stamp(o, 4)

def kgen(o):
    P, T, GA, WA, RA = 80, 88, 168, 78, 79
    o(f"""
    s_and_b32 s58, s3, 3
    s_mul_i32 s58, s58, {KS}
    s_add_u32 s58, s58, {KB}
    v_lshl_add_u32 v{WA}, v0, 2, s58
    v_mul_u32_u24 v{RA}, 272, v2
    v_lshl_add_u32 v{RA}, v3, 4, v{RA}
    v_add_u32 v{RA}, s58, v{RA}
    s_mul_i32 s58, s55, {L_C1}
    s_add_u32 s58, s58, {CHL}
    v_add_u32 v{T}, s58, v1
    """)
    for i in range(12): o(f"v_mov_b32 v{GA+i}, 0")
    sc = Sched()
    pairs = [r for r in range(36, 76, 2)] + [r for r in range(90, 168, 2)] + [r for r in range(180, 236, 2)]
    tpool = list(range(236, 256)); tix = [0]
    def newp(): return pairs.pop(0)
    def tmp():
        t = tpool[tix[0] % len(tpool)]; tix[0] += 1; return t
    def op(text, d, u, **k): sc.add(text, d, u, **k)
    for r in range(P, P + 7): op(f"v_lshlrev_b32 v{r}, 16, v{r}", [r], [r])
    D = P + 6
    op(f"v_mul_f32 v{D}, {f2u(LOG2E):#x}, v{D}", [D], [D])
    op(f"v_exp_f32 v{D}, v{D}", [D], [D], lat=16, cost=8, trans=True)
    op(f"v_cvt_pk_bf16_f32 v{D}, v{D}, v{D}", [D], [D])
    op(f"v_lshlrev_b32 v{D}, 16, v{D}", [D], [D])
    for k in range(4): op(f"v_mul_f32 v{P+k}, v{D}, v{P+k}", [P+k], [D, P+k])
    op(f"v_mul_f32 v{P}, {f2u(LOG2E):#x}, v{P}", [P], [P])
    op(f"v_mul_f32 v{P+1}, {f2u(1/(2*math.pi)):#x}, v{P+1}", [P+1], [P+1])
    C = newp()
    op(f"v_mul_f32 v{C}, v{P+4}, v{P+2}", [C], [P+4, P+2])
    op(f"v_mul_f32 v{C+1}, v{P+4}, v{P+3}", [C+1], [P+4, P+3])
    op(f"v_fma_f32 v{C}, -v{P+5}, v{P+3}, v{C}", [C], [P+5, P+3, C])
    op(f"v_fma_f32 v{C+1}, v{P+5}, v{P+2}, v{C+1}", [C+1], [P+5, P+2, C+1])
    def anchor(t):
        d = newp(); a_, b_, c_, e_ = tmp(), tmp(), tmp(), tmp()
        op(f"v_mul_f32 v{a_}, {f2u(float(t)):#x}, v{P}", [a_], [P])
        op(f"v_mul_f32 v{b_}, {f2u(float(t)):#x}, v{P+1}", [b_], [P+1])
        op(f"v_exp_f32 v{a_}, v{a_}", [a_], [a_], lat=16, cost=8, trans=True)
        op(f"v_fract_f32 v{b_}, v{b_}", [b_], [b_])
        op(f"v_cos_f32 v{c_}, v{b_}", [c_], [b_], lat=16, cost=8, trans=True)
        op(f"v_sin_f32 v{e_}, v{b_}", [e_], [b_], lat=16, cost=8, trans=True)
        op(f"v_mul_f32 v{d}, v{a_}, v{c_}", [d], [a_, c_])
        op(f"v_mul_f32 v{d+1}, v{a_}, v{e_}", [d+1], [a_, e_])
        return d
    def cmul(x, w):
        d = newp()
        op(f"v_pk_mul_f32 {vr(d,2)}, {vr(x,2)}, {vr(w,2)} op_sel:[0,0] op_sel_hi:[1,0]", [d, d+1], [x, x+1, w], lat=12)
        op(f"v_pk_fma_f32 {vr(d,2)}, {vr(x,2)}, {vr(w,2)}, {vr(d,2)} op_sel:[1,1,0] op_sel_hi:[0,1,1] neg_lo:[1,0,0]", [d, d+1], [x, x+1, w+1, d, d+1], lat=12)
        return d
    def put(e, x, neg=False):
        t = tmp()
        op(f"v_cvt_pk_bf16_f32 v{t}, v{x}, {'-' if neg else ''}v{x+1}", [t], [x, x+1])
        if not OPT.get("KNOW"): op(f"ds_write_b32 v{WA}, v{t} offset:{e*272}", [], [t])
    Z8, Z1, Z128 = anchor(8), anchor(1), anchor(128)
    t_ = tmp()
    op(f"v_mov_b32 v{t_}, 0x3f80", [t_], [])
    op(f"ds_write_b32 v{WA}, v{t_}", [], [t_])
    e = {1: Z8}
    e[2] = cmul(e[1], e[1]); e[3] = cmul(e[2], e[1]); e[4] = cmul(e[2], e[2])
    for j in (5, 6, 7): e[j] = cmul(e[4], e[j-4])
    e[8] = cmul(e[4], e[4])
    for j in range(9, 16): e[j] = cmul(e[8], e[j-8])
    for j in range(1, 16): put(j, e[j], True)
    x = {0: C}
    x[1] = cmul(C, Z1); Z2 = cmul(Z1, Z1); x[2] = cmul(x[0], Z2); x[3] = cmul(x[1], Z2); Z4 = cmul(Z2, Z2)
    for r in range(4, 8): x[r] = cmul(x[r-4], Z4)
    y = {r: cmul(x[r], Z128) for r in range(8)}
    Z256 = cmul(Z128, Z128)
    pp = {r: cmul(x[2*r], Z256) for r in range(4)}
    qq = {r: cmul(y[2*r], Z256) for r in range(4)}
    Z512 = cmul(Z256, Z256)
    rr = [cmul(v_, Z512) for v_ in (x[0], x[4], y[0], y[4], pp[0], pp[2], qq[0], qq[2])]
    Z1024 = cmul(Z512, Z512)
    ss = [cmul(v_, Z1024) for v_ in (x[0], y[0], pp[0], qq[0], rr[0], rr[2], rr[4], rr[6])]
    s2048 = cmul(ss[0], Z1024)
    for r in range(8): put(16 + r, x[r]); put(24 + r, y[r])
    for r in range(4): put(32 + r, pp[r]); put(36 + r, qq[r])
    for r in range(8): put(40 + r, rr[r])
    for r in range(8): put(48 + r, ss[r])
    put(56, s2048)
    sc.emit(o, (OPT.get('FLT', 300), lambda: flag1(o)))
    FB_ = 90
    for t in range(4):
        for s_ in range(4): o(f"ds_read_b128 {vr(FB_+16*t+4*s_,4)}, v{RA} offset:{t*4352 + 64*s_}")
    for t in range(3):
        o(f"s_waitcnt lgkmcnt({8 - 4*t})")
        for s_ in range(4):
            o(f"v_mfma_f32_16x16x32_bf16 {vr(GA+4*t,4)}, {vr(FB_+16+16*t+4*s_,4)}, {vr(FB_+4*s_,4)}, {vr(GA+4*t,4)}")
    o(f"""
    s_cmp_eq_u32 s30, 0
    s_cbranch_scc1 KG_EV
    s_nop 7
    ds_write_b128 v{T}, {vr(GA,4)}
    ds_write_b128 v{T}, {vr(GA+4,4)} offset:1024
    ds_write_b128 v{T}, {vr(GA+8,4)} offset:2048
    """)
    o.lab("KG_EV")

def gsum(o):
    T, GA, X0 = 88, 168, 104
    Y = [120, 122, 124, 126, 128]
    o(f"""
    s_cmp_lg_u32 s34, 0
    s_cbranch_scc1 GS_END
    ds_read_b128 {vr(X0,4)}, v{T}
    ds_read_b128 {vr(X0+4,4)}, v{T} offset:1024
    ds_read_b128 {vr(X0+8,4)}, v{T} offset:2048
    s_mul_i32 s58, s33, 1536
    s_add_u32 s58, s58, {CHL + L_GC}
    v_lshrrev_b32 v{Y[0]}, 1, v3
    v_lshlrev_b32 v{Y[0]}, 8, v{Y[0]}
    v_lshl_add_u32 v{Y[0]}, v2, 4, v{Y[0]}
    v_and_b32 v{Y[0]+1}, 1, v3
    v_lshl_add_u32 v{Y[0]}, v{Y[0]+1}, 3, v{Y[0]}
    v_cmp_gt_u32 s[60:61], 2, v3
    v_lshlrev_b32 v{Y[1]}, 2, v2
    v_lshlrev_b32 v{Y[1]+1}, 3, v2
    v_cndmask_b32 v{Y[1]}, v{Y[1]}, v{Y[1]+1}, s[60:61]
    v_lshl_add_u32 v{Y[1]}, v3, 7, v{Y[1]}
    v_mov_b32 v{Y[1]+1}, 64
    v_cndmask_b32 v{Y[1]+1}, v{Y[1]+1}, 4, s[60:61]
    v_add_u32 v{Y[1]+1}, v{Y[1]}, v{Y[1]+1}
    v_lshlrev_b32 v{Y[2]}, 7, v3
    v_lshl_add_u32 v{Y[2]}, v2, 1, v{Y[2]}
    v_add_u32 v{Y[0]}, s58, v{Y[0]}
    v_add_u32 v{Y[1]}, s58, v{Y[1]}
    v_add_u32 v{Y[1]+1}, s58, v{Y[1]+1}
    v_add_u32 v{Y[2]}, s58, v{Y[2]}
    s_waitcnt lgkmcnt(0)
    """)
    for i in range(12): o(f"v_add_f32 v{GA+i}, v{GA+i}, v{X0+i}")
    g = Y[4]
    for i in range(6): o(f"v_cvt_pk_bf16_f32 v{g+i}, v{GA+2*i}, v{GA+2*i+1}")
    o(f"""
    ds_write_b64 v{Y[0]}, {vr(g,2)}
    ds_write_b32 v{Y[1]}, v{g+2} offset:512
    ds_write_b32 v{Y[1]+1}, v{g+3} offset:512
    ds_write_b16 v{Y[2]}, v{g+4} offset:1024
    ds_write_b16_d16_hi v{Y[2]}, v{g+4} offset:1056
    ds_write_b16 v{Y[2]}, v{g+5} offset:1088
    ds_write_b16_d16_hi v{Y[2]}, v{g+5} offset:1120
    """)
    o.lab("GS_END")

def phase3(o):
    if OPT.get("B4", 6) == 16: o("s_barrier")
    srd(o, 12, 4, 512*1024)
    srd(o, 16, 10, 2048*2048)
    o(f"""
    s_and_b32 s30, s3, 1            ; tt
    s_lshr_b32 s31, s3, 1
    s_lshl_b32 s32, s27, 2
    s_bfe_u32 s33, s26, 0x20002
    s_add_u32 s32, s32, s33         ; tb
    s_lshl_b32 s32, s32, 1
    s_add_u32 s32, s32, s30
    s_lshr_b32 s35, s26, 4
    s_lshl_b32 s35, s35, 2
    s_and_b32 s34, s26, 3
    s_add_u32 s35, s35, s34         ; nb
    s_lshl_b32 s34, s35, 1
    s_add_u32 s34, s34, s31
    s_lshl_b32 s42, s31, 14
    s_lshl_b32 s43, s32, 15
    s_add_u32 s42, s42, s43
    s_add_u32 s42, s42, {OF_OFF:#x}
    s_add_u32 s43, s42, 4096
    s_add_u32 s44, s42, 8192
    s_add_u32 s45, s42, 12288
    v_lshrrev_b32 v2, 3, v0
    v_and_b32 v3, 7, v0
    v_bfe_u32 v4, v0, 4, 1
    v_lshlrev_b32 v4, 2, v4
    v_xor_b32 v3, v3, v4
    v_lshlrev_b32 v3, 4, v3
    v_lshl_add_u32 v2, v2, 10, v3
    s_lshl_b32 s36, s3, 17
    s_lshl_b32 s37, s35, 7
    s_add_u32 s36, s36, s37
    s_lshl_b32 s37, s3, 14
    s_mov_b32 m0, s37
    v_lshrrev_b32 v3, 5, v0
    v_bfe_u32 v4, v0, 2, 2
    v_lshl_add_u32 v3, v3, 2, v4
    v_lshlrev_b32 v3, 7, v3
    v_bfe_u32 v4, v0, 3, 1
    v_xor_b32 v4, s31, v4
    v_lshl_add_u32 v3, v4, 6, v3
    v_bfe_u32 v4, v0, 4, 1
    v_lshl_add_u32 v3, v4, 5, v3
    v_and_b32 v4, 3, v0
    v_lshl_add_u32 v3, v4, 3, v3
    s_lshl_b32 s37, s31, 15
    v_add_u32 v250, s37, v3
    v_xor_b32 v251, 64, v250
    v_mov_b32 v252, s100
    v_mov_b32 v253, s101
    v_lshrrev_b32 v5, 2, v0
    v_lshlrev_b32 v5, 4, v5
    v_and_b32 v8, 3, v0
    v_add_u32 v5, v5, v8
    v_lshlrev_b32 v5, 8, v5
    s_lshl_b32 s38, s27, 13
    s_lshl_b32 s39, s26, 3
    s_add_u32 s38, s38, s39
    s_lshl_b32 s39, s3, 10
    s_add_u32 s38, s38, s39
    s_add_u32 s38, s38, {FL2_OFF:#x}
    """)
    sw_arrive(o, 0, 8, 9, restore="0xff")
    o(f"""
    s_waitcnt vmcnt(0)
    buffer_store_dwordx2 v[252:253], v5, s[20:23], s38 offen
    """)
    xstamp(o, 0)
    sw_wait(o, "P3_S1", 0, 8, 9)
    for i in range(16):
        o("buffer_load_dwordx4 v2, s[12:15], s36 offen lds")
        if i < 15:
            o("s_add_u32 m0, m0, 1024")
            o("s_add_u32 s36, s36, 8192")
    AC, FA, FBb = 4, 36, 164
    xstamp(o, 1)
    o(f"""
    s_lshl_b32 s38, s27, 5
    s_add_u32 s38, s38, s26
    s_lshl_b32 s38, s38, 8
    s_lshl_b32 s39, s31, 7
    s_add_u32 s38, s38, s39
    s_add_u32 s38, s38, {FL2_OFF:#x}
    v_lshlrev_b32 v5, 3, v0
    s_mov_b64 exec, 0xffff
    """)
    poll(o, "P3_POLL", 5, 38, 252, 232, first=lambda: sw_arrive(o, 4, 8, 9, restore="0xffff"))
    o("s_mov_b64 exec, -1")
    xstamp(o, 2)
    for h in range(16):
        o(f"buffer_load_dwordx4 {vr(FBb+4*h,4)}, v1, s[20:23], s{42 + (h >> 2)} offen offset:{1024*(h&3)} sc1")
    sw_wait(o, "P3_S2", 4, 8, 9)
    for h in range(16):
        for k in range(2):
            o(f"ds_read_b64_tr_b16 {vr(FA+8*h+4*k,2)}, v{250+k} offset:{2048*h}")
            o(f"ds_read_b64_tr_b16 {vr(FA+8*h+4*k+2,2)}, v{250+k} offset:{2048*h+1024}")
    XB = 65536
    o(f"""
    s_xor_b32 s36, s3, 2
    s_lshl_b32 s36, s36, 12
    s_add_u32 s36, s36, {XB}
    v_add_u32 v240, s36, v1
    s_lshl_b32 s36, s3, 12
    s_add_u32 s36, s36, {XB}
    v_add_u32 v241, s36, v1
    v_and_b32 v2, 31, v0
    v_lshlrev_b32 v2, 11, v2
    v_lshrrev_b32 v3, 5, v0
    v_lshl_add_u32 v2, v3, 4, v2
    s_lshl_b32 s36, s32, 16
    s_lshl_b32 s37, s34, 6
    s_add_u32 s36, s36, s37
    s_lshl_b32 s37, s30, 2
    s_add_u32 s37, s37, {CHL + L_CNT + 8}
    s_waitcnt lgkmcnt(0)
    """)
    def mm(k, h):
        c = vr(AC + 16 * k, 16)
        o(f"v_mfma_f32_32x32x16_bf16 {c}, {vr(FA+8*h+4*k,4)}, {vr(FBb+4*h,4)}, {c if h else 0}")
    for h in range(16):
        o(f"s_waitcnt vmcnt({15-h})")
        if h == 0: xstamp(o, 3)
        mm(1, h)
    mm(0, 0)
    o("s_nop 7")
    mm(0, 1)
    o("s_nop 1")
    for q in range(4):
        o(f"ds_write_b128 v240, {vr(AC+16+4*q,4)} offset:{q*1024}")
        mm(0, 2 + q)
    sw_arrive(o, 0, 242, 243, base="s37")
    for h in range(6, 12): mm(0, h)
    sw_wait(o, "P3_S3", 0, 242, 243, cnt=2)
    for q in range(4):
        o(f"ds_read_b128 {vr(AC+16+4*q,4)}, v241 offset:{q*1024}")
        mm(0, 12 + q)
    xstamp(o, 4)
    o("s_nop 11")
    for q in range(4):
        o(f"s_waitcnt lgkmcnt({3-q})")
        for i in range(4): o(f"v_add_f32 v{AC+4*q+i}, v{AC+4*q+i}, v{AC+16+4*q+i}")
        for i in range(2): o(f"v_cvt_pk_bf16_f32 v{FA+2*q+i}, v{AC+4*q+2*i}, v{AC+4*q+2*i+1}")
    o(f"""
    s_nop 1
    v_permlane32_swap_b32 v36, v38
    v_permlane32_swap_b32 v37, v39
    v_permlane32_swap_b32 v40, v42
    v_permlane32_swap_b32 v41, v43
    s_nop 1
    buffer_store_dwordx4 v[36:39], v2, s[16:19], s36 offen{['',' sc1',' nt',' sc0 sc1'][OPT.get('OSF',0)]}
    buffer_store_dwordx4 v[40:43], v2, s[16:19], s36 offen offset:32{['',' sc1',' nt',' sc0 sc1'][OPT.get('OSF',0)]}
    s_add_u32 s38, s2, s3
    s_cmp_lg_u32 s38, 0
    s_cbranch_scc1 P3_NE
    s_mov_b32 s38, {EP_OFF:#x}
    v_mov_b32 v5, 0
    s_mov_b64 exec, 1
    buffer_store_dwordx2 v[252:253], v5, s[20:23], s38 offen
    """)
    o.lab("P3_NE")
    if not OPT.get("ST0"): xstamp(o, 5)

def kvpiece(o, step):
    o("s_add_u32 s38, s30, s37")
    o("buffer_load_dwordx4 v1, s[20:23], s38 offen sc1 lds")
    o(f"s_add_u32 m0, m0, {step}")
    o(f"s_add_u32 s30, s30, {step}")
    o("s_and_b32 s30, s30, 0x1ffff")

def phase2(o):
    o(f"""
    s_lshl_b32 s37, s26, 17
    s_add_u32 s37, s37, {KV_OFF:#x}
    s_lshl_b32 s36, s26, 3
    s_add_u32 s36, s36, s27
    s_lshl_b32 s36, s36, 9
    s_add_u32 s36, s36, {FL1_OFF:#x}
    s_cmp_ge_u32 s3, 4
    s_cbranch_scc1 P2_AUX
    """)
    flag1(o)
    QA, QB, NMA, NMB, OA, OB, SX, SY = 4, 8, 12, 28, 44, 60, 76, 92
    KF, V0, V1, IDX, AD, MB = (108, 112), (116, 120), (124, 128), 132, 2, 133
    o(f"""
    s_lshl_b32 s35, s26, 6
    s_lshl_b32 s31, s27, 3
    s_add_u32 s35, s35, s31
    s_lshl_b32 s31, s3, 1
    s_add_u32 s35, s35, s31
    s_lshl_b32 s35, s35, 10
    s_lshl_b32 s31, s3, 11
    s_lshl_b32 s30, s27, 14
    s_add_u32 s30, s30, s31
    s_lshl_b32 s38, s27, 6
    s_add_u32 s36, s36, s38
    """)
    def vinit():
        o("s_mov_b64 exec, s[42:43]")
        for r in range(V0[0], V0[0] + 16): o(f"v_mov_b32 v{r}, 0x3f803f80")
        o("s_not_b64 exec, exec")
        for r in range(V0[0], V0[0] + 16): o(f"v_mov_b32 v{r}, 0")
        o("s_mov_b64 exec, -1")
    o(f"""
    s_mov_b32 s40, 0xffff
    s_mov_b32 s41, 0xffff
    s_mov_b32 s42, 0x110000
    s_mov_b32 s43, 0x110000
    s_mov_b32 s34, 0
    v_mov_b32 v{IDX}, 0xdddd
    """)
    vinit()
    def zinit():
        for i in range(16): o(f"v_mov_b32 v{OA+i}, 0")
        for i in range(16): o(f"v_mov_b32 v{OB+i}, 0")
    zinit()
    if OPT.get("APRIO"): o(f"s_setprio {OPT['APRIO']}")
    o(f"""
    s_mov_b32 m0, s31
    v_lshlrev_b32 v2, 3, v0
    s_mov_b64 exec, 0xff
    """)
    poll(o, "P2_POLL", 2, 36, 6, 140)
    o("s_mov_b64 exec, -1")
    stamp(o, 5)
    kvpiece(o, 1024)
    o(f"buffer_load_dwordx4 {vr(QA,4)}, v1, s[20:23], s35 offen sc1")
    o(f"buffer_load_dwordx4 {vr(QB,4)}, v1, s[20:23], s35 offen offset:1024 sc1")
    kvpiece(o, 7168); kvpiece(o, 1024); kvpiece(o, 1024)
    o(f"""
    v_add_u32 v{AD}, s31, v1
    s_waitcnt vmcnt(3)
    ds_read_b128 {vr(KF[0],4)}, v{AD}
    s_waitcnt lgkmcnt(0)
    v_mfma_f32_32x32x16_bf16 {vr(SX,16)}, {vr(KF[0],4)}, {vr(QA,4)}, 0
    v_mfma_f32_32x32x16_bf16 {vr(SY,16)}, {vr(KF[0],4)}, {vr(QB,4)}, 0
    s_nop 10
    """)
    def maxred(src, dst):
        o(f"v_max3_f32 v{dst}, v{src}, v{src+1}, v{src+2}")
        for i in range(3, 15, 2): o(f"v_max3_f32 v{dst}, v{dst}, v{src+i}, v{src+i+1}")
        o(f"v_max_f32 v{dst}, v{dst}, v{src+15}")
    maxred(SX, 3)
    maxred(SY, MB)
    o.lab("K2_PASS")
    o(f"""
    v_mov_b32 v{AD}, v3
    v_mov_b32 v{MB+1}, v{MB}
    s_nop 1
    v_permlane32_swap_b32 v3, v{AD}
    v_permlane32_swap_b32 v{MB}, v{MB+1}
    s_nop 1
    v_max_f32 v3, v3, v{AD}
    v_max_f32 v{MB}, v{MB}, v{MB+1}
    v_mov_b32 v{AD}, v1
    """)
    for i in range(16): o(f"v_sub_f32 v{NMA+i}, 0, v3")
    for i in range(16): o(f"v_sub_f32 v{NMB+i}, 0, v{MB}")
    for i in range(8, 16): o(f"v_mov_b32 v{SY+i}, 0")
    o(f"""
    s_mov_b32 s32, 0                ; iteration
    s_mov_b32 s33, 16
    s_cmp_lg_u32 s34, 0
    s_cbranch_scc1 K2_GO
    s_mov_b32 s33, 1
    s_waitcnt vmcnt(0)
    s_barrier
    """)
    if not OPT.get("ST0"): xstamp(o, 6)
    o.lab("K2_GO")
    o(f"""
    ds_read_b128 {vr(KF[0],4)}, v1
    ds_read_b128 {vr(KF[1],4)}, v1 offset:2048
    s_mov_b64 exec, s[40:41]
    ds_read_b128 {vr(V0[0],4)}, v1 offset:1024
    ds_read_b128 {vr(V1[0],4)}, v1 offset:1280
    s_mov_b64 exec, -1
    s_waitcnt lgkmcnt(3)
    v_mfma_f32_32x32x16_bf16 {vr(SX,16)}, {vr(KF[0],4)}, {vr(QA,4)}, {vr(NMA,16)}
    s_nop 11
    """)
    o.raw(".p2align 6")
    o.lab("K2_LOOP")
    SP = [(3,8,13),(2,8,13),(4,9,14),(3,8,14),(5,10,15),(2,7,12),(2,5,11),(2,5,10)][OPT.get('SP',6)]
    def ex(X, a, b):
        for i in range(a, b): o(f"v_exp_f32 v{X+i}, v{X+i}")
    for u in range(4):
        p = u & 1
        ex(SX, 0, SP[0])
        o("s_waitcnt lgkmcnt(0)")
        o(f"v_smfmac_f32_32x32x32_bf16 {vr(OB,16)}, {vr(V1[p^1],4)}, {vr(SY+8,8)}, v{IDX}")
        o("s_mov_b64 exec, s[40:41]")
        o(f"ds_read_b128 {vr(V0[p^1],4)}, v{AD} offset:{(u+1)*2048+1024}")
        o(f"ds_read_b128 {vr(V1[p^1],4)}, v{AD} offset:{(u+1)*2048+1280}")
        o("s_mov_b64 exec, -1")
        ex(SX, SP[0], SP[1])
        o(f"v_mfma_f32_32x32x16_bf16 {vr(SY,16)}, {vr(KF[p],4)}, {vr(QB,4)}, {vr(NMB,16)}")
        o(f"ds_read_b128 {vr(KF[p],4)}, v{AD} offset:{(u+2)*2048}")
        ex(SX, SP[1], SP[2])
        o(f"v_smfmac_f32_32x32x32_bf16 {vr(OA,16)}, {vr(V0[p],4)}, {vr(SX,8)}, v{IDX}")
        ex(SX, SP[2], 16)
        if u == 3:
            o(f"v_add_u32 v{AD}, 8192, v{AD}")
            o("s_add_u32 s32, s32, 1")
            o("s_cmp_lt_u32 s32, s33")
        ex(SY, 0, SP[0])
        o(f"v_smfmac_f32_32x32x32_bf16 {vr(OA,16)}, {vr(V1[p],4)}, {vr(SX+8,8)}, v{IDX}")
        ex(SY, SP[0], SP[1])
        o(f"v_mfma_f32_32x32x16_bf16 {vr(SX,16)}, {vr(KF[p^1],4)}, {vr(QA,4)}, {vr(NMA,16)}")
        ex(SY, SP[1], SP[2])
        o(f"v_smfmac_f32_32x32x32_bf16 {vr(OB,16)}, {vr(V0[p],4)}, {vr(SY,8)}, v{IDX}")
        ex(SY, SP[2], 16)
    o(f"""
    s_cbranch_scc1 K2_LOOP
    s_cmp_ge_u32 s32, 16
    s_cbranch_scc1 K2_FIN
    """)
    if OPT.get("STB"):
        o(f"s_cmp_lg_u32 s32, {OPT['STB']}")
        o("s_cbranch_scc1 K2_SB0")
        stamp(o, 2)
        o("s_barrier")
        stamp(o, 3)
        o("s_branch K2_SB1")
        o.lab("K2_SB0")
    o("s_barrier")
    if OPT.get("STB"): o.lab("K2_SB1")
    o(f"""
    s_cmp_eq_u32 s32, {OPT.get("B3", 5)}
    s_cselect_b32 s33, {OPT.get("B4", 6)}, 16
    s_cmp_eq_u32 s32, 1
    s_cselect_b32 s33, {OPT.get("B3", 5)}, s33
    s_branch K2_LOOP
    """)
    o.lab("K2_FIN")
    xstamp(o, 7)
    o(f"""
    v_smfmac_f32_32x32x32_bf16 {vr(OB,16)}, {vr(V1[1],4)}, {vr(SY+8,8)}, v{IDX}
    v_mul_f32 v3, 0, v{OA+8}
    """)
    for i in range(8): o(f"v_fma_f32 v3, v{OA+i}, 0, v3")
    o("s_nop 3")
    for i in range(9): o(f"v_fma_f32 v3, v{OB+i}, 0, v3")
    o(f"""
    s_cmp_lg_u32 s34, 0
    s_cbranch_scc1 K2_OUT
    v_cmp_u_f32 vcc, v3, v3
    s_nop 1
    s_cbranch_vccz K2_OUT
    s_mov_b32 s34, 1
    s_mov_b32 s32, 0
    v_mov_b32 v{AD}, v1
    v_mov_b32 v3, 0xff800000
    v_mov_b32 v{MB}, 0xff800000
    s_waitcnt lgkmcnt(0)
    """)
    o.lab("K2_MAXL")
    o(f"""
    ds_read_b128 {vr(KF[0],4)}, v{AD}
    v_add_u32 v{AD}, 2048, v{AD}
    s_waitcnt lgkmcnt(0)
    v_mfma_f32_32x32x16_bf16 {vr(SX,16)}, {vr(KF[0],4)}, {vr(QA,4)}, 0
    v_mfma_f32_32x32x16_bf16 {vr(SY,16)}, {vr(KF[0],4)}, {vr(QB,4)}, 0
    s_nop 15
    """)
    for i in range(0, 16, 2): o(f"v_max3_f32 v3, v3, v{SX+i}, v{SX+i+1}")
    for i in range(0, 16, 2): o(f"v_max3_f32 v{MB}, v{MB}, v{SY+i}, v{SY+i+1}")
    o(f"""
    s_add_u32 s32, s32, 1
    s_cmp_lt_u32 s32, 64
    s_cbranch_scc1 K2_MAXL
    """)
    vinit()
    zinit()
    o("s_branch K2_PASS")
    o.lab("K2_OUT")
    o(f"""
    v_rcp_f32 v3, v{OA+8}
    v_rcp_f32 v{MB}, v{OB+8}
    s_lshl_b32 s30, s27, 3
    s_lshl_b32 s31, s3, 1
    s_add_u32 s30, s30, s31
    s_lshl_b32 s30, s30, 5
    s_add_u32 s30, s30, s26
    s_lshl_b32 s30, s30, 10
    s_add_u32 s30, s30, {OF_OFF:#x}
    s_add_u32 s31, s30, 32768
    """)
    for i in range(8): o(f"v_mul_f32 v{OA+i}, v{OA+i}, v3")
    for i in range(4): o(f"v_cvt_pk_bf16_f32 v{SX+i}, v{OA+2*i}, v{OA+2*i+1}")
    o(f"buffer_store_dwordx4 {vr(SX,4)}, v1, s[20:23], s30 offen")
    for i in range(8): o(f"v_mul_f32 v{OB+i}, v{OB+i}, v{MB}")
    for i in range(4): o(f"v_cvt_pk_bf16_f32 v{SX+4+i}, v{OB+2*i}, v{OB+2*i+1}")
    o(f"buffer_store_dwordx4 {vr(SX+4,4)}, v1, s[20:23], s31 offen")
    phase3(o)
    stamp_out(o, 0)
    o("s_endpgm")

    o.lab("P2_AUX")
    if OPT.get("YP", 2) == 1: o("s_setprio 0")
    kgen(o)
    if OPT.get("YP", 2) == 2: o("s_setprio 0")
    srd(o, 16, 10, 2048*2048)
    o(f"""
    s_sub_u32 s3, s3, 4             ; w'
    s_lshl_b32 s31, s3, 10
    s_add_u32 m0, s31, 16384
    s_lshl_b32 s30, s27, 14
    s_add_u32 s30, s30, s31
    s_add_u32 s30, s30, 16384
    s_and_b32 s30, s30, 0x1ffff
    v_mov_b32 v8, {CHL + L_CNT}
    v_mov_b32 v12, 0
    v_mov_b32 v13, 0
    v_mov_b32 v14, 0
    v_mov_b32 v15, 0
    ds_write_b128 v8, v[12:15]
    ds_write_b128 v8, v[12:15] offset:16
    ds_write_b128 v8, v[12:15] offset:32
    v_lshlrev_b32 v5, 3, v0
    s_waitcnt lgkmcnt(0)
    """)
    stamp(o, 5)
    o("s_barrier")
    poll(o, "P2_POLA", 5, 36, 6, 140)
    xstamp(o, 4)
    def kvdma(n):
        for i in range(n): kvpiece(o, 4096)
    kvdma(8)
    o(f"""
    s_lshl_b32 s26, s24, 5
    s_add_u32 s26, s26, s25
    s_lshl_b32 s32, s26, 2
    s_lshr_b32 s33, s3, 1           ; ch'
    s_and_b32 s34, s3, 1
    v_mov_b32 v8, s32
    global_load_dword v16, v8, s[8:9]
    """)
    kvdma(_early())
    gsum(o)
    o(f"""
    s_waitcnt vmcnt({1 + _early()}) lgkmcnt(0)
    s_barrier
    s_mul_i32 s35, s33, 1536
    s_add_u32 s35, s35, {CHL + L_GC}
    v_lshl_add_u32 v5, v0, 3, s35
    v_lshl_add_u32 v6, v0, 2, s35
    v_mov_b32 v7, s35
    ds_read_b64 v[50:51], v5
    ds_read_b32 v52, v5 offset:8
    ds_read2_b32 v[54:55], v6 offset0:128 offset1:129
    ds_read2_b32 v[56:57], v6 offset0:192 offset1:193
    v_add_u32 v6, 1024, v6
    ds_read2_b32 v[58:59], v6 offset0:0 offset1:1
    ds_read_u16 v60, v7
    v_lshlrev_b32 v5, 3, v0
    """)
    kvdma(20 - _early())
    srd(o, 48, 6, 2048*1024)
    o(f"""
    v_lshlrev_b32 v9, 10, v0
    s_lshl_b32 s36, s3, 19
    s_add_u32 s36, s36, s32
    """)
    G1 = OPT.get("G1", 7)
    o("v_mov_b32 v106, v9")
    o("s_lshl_b32 s46, s3, 3")
    o("s_add_u32 s46, s46, s25")
    def gath(a_, b_):
        for i in range(a_, b_):
            o(f"s_add_u32 s47, s46, {i}")
            o("s_and_b32 s47, s47, 31")
            o(f"s_lshl_b32 s{52+i}, s47, 7")
            o("s_lshl_b32 s47, s47, 16")
            o("s_add_u32 s47, s47, s32")
            o(f"buffer_load_dword v{96+i}, v106, s[48:51], s47 offen")
    srd(o, 12, 4, 512*1024)
    gath(0, G1)
    o(f"""
    v_lshlrev_b32 v105, 1, v0
    v_sub_u32 v105, {CHL + L_UT + 4094}, v105
    v_and_b32 v2, 15, v0
    v_lshrrev_b32 v3, 4, v0
    s_lshl_b32 s27, s34, 1
    s_add_u32 s27, s27, s33
    s_lshl_b32 s27, s27, 1
    v_lshlrev_b32 v4, 2, v3
    v_lshl_add_u32 v4, v2, 4, v4    ; 16a+4g
    v_lshlrev_b32 v9, 1, v4
    v_sub_u32 v9, {CHL + L_UT + 4088}, v9
    v_lshlrev_b32 v4, 11, v4        ; *2048 (out)
    v_and_b32 v10, 1, v2
    v_mul_u32_u24 v17, {L_E}, v10
    v_add_u32 v11, v2, v10
    v_lshl_add_u32 v17, v11, 1, v17
    v_lshl_add_u32 v17, v3, 4, v17
    s_mul_i32 s35, s33, {L_C1}
    s_lshl_b32 s36, s34, 8
    s_add_u32 s35, s35, s36
    s_add_u32 s35, s35, {CHL}
    v_add_u32 v17, s35, v17
    v_add_u32 v18, 1024, v17
    v_add_u32 v19, 2048, v17
    v_add_u32 v20, 3072, v17
    v_lshlrev_b32 v10, 5, v2
    v_lshlrev_b32 v11, 4, v3
    v_sub_u32 v11, v11, v10
    s_mul_i32 s35, s33, {L_U1}
    s_add_u32 s35, s35, s36
    s_add_u32 s35, s35, {CHL + L_UT + 480}
    v_add_u32 v23, s35, v11
    s_lshl_b32 s35, s27, 9
    v_subrev_u32 v22, s35, v9
    v_subrev_u32 v21, 512, v22
    s_mul_i32 s38, s33, {L_C1}
    s_xor_b32 s39, s34, 1
    s_mul_i32 s39, s39, {L_E}
    s_add_u32 s38, s38, s39
    s_add_u32 s38, s38, {CHL}
    v_add_u32 v5, s38, v5           ; +8t
    v_lshl_add_u32 v6, v0, 4, s38   ; +16t
    v_lshl_add_u32 v7, v0, 5, s38   ; +32t
    v_lshl_add_u32 v8, v0, 2, s38   ; +4t
    s_mul_i32 s39, s33, {L_U1}
    s_add_u32 s39, s39, {CHL + L_UT + 4096}
    v_lshl_add_u32 v10, v0, 3, s39
    s_mov_b32 s40, 0x01000100
    s_mov_b32 s41, 0x03020302
    v_mov_b32 v92, 0
    v_mov_b32 v93, 0
    v_cmp_eq_u32 s[42:43], 7, v0
    s_waitcnt lgkmcnt(0)
    s_cmp_eq_u32 s34, 0
    s_cbranch_scc0 K2_XO
    v_perm_b32 v64, v54, v54, s40
    v_alignbit_b32 v65, v55, v54, 16
    v_perm_b32 v68, v56, v56, s40
    v_mov_b32 v69, v56
    v_perm_b32 v70, v56, v56, s41
    v_perm_b32 v71, v57, v57, s40
    v_perm_b32 v76, v58, v58, s40
    v_mov_b32 v77, v76
    v_mov_b32 v78, v58
    v_perm_b32 v79, v58, v58, s41
    v_mov_b32 v80, v79
    v_mov_b32 v81, v79
    v_perm_b32 v82, v59, v59, s40
    v_mov_b32 v83, v82
    v_mov_b32 v60, 0
    ds_write_b64 v10, v[92:93]
    s_branch K2_XW
    """)
    o.lab("K2_XO")
    o(f"""
    v_alignbit_b32 v50, v51, v50, 16
    v_alignbit_b32 v51, v52, v51, 16
    v_mov_b32 v64, v54
    v_perm_b32 v65, v55, v55, s40
    v_perm_b32 v68, v56, v56, s40
    v_perm_b32 v69, v56, v56, s41
    v_alignbit_b32 v70, v57, v56, 16
    v_perm_b32 v71, v57, v57, s40
    v_perm_b32 v76, v58, v58, s40
    v_mov_b32 v77, v76
    v_perm_b32 v78, v58, v58, s41
    v_mov_b32 v79, v78
    v_mov_b32 v80, v78
    v_alignbit_b32 v81, v59, v58, 16
    v_perm_b32 v82, v59, v59, s40
    v_mov_b32 v83, v82
    v_lshlrev_b32 v60, 16, v60
    v_cndmask_b32 v60, 0, v60, s[42:43]
    """)
    o.lab("K2_XW")
    o(f"""
    ds_write_b64 v5, v[50:51] offset:32
    ds_write_b64 v5, v[64:65] offset:544
    ds_write_b128 v6, v[68:71] offset:1056
    ds_write_b128 v7, v[76:79] offset:2080
    ds_write_b128 v7, v[80:83] offset:2096
    s_mov_b64 exec, 0xff
    ds_write_b32 v8, v60
    s_mov_b64 exec, -1
    """)
    o(f"""
    s_waitcnt vmcnt({G1})
    s_barrier
    """)
    xstamp(o, 0)
    gath(G1, 8)
    for i in range(8):
        o(f"v_subrev_u32 v{107 + (i & 1)}, s{52+i}, v105")
        o(f"s_waitcnt vmcnt({7 - i})")
        o(f"ds_write_b16 v{107 + (i & 1)}, v{96+i}")
        o(f"ds_write_b16_d16_hi v{107 + (i & 1)}, v{96+i} offset:{L_U1}")
    xstamp(o, 1)
    if True:
        o(f"""
        s_cmp_ge_u32 s3, 1
        s_cbranch_scc1 K2_NWU
        s_lshr_b32 s36, s25, 2
        s_lshl_b32 s36, s36, 16
        s_lshr_b32 s45, s24, 2
        s_lshl_b32 s45, s45, 2
        s_and_b32 s44, s25, 3
        s_add_u32 s45, s45, s44
        s_lshl_b32 s45, s45, 7
        s_add_u32 s36, s36, s45
        buffer_load_dword v110, v106, s[12:15], s36 offen
        """)
        o.lab("K2_NWU")

    o(f"""
    s_waitcnt lgkmcnt(0)
    s_barrier
    s_waitcnt vmcnt(0)
    """)
    xstamp(o, 2)
    if OPT.get("CPRIO"): o(f"s_setprio {OPT['CPRIO']}")
    FB, CA = 24, 152
    def creads(ph):
        b = FB + 64 * (ph & 1)
        L = []
        for p in range(8):
            off = 16 * ph + 128 * (p & 1)
            L.append(f"ds_read2_b32 {vr(b+4*p,2)}, v{17 + (p >> 1)} offset0:{off} offset1:{off+1}")
            L.append(f"ds_read2_b32 {vr(b+4*p+2,2)}, v{17 + (p >> 1)} offset0:{off+2} offset1:{off+3}")
            L.append(f"ds_read_b128 {vr(b+32+4*p,4)}, v23 offset:{512*(7-p) + 64*ph}")
        return L
    for t in creads(0): o(t)
    o(f"""
    s_lshl_b32 s35, s3, 12
    s_add_u32 s35, s35, {CHL}
    v_add_u32 v184, s35, v1
    v_xor_b32 v185, 4096, v184
    s_lshl_b32 s35, s3, 11
    s_add_u32 s35, s35, {CHL + 16384}
    v_add_u32 v190, s35, v1
    v_xor_b32 v191, 4096, v190
    v_lshlrev_b32 v6, 16, v16
    v_and_b32 v7, 0xffff0000, v16
    s_lshl_b32 s44, s33, 2
    s_add_u32 s44, s44, {CHL + L_CNT + 20}
    s_lshl_b32 s45, s34, 2
    s_add_u32 s45, s45, {CHL + L_CNT + 28}
    s_lshl_b32 s40, s27, 19
    s_add_u32 s40, s40, s32
    s_add_u32 s40, s40, 1024
    s_add_u32 s41, s40, 4096
    s_add_u32 s42, s40, {1 << 19}
    s_add_u32 s43, s41, {1 << 19}
    ds_read_b64 v[8:9], v22
    ds_read_b64 v[10:11], v22 offset:{L_U1}
    ds_read_b64 v[12:13], v21
    ds_read_b64 v[14:15], v21 offset:{L_U1}
    s_waitcnt lgkmcnt(0)
    """)
    for ph in range(4):
        b = FB + 64 * (ph & 1)
        R = creads(ph + 1) if ph < 3 else []
        M = [(p, q) for q in range(8) for p in range(8 - q)]
        for i, (p, q) in enumerate(M):
            c = vr(CA + 4 * (p + q), 4)
            first = (ph == 0 and q == 0)
            o(f"v_mfma_f32_16x16x32_bf16 {c}, {vr(b+4*p,4)}, {vr(b+32+4*q,4)}, {0 if first else c}")
            if i < len(R): o(R[i])
        if ph < 3: o("s_waitcnt lgkmcnt(0)")
    xstamp(o, 3)
    swsync(o, "CV_SA", 16, 186, 187)
    RR, TT, FF = 24, 40, 56
    o("s_cmp_eq_u32 s34, 0")
    o("s_cbranch_scc0 CV_H1")
    for j in range(4): o(f"ds_write_b128 v184, {vr(CA+16+4*j,4)} offset:{1024*j}")
    for i in range(16): o(f"v_mov_b32 v{RR+i}, v{CA+i}")
    o("s_branch CV_H2")
    o.lab("CV_H1")
    for j in range(4): o(f"ds_write_b128 v184, {vr(CA+4*j,4)} offset:{1024*j}")
    for i in range(16): o(f"v_mov_b32 v{RR+i}, v{CA+16+i}")
    o.lab("CV_H2")
    swsync(o, "CV_SB", 0, 186, 187, cnt=2, base="s44")
    for j in range(4): o(f"ds_read_b128 {vr(TT+4*j,4)}, v185 offset:{1024*j}")
    o("s_waitcnt lgkmcnt(0)")
    o("s_cmp_eq_u32 s33, 0")
    o("s_cbranch_scc0 CV_C1")
    for i in range(8): o(f"v_add_f32 v{RR+8+i}, v{RR+8+i}, v{TT+8+i}")
    for j in range(2): o(f"ds_write_b128 v190, {vr(RR+8+4*j,4)} offset:{1024*j}")
    for i in range(8): o(f"v_add_f32 v{FF+i}, v{RR+i}, v{TT+i}")
    swsync(o, "CV_SC0", 0, 186, 187, cnt=2, base="s45")
    for j in range(2): o(f"ds_read_b128 {vr(FF+8+4*j,4)}, v191 offset:{1024*j}")
    o("s_branch CV_C2")
    o.lab("CV_C1")
    for i in range(8): o(f"v_add_f32 v{RR+i}, v{RR+i}, v{TT+i}")
    for j in range(2): o(f"ds_write_b128 v190, {vr(RR+4*j,4)} offset:{1024*j}")
    for i in range(8): o(f"v_add_f32 v{FF+8+i}, v{RR+8+i}, v{TT+8+i}")
    swsync(o, "CV_SC1", 0, 186, 187, cnt=2, base="s45")
    for j in range(2): o(f"ds_read_b128 {vr(FF+4*j,4)}, v191 offset:{1024*j}")
    o.lab("CV_C2")
    o("s_waitcnt lgkmcnt(0)")
    for blk in range(2):
        for r in range(4):
            for c, dd in ((0, 6), (1, 7)):
                src = 8 + 4 * blk + 2 * c + (1 - (r >> 1))
                y = FF + 8 * c + 4 * blk + r
                if r & 1: o(f"v_lshlrev_b32 v{188+c}, 16, v{src}")
                else:     o(f"v_and_b32 v{188+c}, 0xffff0000, v{src}")
                o(f"v_fma_f32 v{y}, v{188+c}, v{dd}, v{y}")
            o(f"v_cvt_pk_bf16_f32 v{192+4*blk+r}, v{FF+4*blk+r}, v{FF+8+4*blk+r}")
            o(f"buffer_store_dword v{192+4*blk+r}, v4, s[16:19], s{40 + (r >> 1) + 2*blk} offen offset:{2048*(r&1)}{['',' nt',' sc0'][OPT.get('CSF',0)]}")
    if OPT.get("WBL2"):
        o(f"""
        s_cmp_lg_u32 s3, 0
        s_cbranch_scc1 K_END
        s_and_b32 s38, s25, {OPT['WBL2'] - 1}
        s_cmp_lg_u32 s38, 0
        s_cbranch_scc1 K_END
        s_waitcnt vmcnt(0)
        buffer_wbl2 sc1
        s_waitcnt vmcnt(0)
        """)
    stamp_out(o, 0, wadd=4)
    o.lab("K_END")
    o("s_endpgm")


K2_EARLY = 6
DOC = r'''
; ----------------------------------------------------------------------------------------------------
;  P1  QKV projection, tile 64 tokens x (4 heads x q,k,v); LDS-DMA staging, 16x16x32 MFMA.
; ----------------------------------------------------------------------------------------------------'''
def _early(): return OPT.get("EARLY", 6)
def main(out):
    hdr = open(f"cdna_kernels/{NAME}.s.ref").read().split("; @launch")[0]
    o = A()
    o.raw(hdr.rstrip())
    o.raw(f"; @launch grid=(256,1,1) block=(512,1,1) lds={LDS_ALL}")
    o.raw('.amdgcn_target "amdgcn-amd-amdhsa--gfx950"\n.text')
    o.raw(DOC.strip("\n"))
    kstart(o, NAME + "_kernel")
    rstamp(o, 0); stamp(o, 1)
    o("s_cmp_ge_u32 s2, 256")
    o("s_cbranch_scc1 K_END")
    phase1(o)
    phase2(o)
    o.raw('.section .rodata,"a"')
    o.raw(kdesc(NAME + "_kernel", 256))
    txt = o.text()
    txt = "\n".join((l + " sc1") if l.strip().startswith("buffer_store") and "s80" not in l and "s[16:19]" not in l else l for l in txt.split("\n"))
    open(out, "w").write(txt)

if __name__ == "__main__":
    if "--stamp" in sys.argv:
        STAMP = True; sys.argv.remove("--stamp")
    for a_ in list(sys.argv):
        if a_.startswith("-D"):
            kk, _, vv = a_[2:].partition("="); OPT[kk] = int(vv or 1); sys.argv.remove(a_)
    main(sys.argv[1] if len(sys.argv) > 1 else f"cdna_kernels/{NAME}.s")
```
